```python
import torch

def _softmax(x, axis=-1):
    return torch.softmax(x, dim=axis)
def _gelu(x):
    return torch.nn.functional.gelu(x, approximate="tanh")
def _silu(x):
    return torch.nn.functional.silu(x)
def _sigmoid(x):
    return torch.sigmoid(x)
def _layernorm(x, axis=-1, eps=1e-5):
    m = x.mean(dim=axis, keepdim=True)
    v = x.var(dim=axis, keepdim=True, unbiased=False)
    return (x - m) / torch.sqrt(v + eps)
def _scatter_add(tgt, idx, src, axis=0):
    return tgt.clone().index_add_(axis, idx, src)
def _segment_sum(src, seg, n):
    out = torch.zeros((n,) + src.shape[1:], dtype=src.dtype)
    return out.index_add_(0, seg, src)
def _pad(x, pw):
    flat = tuple(v for pair in reversed(pw) for v in pair)
    return torch.nn.functional.pad(x, flat)

kernel_name = 'parallel_sum__ssm_conv_s4d__glu_gated_bilinear__prompt'

def setup_inputs():

    _w = (lambda a: (lambda t: t.to(torch.bfloat16) if t.is_floating_point() else t)(torch.as_tensor(a)))
    def _A_setup():
        Bsz, L, D, N = 1, 2048, 512, 128
        return {
            "u": _w((lambda *s: torch.randn(*s, dtype=torch.bfloat16) * 0.05)(Bsz, L, D)),
            "log_A_real": _w((lambda *s: torch.randn(*s, dtype=torch.bfloat16) * 6.4)(D, N) * 0.5),
            "A_imag": _w((lambda *s: torch.randn(*s, dtype=torch.bfloat16) * 0.05)(D, N) * 3.14),
            "C_real": _w((lambda *s: torch.randn(*s, dtype=torch.bfloat16) * 0.05)(D, N) / N ** 0.5),
            "C_imag": _w((lambda *s: torch.randn(*s, dtype=torch.bfloat16) * 0.05)(D, N) / N ** 0.5),
            "log_dt": _w((lambda *s: torch.randn(*s, dtype=torch.bfloat16) * 0.05)(D) * 0.5 - 4.0),
            "D_skip": _w((lambda *s: torch.randn(*s, dtype=torch.bfloat16) * 0.05)(D)),
        }
    _A_in = _A_setup()

    def _B_setup():
        B, S, D, F = 1, 2048, 512, 1792
        return {
            "x": _w((lambda *s: torch.randn(*s, dtype=torch.bfloat16) * 0.05)(B, S, D)),
            "w_gate": _w((lambda *s: torch.randn(*s, dtype=torch.bfloat16) * 0.4)(D, F) * (D ** -0.5)),
            "w_up": _w((lambda *s: torch.randn(*s, dtype=torch.bfloat16) * 0.4)(D, F) * (D ** -0.5)),
            "w_down": _w((lambda *s: torch.randn(*s, dtype=torch.bfloat16) * 0.4)(F, D) * (F ** -0.5)),
        }
    _B_in = _B_setup()

    return {
        "A_u": _A_in["u"],
        "A_log_A_real": _A_in["log_A_real"],
        "A_A_imag": _A_in["A_imag"],
        "A_C_real": _A_in["C_real"],
        "A_C_imag": _A_in["C_imag"],
        "A_log_dt": _A_in["log_dt"],
        "A_D_skip": _A_in["D_skip"],
        "B_x": _B_in["x"],
        "B_w_gate": _B_in["w_gate"],
        "B_w_up": _B_in["w_up"],
        "B_w_down": _B_in["w_down"],
    }

def reference(A_u, A_log_A_real, A_A_imag, A_C_real, A_C_imag, A_log_dt, A_D_skip, B_x, B_w_gate, B_w_up, B_w_down):
    def _A_ref(u, log_A_real, A_imag, C_real, C_imag, log_dt, D_skip):
        L = u.shape[1]
        dt = torch.exp(log_dt)
        A = -torch.exp(log_A_real) + 1j * A_imag
        C = (C_real + 1j * C_imag) * dt[:, None]
        pos = (lambda x, dt: x.to(dt))(torch.arange(L), log_dt.dtype)
        P = torch.exp((A * dt[:, None])[:, :, None] * pos[None, None, :])
        K = 2.0 * torch.einsum("dn,dnl->dl", C, P).real
        L2 = 2 * L
        u_t = (lambda x, *d: x.permute(*d))(u, 0, 2, 1)
        Kf = (lambda x, *a, **k: torch.fft.rfft(x.float(), *a, **k))(K, L2)
        Uf = (lambda x, *a, **k: torch.fft.rfft(x.float(), *a, **k))(u_t, L2)
        y = (lambda x, *a, **k: torch.fft.irfft(x, *a, **k).to(torch.bfloat16))(Uf * Kf[None, :, :], L2)[:, :, :L]
        y = (lambda x, *d: x.permute(*d))(y, 0, 2, 1)
        return y + u * D_skip[None, None, :]

    def _B_ref(x, w_gate, w_up, w_down):
        g = torch.einsum("bsd,df->bsf", x, w_gate)
        u = torch.einsum("bsd,df->bsf", x, w_up)
        h = g * u
        return torch.einsum("bsf,fd->bsd", h, w_down)

    x = A_u
    xn = _layernorm(x, axis=-1)
    return x + _A_ref(xn, A_log_A_real, A_A_imag, A_C_real, A_C_imag, A_log_dt, A_D_skip) + _B_ref(xn, B_w_gate, B_w_up, B_w_down)
```

```python
import math
class Asm:
    def __init__(self, prefix="L"):
        self.lines = []
        self.uid = 0
        self.prefix = prefix
    def __call__(self, s):
        for l in s.strip("\n").split("\n"):
            l = l.strip()
            if not l: continue
            self.lines.append(l if l.endswith(":") else "    " + l)
    def label(self, base="x"):
        self.uid += 1
        return "%s_%s_%d" % (self.prefix, base, self.uid)
    def text(self):
        return "\n".join(self.lines) + "\n"

def vr(b, n=4): return f"v[{b}:{b+n-1}]"
def sr(b, n=4): return f"s[{b}:{b+n-1}]"

KA = dict(x=0, logA=8, Aim=16, Cr=24, Ci=32, logdt=40, D=48, Bx=56, wg=64, wu=72, wd=80, out=88, dbg=96, ws=104)
H_OFF   = 0x000000
XNT_OFF = 0x800000
AT_OFF  = 0xA00000
ST_OFF  = 0xC00000
CS_OFF  = 0xC10000
FLAG_OFF= 0xD00000
TS_OFF  = 0xE00000
WS_SIZE = 0x10000000

def srd(a, s, base, size):
    a(f"s_mov_b32 s{s}, s{base}\ns_mov_b32 s{s+1}, s{base+1}\ns_mov_b32 s{s+2}, {hex(size)}\ns_mov_b32 s{s+3}, 0x20000")

def kernel_header(name):
    return f".globl {name}\n.p2align 8\n.type {name},@function\n{name}:\n"
def kernel_desc(name, vgpr, sgpr, accum=None):
    if accum is None: accum = ((vgpr + 3)//4)*4
    accum = min(accum, 256)
    return f""".amdhsa_kernel {name}
  .amdhsa_next_free_vgpr {vgpr}
  .amdhsa_next_free_sgpr {sgpr}
  .amdhsa_accum_offset {accum}
  .amdhsa_group_segment_fixed_size 0
  .amdhsa_kernarg_size 112
  .amdhsa_user_sgpr_count 2
  .amdhsa_user_sgpr_kernarg_segment_ptr 1
  .amdhsa_system_sgpr_workgroup_id_x 1
.end_amdhsa_kernel
"""
def make_file(kernels, header=""):
    out = header
    for k in kernels:
        out += "; @launch kernel=%s grid=(%d,1,1) block=(%d,1,1) lds=%d\n" % (k["name"], k["grid"], k["block"], k.get("lds",0))
    out += '.amdgcn_target "amdgcn-amd-amdhsa--gfx950"\n.text\n'
    seen = set()
    for k in kernels:
        if k["name"] in seen: continue
        seen.add(k["name"])
        out += kernel_header(k["name"]) + k["body"] + "\n"
    out += '.section .rodata,"a"\n'
    seen = set()
    for k in kernels:
        if k["name"] in seen: continue
        seen.add(k["name"])
        out += ".p2align 6\n" + kernel_desc(k["name"], k["vgpr"], k["sgpr"], k.get("accum"))
    return out
```

```python
from roles import *
import struct
def f2u(x): return struct.unpack("<I", struct.pack("<f", x))[0]
LOG2E = f2u(1.4426950408889634)
INV2PI = f2u(0.15915494309189535)

UP   = 4608
PC   = 4160
EP   = 528
ECH  = 57*EP
class CL:
    def __init__(self, base):
        self.U = base
        self.KT = base + 2*UP
        self.C = self.KT + 3200
        self.E = self.C + 8*PC
        self.RED = self.E
        self.end = self.E + 2*ECH + 7*0

def cmul(a, o, x, w, t):
    a(f"v_pk_mul_f32 v[{t}:{t+1}], v[{x}:{x+1}], v[{w}:{w+1}] op_sel_hi:[1,0]")
    a(f"v_pk_fma_f32 v[{o}:{o+1}], v[{x}:{x+1}], v[{w}:{w+1}], v[{t}:{t+1}] op_sel:[1,1,0] op_sel_hi:[0,1,1] neg_lo:[1,0,0]")

def conv_loads(a, sc, V, ld=""):
    for i, nm in enumerate(("logA","Aim","Cr","Ci")):
        srd(a, 36, ka(nm), 512*128*2)
        if i == 0:
            a(f"v_and_b32 v{V+10}, 255, v0\nv_lshlrev_b32 v{V+10}, 1, v{V+10}\ns_lshl_b32 s40, s{sc}, 9")
        a(f"buffer_load_ushort v{V+i}, v{V+10}, s[36:39], s40 offen")
    a(f"v_bfe_u32 v{V+11}, v0, 7, 1\nv_lshlrev_b32 v{V+11}, 1, v{V+11}\ns_lshl_b32 s40, s{sc}, 2")
    srd(a, 36, ka("logdt"), 1024)
    a(f"buffer_load_ushort v{V+4}, v{V+11}, s[36:39], s40 offen")
    a(f"v_lshrrev_b32 v{V+11}, 8, v0\nv_lshlrev_b32 v{V+11}, 1, v{V+11}")
    srd(a, 36, ka("D"), 1024)
    a(f"buffer_load_ushort v{V+5}, v{V+11}, s[36:39], s40 offen")

def conv_uload(a, sc, V, ld=""):
    a(f"""
    v_lshlrev_b32 v{V+10}, 4, v0
    s_lshl_b32 s40, s{sc}, 13
    s_add_u32 s40, s40, {XNT_OFF}
    buffer_load_dwordx4 {vr(V+6)}, v{V+10}, {sr(S_WS)}, s40 offen {ld}
    """)

def gather_addrs(a, L, GA, T):
    a(f"""
    v_and_b32 v{T}, 255, v0
    v_lshlrev_b32 v{T}, 3, v{T}
    v_sub_u32 v{T}, 2051, v{T}              ; j for e=0
    v_lshrrev_b32 v{T+3}, 8, v0
    v_mul_u32_u24 v{T+3}, 1536, v{T+3}
    v_add_u32 v{T+3}, {L.KT}, v{T+3}
    s_movk_i32 s41, 128
    """)
    for e in range(11):
        a(f"""
        v_subrev_u32 v{T+1}, {e}, v{T}
        v_cvt_f32_u32 v{T+2}, v{T+1}
        v_cvt_pk_bf16_f32 v{T+2}, v{T+2}, v{T+2}
        v_lshrrev_b32 v{T+2}, 16, v{T+2}
        v_subrev_u32 v{T+2}, 0x4280, v{T+2}
        v_med3_i32 v{T+2}, v{T+2}, v{T+1}, s41
        v_lshl_add_u32 v{GA+e}, v{T+2}, 1, v{T+3}
        """)

def anchor(a, o, p, AR, PH, t):
    a(f"""
    v_mul_f32 v{t}, {hex(f2u(float(p)))}, v{AR}
    v_mul_f32 v{t+1}, {hex(f2u(float(p)))}, v{PH}
    v_exp_f32 v{t}, v{t}
    v_fract_f32 v{t+1}, v{t+1}
    v_cos_f32 v{o}, v{t+1}
    v_sin_f32 v{o+1}, v{t+1}
    s_nop 0
    v_pk_mul_f32 v[{o}:{o+1}], v[{o}:{o+1}], v[{t}:{t+1}] op_sel_hi:[1,0]
    """)

def kgen_values(a, L, V, W):
    AR, PH, T, EA, PK = W, W+1, W+2, W+4, W+5
    C2 = W+6
    a(f"""
    v_lshlrev_b32 v{V}, 16, v{V}
    v_lshlrev_b32 v{V+1}, 16, v{V+1}
    v_lshlrev_b32 v{V+2}, 16, v{V+2}
    v_lshlrev_b32 v{V+3}, 16, v{V+3}
    v_lshlrev_b32 v{V+4}, 16, v{V+4}
    v_lshlrev_b32 v{V+5}, 16, v{V+5}
    v_mul_f32 v{V}, {hex(LOG2E)}, v{V}
    v_mul_f32 v{V+4}, {hex(LOG2E)}, v{V+4}
    v_exp_f32 v{V}, v{V}
    v_exp_f32 v{V+4}, v{V+4}
    s_nop 0
    v_cvt_pk_bf16_f32 v{T}, v{V+4}, v{V}
    v_lshlrev_b32 v{V+4}, 16, v{T}              ; dt
    v_and_b32 v{V}, 0xffff0000, v{T}
    v_mul_f32 v{AR}, v{V}, v{V+4}               ; -zr
    v_mul_f32 v{PH}, v{V+1}, v{V+4}             ; zi
    v_mul_f32 v{AR}, {hex(LOG2E ^ 0x80000000)}, v{AR}
    v_mul_f32 v{PH}, {hex(INV2PI)}, v{PH}
    v_mul_f32 v{C2}, v{V+2}, v{V+4}
    v_mul_f32 v{C2+1}, v{V+3}, v{V+4}
    v_add_f32 v{C2}, v{C2}, v{C2}
    v_add_f32 v{C2+1}, v{C2+1}, v{C2+1}
    v_and_b32 v{EA}, 127, v0
    v_lshlrev_b32 v{EA}, 2, v{EA}
    v_bfe_u32 v{T}, v0, 7, 1
    v_mul_u32_u24 v{T}, {ECH}, v{T}
    v_add3_u32 v{EA}, v{EA}, v{T}, s42          ; s42 = L.E
    """)
    def put(row, x, neg=False):
        if neg: a(f"v_cvt_pk_bf16_f32 v{PK}, v{x}, -v{x+1}")
        else: a(f"v_cvt_pk_bf16_f32 v{PK}, v{x}, v{x+1}")
        a(f"ds_write_b32 v{EA}, v{PK} offset:{row*EP}")
    p1 = a.label("part1"); done = a.label("kdone")
    a(f"s_cmp_ge_u32 s{S_WAVE}, 4\ns_cbranch_scc1 {p1}")
    W8, W128, X, Y = W+8, W+10, W+12, W+14
    anchor(a, W8, 8, AR, PH, T)
    anchor(a, W128, 128, AR, PH, T)
    anchor(a, Y, 1024, AR, PH, T)
    put(41, C2, True)
    put(32, Y)
    T2 = W+16
    for b in range(1, 16):
        cmul(a, C2, C2, W8, T)
        if b <= 8: cmul(a, Y, Y, W128, T2)
        put(41+b, C2, True)
        if b <= 8: put(32+b, Y)
    a(f"s_branch {done}\n{p1}:")
    Fk = lambda k: W+8+2*k
    Ca = lambda k: W+24+2*k
    O = W+40
    anchor(a, Fk(1), 1, AR, PH, T)
    anchor(a, Ca(1), 128, AR, PH, T)
    a(f"v_mov_b32 v{PK}, 0x3f80\nds_write_b32 v{EA}, v{PK}")
    put(1, Fk(1)); put(8, Ca(1))
    crow = {2:16, 3:20, 4:24, 5:26, 6:28, 7:30}
    for k in range(2, 8):
        cmul(a, Fk(k), Fk(k-1), Fk(1), T)
        cmul(a, Ca(k), Ca(k-1), Ca(1), O+2)
        put(k, Fk(k)); put(crow[k], Ca(k))
    prods = [(8+k, 1, k) for k in range(1,8)] + [(16+i, 2, 2*i) for i in (1,2,3)] + [(20+i, 3, 2*i) for i in (1,2,3)] + [(crow[c]+1, c, 4) for c in (4,5,6,7)]
    for i, (row, c, k) in enumerate(prods):
        o = O + 4*(i%2)
        cmul(a, o, Ca(c), Fk(k), o+2)
        put(row, o)
    a(f"{done}:")

def kgen_mfma(a, L, W):
    skip = a.label("kskip")
    AD, BD, KA_ = W, W+1, W+2
    ACCK = W+8; FR = W+12
    a(f"""
    s_cmp_ge_u32 s{S_WAVE}, 6
    s_cbranch_scc1 {skip}
    s_cmp_ge_u32 s{S_WAVE}, 3
    s_cselect_b32 s43, 1, 0                 ; ch
    s_mul_i32 s44, s43, 3
    s_sub_u32 s44, s{S_WAVE}, s44           ; tile
    v_and_b32 v{W+6}, 15, v1                ; m / b
    v_lshrrev_b32 v{W+7}, 4, v1             ; g
    v_mul_u32_u24 v{AD}, {EP}, v{W+6}
    v_lshl_add_u32 v{AD}, v{W+7}, 4, v{AD}
    s_mul_i32 s45, s43, {ECH}
    s_add_u32 s45, s45, {L.E}
    s_add_u32 s46, s45, {41*EP}
    v_add_u32 v{BD}, s46, v{AD}
    s_mul_i32 s46, s44, {16*EP}
    s_add_u32 s46, s46, s45
    v_add_u32 v{AD}, s46, v{AD}
    """)
    for ks in range(8):
        a(f"ds_read_b128 {vr(FR+8*ks)}, v{AD} offset:{64*ks}")
        a(f"ds_read_b128 {vr(FR+8*ks+4)}, v{BD} offset:{64*ks}")
    t1 = a.label("kt1"); t2 = a.label("kt2"); td = a.label("ktd")
    b, g = W+6, W+7
    a(f"""
    s_cmp_eq_u32 s44, 1
    s_cbranch_scc1 {t1}
    s_cmp_eq_u32 s44, 2
    s_cbranch_scc1 {t2}
    v_lshrrev_b32 v{KA_}, 1, v{g}
    v_lshlrev_b32 v{KA_}, 7, v{KA_}
    v_and_b32 v{KA_+1}, 1, v{g}
    v_lshl_add_u32 v{KA_}, v{KA_+1}, 2, v{KA_}
    v_lshl_add_u32 v{KA_}, v{b}, 3, v{KA_}
    v_add_u32 v{KA_+1}, 1, v{KA_}
    v_add_u32 v{KA_+2}, 2, v{KA_}
    v_add_u32 v{KA_+3}, 3, v{KA_}
    s_branch {td}
    {t1}:
    v_cmp_gt_u32 vcc, 2, v{g}               ; g<2
    v_lshlrev_b32 v{KA_}, 6, v{g}
    v_add_u32 v{KA_}, 256, v{KA_}
    v_lshlrev_b32 v{KA_+1}, 1, v{b}
    v_lshlrev_b32 v{KA_+2}, 2, v{b}
    v_cndmask_b32 v{KA_+1}, v{KA_+1}, v{KA_+2}, vcc
    v_add_u32 v{KA_}, v{KA_}, v{KA_+1}
    v_mov_b32 v{KA_+3}, 32
    v_cndmask_b32 v{KA_+3}, v{KA_+3}, 2, vcc
    v_add_u32 v{KA_+1}, 1, v{KA_}
    v_add_u32 v{KA_+2}, v{KA_}, v{KA_+3}
    v_add_u32 v{KA_+3}, 1, v{KA_+2}
    s_branch {td}
    {t2}:
    v_lshlrev_b32 v{KA_}, 6, v{g}
    v_add3_u32 v{KA_}, v{KA_}, v{b}, s47    ; s47 = 512
    v_add_u32 v{KA_+1}, 16, v{KA_}
    v_add_u32 v{KA_+2}, 32, v{KA_}
    v_add_u32 v{KA_+3}, 48, v{KA_}
    {td}:
    s_mul_i32 s45, s43, 1536
    s_add_u32 s45, s45, {L.KT}
    """)
    for r in range(4): a(f"v_lshl_add_u32 v{KA_+r}, v{KA_+r}, 1, s45")
    for ks in range(8):
        a(f"s_waitcnt lgkmcnt({14-2*ks})")
        a(f"v_mfma_f32_16x16x32_bf16 {vr(ACCK)}, {vr(FR+8*ks)}, {vr(FR+8*ks+4)}, {vr(ACCK) if ks else 0}")
    a(f"""
    s_nop 7
    v_cvt_pk_bf16_f32 v{ACCK}, v{ACCK}, v{ACCK+1}
    v_cvt_pk_bf16_f32 v{ACCK+1}, v{ACCK+2}, v{ACCK+3}
    ds_write_b16 v{KA_}, v{ACCK}
    ds_write_b16_d16_hi v{KA_+1}, v{ACCK}
    ds_write_b16 v{KA_+2}, v{ACCK+1}
    ds_write_b16_d16_hi v{KA_+3}, v{ACCK+1}
    {skip}:
    """)

def expand(a, L, GA, W):
    P = W; AD = W+12; T = W+13; O = W+20
    for e in range(11):
        a(f"ds_read_u16 v{P+e}, v{GA+e}")
    a(f"""
    v_and_b32 v{AD}, 255, v0
    v_lshlrev_b32 v{AD}, 4, v{AD}
    v_lshrrev_b32 v{T}, 8, v0
    v_mul_u32_u24 v{T+1}, {4*PC}, v{T}
    v_add3_u32 v{AD}, v{AD}, v{T+1}, s48        ; s48 = L.C
    v_bfe_u32 v{T+2}, v0, 2, 2                  ; s
    v_and_b32 v{T+3}, 3, v0                     ; i
    v_sub_u32 v{T+4}, v{T+2}, v{T+3}            ; s-i
    v_mul_u32_u24 v{T}, 1536, v{T}
    v_lshl_add_u32 v{T}, v{T+4}, 1, v{T}
    v_add_u32 v{T}, {L.KT}, v{T}
    v_mul_u32_u24 v{T+2}, {PC}, v{T+2}
    v_lshl_add_u32 v{T+2}, v{T+3}, 1, v{T+2}
    v_add3_u32 v{T+2}, v{T+2}, v{T+1}, s48
    v_and_b32 v{T+3}, 0xf0, v0
    v_ashrrev_i32 v{T+4}, 31, v{T+4}
    v_or_b32 v{T+3}, v{T+3}, v{T+4}
    v_cmp_eq_u32 vcc, 0, v{T+3}
    s_and_saveexec_b64 s[44:45], vcc
    ds_read_u16 v{T+5}, v{T}
    s_mov_b64 exec, -1
    s_waitcnt lgkmcnt(0)
    """)
    for s_ in range(4):
        for k in range(4):
            e = 3 - s_ + 2*k
            a(f"v_lshl_or_b32 v{O+4*s_+k}, v{P+e+1}, 16, v{P+e}")
        a(f"ds_write_b128 v{AD}, {vr(O+4*s_)} offset:{s_*PC}")
    a(f"""
    s_mov_b64 exec, vcc
    ds_write_b16 v{T+2}, v{T+5} offset:4096
    s_mov_b64 exec, -1
    """)

def zero_pads(a, L, T):
    a(f"""
    v_mov_b32 v{T}, 0
    v_mov_b32 v{T+1}, 0
    v_mov_b32 v{T+2}, 0
    v_mov_b32 v{T+3}, 0
    v_lshrrev_b32 v{T+4}, 5, v0                 ; 0..15
    v_and_b32 v{T+5}, 31, v0
    v_mul_u32_u24 v{T+4}, {UP}, v{T+4}
    v_lshl_add_u32 v{T+4}, v{T+5}, 4, v{T+4}
    v_cmp_gt_u32 vcc, 30, v{T+5}
    v_cmp_gt_u32 s[44:45], 64, v0
    s_and_b64 exec, vcc, s[44:45]
    ds_write_b128 v{T+4}, {vr(T)} offset:{L.U}
    s_mov_b64 exec, -1
    v_lshrrev_b32 v{T+4}, 1, v0
    v_mul_u32_u24 v{T+4}, {PC}, v{T+4}
    v_and_b32 v{T+5}, 1, v0
    v_lshl_add_u32 v{T+4}, v{T+5}, 4, v{T+4}
    v_add_u32 v{T+4}, {L.C+4096}, v{T+4}
    v_cmp_gt_u32 vcc, 16, v0
    s_mov_b64 exec, vcc
    ds_write_b128 v{T+4}, {vr(T)}
    s_mov_b64 exec, -1
    """)

DEBUG = False
GROUPS = ((7,4,3,0),(6,5,2,1))
def conv_main(a, L, sc, W, VD, st=""):
    VA, VB, VU, VR, VS = W, W+1, W+2, W+3, W+4
    T = W+5
    AC = W+8; FR = W+24
    a(f"""
    s_lshr_b32 s43, s{S_WAVE}, 2                ; ch
    s_bfe_u32 s44, s{S_WAVE}, 0x10001           ; hc
    v_and_b32 v{T}, 15, v1                      ; m / n
    v_lshrrev_b32 v{T+1}, 4, v1                 ; g
    v_and_b32 v{T+2}, 3, v1                     ; s
    v_mul_u32_u24 v{VA}, {PC}, v{T+2}
    v_lshl_add_u32 v{VA}, v{T+1}, 4, v{VA}
    v_and_b32 v{T+2}, 12, v1
    v_lshlrev_b32 v{T+2}, 1, v{T+2}
    v_sub_u32 v{VA}, v{VA}, v{T+2}
    s_mul_i32 s45, s43, {4*PC}
    s_lshl_b32 s46, s44, 8                      ; 2*128*hc
    s_sub_u32 s45, s45, s46
    s_add_u32 s45, s45, {L.C + 2*(2048-16-1792)}
    v_add_u32 v{VA}, s45, v{VA}
    v_lshlrev_b32 v{VU}, 5, v{T}
    v_lshl_add_u32 v{VB}, v{T+1}, 4, v{VU}
    v_lshl_add_u32 v{VU}, v{T+1}, 3, v{VU}      ; 2*(16n+4g)
    v_mov_b32 v{VS}, v{VU}
    s_mul_i32 s45, s43, {UP}
    s_add_u32 s47, s45, {L.U + 480}
    v_add_u32 v{VU}, s47, v{VU}
    s_sub_u32 s45, s45, s46
    s_add_u32 s45, s45, {L.U + 480 - 32}
    v_add_u32 v{VB}, s45, v{VB}
    s_xor_b32 s45, s{S_WAVE}, 2
    s_lshl_b32 s45, s45, 11
    s_add_u32 s45, s45, {L.RED}
    v_lshl_add_u32 v{VR}, v1, 4, s45
    s_lshl_b32 s49, s{sc}, 13
    s_lshl_b32 s46, s43, 12
    s_add_u32 s49, s49, s46
    s_add_u32 s49, s49, {AT_OFF}
    """)
    og1 = a.label("og1"); fin = a.label("cfin")
    a(f"s_bitcmp1_b32 s{S_WAVE}, 0\ns_cbranch_scc1 {og1}")
    for og in range(2):
        G = GROUPS[og]; tm = G[0]
        A = lambda b, al: FR + 64*b + 4*al
        B = lambda b, be: FR + 64*b + 32 + 4*be
        def reads(b, cls):
            o = []
            for k in range(tm+1):
                al, be = k, tm-k
                o.append(f"ds_read_b64 v[{A(b,al)}:{A(b,al)+1}], v{VA} offset:{512*(7-al) + 192 - 64*cls}")
                o.append(f"ds_read_b64 v[{A(b,al)+2}:{A(b,al)+3}], v{VA} offset:{512*(7-al) + 192 - 64*cls + 8}")
                o.append(f"ds_read_b128 {vr(B(b,be))}, v{VB} offset:{512*be + 192 - 64*cls}")
            return o
        a(f"v_subrev_u32 v{VA}, 192, v{VA}\nv_subrev_u32 v{VB}, 192, v{VB}")
        for x in reads(0, 0): a(x)
        for cls in range(4):
            b = cls & 1
            nxt = reads(1-b, cls+1) if cls < 3 else []
            a("s_waitcnt lgkmcnt(0)")
            ms = []
            for k in range(tm+1):
                for ti, tau in enumerate(G):
                    if k <= tau:
                        first = (cls == 0 and k == 0)
                        ms.append(f"v_mfma_f32_16x16x32_bf16 {vr(AC+4*ti)}, {vr(A(b,k))}, {vr(B(b,tau-k))}, {0 if first else vr(AC+4*ti)}")
            for m in ms:
                a(m)
                for _ in range(2):
                    if nxt: a(nxt.pop(0))
            assert not nxt
        h1 = a.label("h1"); hd = a.label("hd")
        a(f"s_nop 7\ns_cmp_eq_u32 s44, 1\ns_cbranch_scc1 {h1}")
        for hc in range(2):
            keep = (0,1) if hc == 0 else (2,3)
            send = (2,3) if hc == 0 else (0,1)
            for k, ti in enumerate(send):
                a(f"ds_write_b128 v{VR}, {vr(AC+4*ti)} offset:{1024*k}")
            for k, ti in enumerate(keep):
                a(f"ds_read_b64 v[{FR+16+2*k}:{FR+17+2*k}], v{VU} offset:{512*G[ti]}")
            a(f"v_xor_b32 v{VR}, 0x1000, v{VR}") if False else None
            a("s_waitcnt lgkmcnt(0)\ns_barrier")
            a(f"s_lshl_b32 s45, s{S_WAVE}, 11\ns_add_u32 s45, s45, {L.RED}\nv_lshl_add_u32 v{VR}, v1, 4, s45")
            for k in range(2): a(f"ds_read_b128 {vr(FR+4*k)}, v{VR} offset:{1024*k}")
            for k in range(2):
                for j in range(2):
                    a(f"v_lshlrev_b32 v{FR+24+4*k+2*j}, 16, v{FR+16+2*k+j}")
                    a(f"v_and_b32 v{FR+24+4*k+2*j+1}, 0xffff0000, v{FR+16+2*k+j}")
            for k, ti in enumerate(keep):
                for r in range(4): a(f"v_fmac_f32 v{AC+4*ti+r}, v{FR+24+4*k+r}, v{VD}")
            a("s_waitcnt lgkmcnt(0)")
            for k, ti in enumerate(keep):
                for r in range(4): a(f"v_add_f32 v{AC+4*ti+r}, v{AC+4*ti+r}, v{FR+4*k+r}")
                a(f"v_cvt_pk_bf16_f32 v{FR+8+2*k}, v{AC+4*ti}, v{AC+4*ti+1}")
                a(f"v_cvt_pk_bf16_f32 v{FR+9+2*k}, v{AC+4*ti+2}, v{AC+4*ti+3}")
                a(f"buffer_store_dwordx2 v[{FR+8+2*k}:{FR+9+2*k}], v{VS}, {sr(S_WS)}, s49 offen offset:{512*G[ti]} {st}")
            if hc == 0: a(f"s_branch {fin}\n{h1}:")
        if og == 0: a(f"s_branch {fin}\n{og1}:")
    a(f"{fin}:")

def conv_phase(a, L, sc, base_v=8, ld="", st=""):
    V = base_v
    GA = V+12
    W = V+24
    conv_loads(a, sc, V)
    conv_uload(a, sc, V, ld)
    a(f"s_mov_b32 s42, {L.E}\ns_movk_i32 s47, 512\ns_mov_b32 s48, {L.C}")
    zero_pads(a, L, W)
    gather_addrs(a, L, GA, W)
    a("s_waitcnt vmcnt(1)")
    stamp(a, 1)
    kgen_values(a, L, V, W)
    a(f"""
    v_lshrrev_b32 v{W}, 8, v0
    v_mul_u32_u24 v{W}, {UP}, v{W}
    v_and_b32 v{W+1}, 255, v0
    v_lshl_add_u32 v{W}, v{W+1}, 4, v{W}
    s_waitcnt vmcnt(0)
    ds_write_b128 v{W}, {vr(V+6)} offset:{L.U+480}
    s_waitcnt lgkmcnt(0)
    s_barrier
    """)
    kgen_mfma(a, L, W)
    a("s_waitcnt lgkmcnt(0)\ns_barrier")
    stamp(a, 2)
    expand(a, L, GA, W)
    a("s_waitcnt lgkmcnt(0)\ns_barrier")
    stamp(a, 3)
    if DEBUG: dump_lds(a, 106496, 3)
    conv_main(a, L, sc, W, V+5, st)

def k_conv():
    a = Asm("C")
    prologue(a, 256, "C_end")
    L = CL(0)
    a("s_mov_b32 s5, s2")
    conv_phase(a, L, 5)
    stamp(a, 4)
    stamp_flush(a, 2)
    a("C_end:\ns_endpgm")
    return dict(name="conv_kernel", body=a.text(), grid=256, block=512, lds=110592, vgpr=256, sgpr=102)

if __name__ == "__main__":
    import roles
    from k_aux import k_aux
    DEBUG = True
    open("../t_convd.s","w").write(make_file([k_aux(), k_conv()]))
    DEBUG = False
    roles.STAMPS = "s_memrealtime"
    open("../t_conv.s","w").write(make_file([k_aux(), k_conv()]))
    roles.STAMPS = "s_memtime"
    open("../t_convc.s","w").write(make_file([k_aux(), k_conv()]))
```

```python
from roles import *
WR, XR = 0, 98304
SLOT = 16384
AUXL = 4*SLOT

def g1_map(a):
    a(f"""
    s_and_b32 s40, s2, 7
    s_lshr_b32 s41, s2, 3
    s_sub_u32 s42, s41, 4                   ; idx'
    s_mul_i32 s43, s42, 37
    s_lshr_b32 s43, s43, 8                  ; idx'/7
    s_mul_i32 s44, s43, 7
    s_sub_u32 s44, s42, s44                 ; idx'%7
    s_lshr_b32 s45, s40, 1
    s_lshl_b32 s6, s45, 2
    s_add_u32 s6, s6, s43                   ; i
    s_and_b32 s46, s40, 1
    s_mul_i32 s7, s46, 7
    s_add_u32 s7, s7, s44                   ; j
    s_mov_b32 s60, s40
    s_mov_b32 s5, s2                        ; aux q = b (b<32)
    s_cmp_lt_u32 s2, 32
    """)

def g1_producer(a, ld="", wait_aux=None):
    a(f"""
    s_sub_u32 s40, s{S_WAVE}, 4
    v_lshrrev_b32 v2, 4, v1                 ; r
    v_bfe_u32 v3, v1, 1, 3
    s_and_b32 s41, s40, 1
    s_lshl_b32 s41, s41, 2
    v_xor_b32 v3, v3, v2
    v_xor_b32 v3, s41, v3                   ; pos ^ s
    v_and_b32 v4, 1, v1
    v_lshl_or_b32 v3, v3, 1, v4             ; chunk
    v_mul_u32_u24 v4, 3584, v2
    v_lshl_add_u32 v8, v3, 4, v4            ; vW
    v_and_b32 v3, 7, v1
    v_xor_b32 v3, v3, v2                    ; pos ^ (i>>4)
    v_lshrrev_b32 v4, 3, v1
    v_lshlrev_b32 v4, 10, v4
    v_lshl_add_u32 v9, v3, 4, v4
    v_xor_b32 v10, 64, v9
    v_add_u32 v10, 0x2000, v10
    s_mul_i32 s42, s40, {8*3584}
    s_lshl_b32 s43, s7, 8
    s_add_u32 s42, s42, s43
    s_lshl_b32 s43, s6, 17
    s_lshl_b32 s44, s40, 14
    s_add_u32 s43, s43, s44
    s_lshl_b32 s44, s40, 12
    s_lshl_b32 s45, s40, 11
    s_add_u32 s45, s45, {XR}
    s_lshl_b32 s46, s60, 1
    """)
    def xhalf(h):
        sig, hh = h >> 1, h & 1
        a(f"""
        s_add_u32 s48, s60, {sig}
        s_and_b32 s48, s48, 7
        s_lshl_b32 s48, s48, 7
        s_add_u32 s48, s48, s43
        """)
        if hh: a(f"s_add_u32 s48, s48, 0x10000")
        a(f"""
        s_add_u32 m0, s45, {(sig&3)*SLOT + hh*8192}
        s_nop 0
        buffer_load_dwordx4 v9, {sr(S_X)}, s48 offen {ld} lds
        s_add_u32 m0, s45, {(sig&3)*SLOT + hh*8192 + 1024}
        s_nop 0
        buffer_load_dwordx4 v10, {sr(S_X)}, s48 offen {ld} lds
        """)
    def group(g):
        a(f"""
        s_mul_i32 s47, s46, {32*3584}
        s_add_u32 s47, s47, s42
        s_add_u32 s49, s47, {4*3584}
        s_add_u32 s46, s46, 1
        s_and_b32 s46, s46, 15
        """)
        for e in range(2):
            for mat in range(2):
                a(f"""
                s_add_u32 m0, s44, {WR + (g%6)*SLOT + (e*2+mat)*1024}
                s_nop 0
                buffer_load_dwordx4 v8, {sr(S_WU if mat else S_WG)}, s{49 if e else 47} offen {ld} lds
                """)
        if g < 15: xhalf(g+1)
    stamp(a, 1)
    xhalf(0)
    group(0)
    stamp(a, 2)
    for g in range(1,6): group(g)
    stamp(a, 3)
    a("s_waitcnt vmcnt(30)")
    stamp(a, 4)
    a("s_barrier")
    for s in range(1, 11):
        a("s_waitcnt vmcnt(24)\ns_barrier")
        group(s+5)
    a("s_waitcnt vmcnt(22)\ns_barrier")
    a("s_waitcnt vmcnt(16)\ns_barrier")
    a("s_waitcnt vmcnt(10)\ns_barrier")
    a("s_waitcnt vmcnt(4)\ns_barrier")
    l = a.label("noaux")
    a(f"s_cmp_ge_u32 s40, 2\ns_cbranch_scc1 {l}")
    if wait_aux: wait_aux(a)
    a(f"""
    v_lshlrev_b32 v2, 4, v1
    v_lshrrev_b32 v3, 5, v1
    v_mul_u32_u24 v3, {7168-512}, v3
    v_add_u32 v3, v3, v2
    s_lshl_b32 s47, s7, 9
    s_add_u32 s47, s47, {CS_OFF}
    s_lshl_b32 s48, s6, 10
    s_add_u32 s48, s48, {ST_OFF}
    s_cmp_eq_u32 s40, 0
    s_cselect_b32 s47, s47, s48
    s_cselect_b64 vcc, -1, 0
    v_cndmask_b32 v3, v2, v3, vcc
    s_lshl_b32 s48, s40, 10
    s_add_u32 s48, s48, {AUXL}
    v_add_u32 v2, s48, v2
    buffer_load_dwordx4 v[12:15], v3, {sr(S_WS)}, s47 offen sc1
    s_waitcnt vmcnt(1)
    s_barrier
    s_waitcnt vmcnt(0)
    ds_write_b128 v2, v[12:15]
    s_waitcnt lgkmcnt(0)
    s_barrier
    s_branch {l}_done
    {l}:
    s_waitcnt vmcnt(0)
    s_barrier
    s_barrier
    {l}_done:
    """)

ACC = 128
def acc(t, mat, nt): return ACC + ((nt*4+t)*2+mat)*4
def FA(b, t, mat): return 32 + 48*b + (t*2+mat)*4
def FB(b, nt): return 32 + 48*b + 32 + 4*nt

def g1_consumer(a, st=""):
    VA, VB = 8, 12
    a(f"""
    s_and_b32 s40, s{S_WAVE}, 1             ; mh
    s_lshr_b32 s41, s{S_WAVE}, 1            ; nh
    v_lshrrev_b32 v2, 4, v1                 ; g
    v_bfe_u32 v3, v1, 2, 2                  ; r
    v_and_b32 v4, 3, v1                     ; c'
    v_and_b32 v5, 1, v2
    v_lshl_or_b32 v5, v5, 2, v3             ; s
    s_lshl_b32 s42, s40, 2
    v_xor_b32 v5, s42, v5                   ; (4mh)^s
    v_lshlrev_b32 v5, 5, v5
    v_lshl_add_u32 v5, v4, 3, v5
    v_lshl_add_u32 v5, v3, 8, v5
    v_lshl_add_u32 v{VA}, v2, 12, v5
    v_xor_b32 v{VA+1}, 32, v{VA}
    v_xor_b32 v{VA+2}, 64, v{VA}
    v_xor_b32 v{VA+3}, 96, v{VA}
    v_and_b32 v6, 15, v1                    ; n
    v_lshrrev_b32 v7, 1, v6
    v_xor_b32 v7, v7, v2                    ; g ^ (n>>1)
    v_lshlrev_b32 v7, 4, v7
    v_lshl_add_u32 v7, v6, 7, v7
    s_lshl_b32 s42, s41, 13
    s_add_u32 s42, s42, {XR}
    v_add_u32 v{VB}, s42, v7
    v_xor_b32 v{VB+1}, 64, v{VB}
    s_lshl_b32 s42, s40, 8
    s_add_u32 s42, s42, {AUXL}
    v_lshl_add_u32 v14, v2, 4, s42          ; vCS
    s_lshl_b32 s42, s41, 9
    s_add_u32 s42, s42, {AUXL+1024}
    v_lshl_add_u32 v15, v6, 3, s42          ; vST
    v_lshlrev_b32 v16, 4, v1
    s_lshl_b32 s42, s6, 1
    s_add_u32 s42, s42, s41
    s_mul_i32 s42, s42, 56
    s_lshl_b32 s43, s7, 2
    s_add_u32 s42, s42, s43
    s_lshl_b32 s43, s40, 1
    s_add_u32 s42, s42, s43
    s_lshl_b32 s50, s42, 12
    s_add_u32 s50, s50, {H_OFF}
    s_add_u32 s51, s50, 4096
    s_mov_b32 s44, 0
    s_mov_b32 s45, 0
    s_mov_b32 s52, {SLOT}
    """)
    for r in range(ACC, 256): a(f"v_mov_b32 v{r}, 0")
    def reads(b, sp):
        out = []
        for nt in range(4):
            out.append(f"ds_read_b128 {vr(FB(b,nt))}, v{VB+sp} offset:{nt*2048}")
        for t in range(4):
            for mat in range(2):
                for rho in range(2):
                    d = FA(b,t,mat)+2*rho
                    out.append(f"ds_read_b64_tr_b16 v[{d}:{d+1}], v{VA+t} offset:{rho*2048+mat*1024}")
        return out
    def advW():
        return [f"s_add_u32 s44, s44, 1", f"s_cmp_eq_u32 s44, 6", f"s_cselect_b32 s46, {-5*SLOT & 0xffffffff}, s52", f"s_cselect_b32 s44, 0, s44"] + \
               [f"v_add_u32 v{VA+t}, s46, v{VA+t}" for t in range(4)]
    def advX():
        return [f"s_add_u32 s45, s45, 1", f"s_cmp_eq_u32 s45, 4", f"s_cselect_b32 s47, {-3*SLOT & 0xffffffff}, s52", f"s_cselect_b32 s45, 0, s45"] + \
               [f"v_add_u32 v{VB+k}, s47, v{VB+k}" for k in range(2)]
    def mfma(b, t, mat, nt):
        c = acc(t,mat,nt)
        return f"v_mfma_f32_16x16x32_bf16 {vr(c)}, {vr(FA(b,t,mat))}, {vr(FB(b,nt))}, {vr(c)}"
    def stage(b, rd, late, barrier=True):
        ms = [mfma(b,t,mat,nt) for t in range(4) for mat in range(2) for nt in range(4)]
        late = list(late)
        for i, m in enumerate(ms):
            a(m)
            if i < len(rd): a(rd[i])
            elif i < 27 and late:
                for _ in range(2):
                    if late: a(late.pop(0))
            if i == 27 and barrier: a("s_waitcnt lgkmcnt(0)\ns_barrier")
        assert not late
    a("s_barrier")
    stamp(a, 1)
    for r in reads(0, 0): a(r)
    for x in advW(): a(x)
    a("s_waitcnt lgkmcnt(0)\ns_barrier")
    a("s_mov_b32 s48, 7")
    lp = a.label("g1loop")
    a(f"{lp}:")
    stage(0, reads(1, 1), advW() + advX())
    stage(1, reads(0, 0), advW())
    a(f"s_sub_u32 s48, s48, 1\ns_cmp_lg_u32 s48, 0\ns_cbranch_scc1 {lp}")
    stage(0, reads(1, 1), [])
    stamp(a, 2)
    rd = []
    for t in range(4):
        for mat in range(2):
            rd.append(f"ds_read_b128 {vr(FA(0,t,mat))}, v14 offset:{mat*512+t*64}")
    for nt in range(4):
        rd.append(f"ds_read_b64 v[{FB(0,0)+2*nt}:{FB(0,0)+2*nt+1}], v15 offset:{nt*128}")
    def epi(ksl, nt):
        o = []
        stt = FB(0,0)+2*nt
        for t in (2*ksl, 2*ksl+1):
            for mat in range(2):
                for hf in range(2):
                    c = acc(t,mat,nt)+2*hf; cs = FA(0,t,mat)+2*hf
                    o.append(f"v_pk_fma_f32 v[{c}:{c+1}], v[{cs}:{cs+1}], v[{stt}:{stt+1}], v[{c}:{c+1}] op_sel_hi:[1,0,1]")
        for t in (2*ksl, 2*ksl+1):
            for hf in range(2):
                g = acc(t,0,nt)+2*hf; u = acc(t,1,nt)+2*hf
                o.append(f"v_pk_mul_f32 v[{g}:{g+1}], v[{g}:{g+1}], v[{u}:{u+1}]")
        for t in (2*ksl, 2*ksl+1):
            for hf in range(2):
                g = acc(t,0,nt)+2*hf
                o.append(f"v_pk_mul_f32 v[{g}:{g+1}], v[{g}:{g+1}], v[{stt}:{stt+1}] op_sel:[0,1] op_sel_hi:[1,1]")
        d = acc(2*ksl,1,nt)
        k = 0
        for t in (2*ksl, 2*ksl+1):
            for hf in range(2):
                g = acc(t,0,nt)+2*hf
                o.append(f"v_cvt_pk_bf16_f32 v{d+k}, v{g}, v{g+1}"); k += 1
        o.append(f"buffer_store_dwordx4 {vr(d)}, v16, {sr(S_WS)}, s{50+ksl} offen offset:{nt*1024} {st}")
        return o
    groups = [(ksl, nt) for ksl in range(2) for nt in range(4)]
    pend = []
    for gi, (ksl, nt) in enumerate(groups):
        if gi == 3: a("s_waitcnt lgkmcnt(0)")
        if gi >= 3: pend += epi(*groups[gi-3])
        for t in (2*ksl, 2*ksl+1):
            for mat in range(2):
                a(mfma(1, t, mat, nt))
                if rd: a(rd.pop(0))
                else:
                    for _ in range(2):
                        if pend: a(pend.pop(0))
    for gi in (5,6,7): pend += epi(*groups[gi])
    for x in pend: a(x)

def k_gemm1(with_aux=False):
    a = Asm("G")
    prologue(a, 256, "G_end")
    g1_map(a)
    if with_aux:
        a("s_cbranch_scc0 G_gemm")
        aux_role(a, 5)
        a("s_endpgm\nG_gemm:")
    else:
        a("s_cbranch_scc1 G_end")
    a(f"s_cmp_ge_u32 s{S_WAVE}, 4\ns_cbranch_scc1 G_prod")
    g1_consumer(a)
    stamp(a, 3)
    a("s_waitcnt vmcnt(0)")
    stamp(a, 4)
    stamp_flush(a, 1)
    a("s_endpgm\nG_prod:")
    g1_producer(a)
    stamp_flush(a, 1)
    a("G_end:\ns_endpgm")
    return dict(name="gemm1_kernel", body=a.text(), grid=256, block=512, lds=163840, vgpr=256, sgpr=102)

if __name__ == "__main__":
    import roles, sys
    from k_aux import k_aux
    roles.STAMPS = "s_memrealtime"
    open("../t_g1.s","w").write(make_file([k_aux(), k_gemm1()]))
    roles.STAMPS = "s_memtime"
    open("../t_g1c.s","w").write(make_file([k_aux(), k_gemm1()]))
```

```python
from roles import *
PP = 272
def g2_map(a):
    a(f"""
    s_and_b32 s40, s2, 7
    s_lshr_b32 s41, s2, 3
    s_lshr_b32 s42, s40, 1
    s_lshl_b32 s6, s42, 3
    s_lshr_b32 s42, s41, 2
    s_add_u32 s6, s6, s42
    s_and_b32 s42, s40, 1
    s_lshl_b32 s7, s42, 2
    s_and_b32 s42, s41, 3
    s_add_u32 s7, s7, s42
    """)

def gemm2_v1(a, ld=""):
    VW, VH, VA, VP, VX, VO, VAT = 2, 3, 4, 8, 12, 13, 14
    WF = 32; AC = 96; HF = 128; ATF = 240; SEL = 244; XF = 252
    T = 16
    a(f"""
    s_lshr_b32 s43, s{S_WAVE}, 1                ; kq
    s_and_b32 s44, s{S_WAVE}, 1                 ; lh
    v_lshrrev_b32 v{T}, 4, v1                   ; g  (= i>>4)
    v_bfe_u32 v{T+1}, v1, 1, 2                  ; upos
    v_xor_b32 v{T+1}, v{T+1}, v{T}
    v_and_b32 v{T+2}, 1, v1
    v_lshl_or_b32 v{T+1}, v{T+1}, 1, v{T+2}
    v_lshrrev_b32 v{T+2}, 3, v1
    v_lshlrev_b32 v{T+2}, 10, v{T+2}
    v_lshl_add_u32 v{VW}, v{T+1}, 4, v{T+2}
    v_lshlrev_b32 v{VH}, 4, v1
    s_mul_i32 s45, s43, {14*32*1024}
    s_lshl_b32 s46, s44, 14
    s_add_u32 s45, s45, s46
    s_lshl_b32 s46, s7, 7
    s_add_u32 s45, s45, s46
    s_mul_i32 s46, s43, {10*4096}
    s_lshl_b32 s47, s44, 11
    s_add_u32 s46, s46, s47
    s_mul_i32 s47, s6, 56
    s_mul_i32 s48, s43, 14
    s_add_u32 s47, s47, s48
    s_lshl_b32 s47, s47, 12
    s_lshl_b32 s48, s44, 11
    s_add_u32 s47, s47, s48
    s_add_u32 s47, s47, {H_OFF}
    """)
    def dma(step, slot):
        for e in range(2):
            a(f"""
            s_add_u32 m0, s46, {slot*4096 + e*1024}
            s_add_u32 s49, s45, {step*32768 + e*8192}
            buffer_load_dwordx4 v{VW}, {sr(S_WD)}, s49 offen lds
            """)
    def hload(step):
        a(f"s_add_u32 s49, s47, {step*4096}")
        for j in range(2):
            a(f"buffer_load_dwordx4 {vr(HF+8*step+4*j)}, v{VH}, {sr(S_WS)}, s49 offen offset:{j*1024} {ld}")
    for s in range(4): dma(s, s)
    for s in range(4): hload(s)
    for s in range(4, 10): dma(s, s)
    for s in range(4, 14): hload(s)
    a(f"""
    v_and_b32 v{T+1}, 15, v1                    ; n / m
    v_lshlrev_b32 v{VAT}, 12, v{T+1}
    v_lshl_add_u32 v{VAT}, v{T}, 4, v{VAT}
    s_lshl_b32 s49, s7, 2
    s_add_u32 s49, s49, s43
    s_lshl_b32 s49, s49, 16                     ; (64C+16kq)*4096
    s_lshl_b32 s50, s6, 7
    s_add_u32 s49, s49, s50
    s_lshl_b32 s50, s44, 6
    s_add_u32 s49, s49, s50
    s_add_u32 s49, s49, {AT_OFF}
    buffer_load_dwordx4 {vr(ATF)}, v{VAT}, {sr(S_WS)}, s49 offen {ld}
    v_lshrrev_b32 v{T+2}, 3, v0
    v_lshlrev_b32 v{VX}, 10, v{T+2}
    v_and_b32 v{T+3}, 7, v0
    v_lshl_add_u32 v{VX}, v{T+3}, 4, v{VX}
    s_lshl_b32 s51, s6, 16
    s_lshl_b32 s50, s7, 7
    s_add_u32 s51, s51, s50
    buffer_load_dwordx4 {vr(XF)}, v{VX}, {sr(S_X)}, s51 offen
    v_mul_u32_u24 v{VO}, {PP}, v{T+2}
    v_lshl_add_u32 v{VO}, v{T+3}, 5, v{VO}
    v_bfe_u32 v{T+2}, v1, 2, 2                  ; r
    v_and_b32 v{T+3}, 1, v{T}
    v_lshrrev_b32 v{T+4}, 1, v{T+2}
    v_lshl_or_b32 v{T+3}, v{T+3}, 1, v{T+4}     ; sigma
    v_xor_b32 v{T+3}, s43, v{T+3}
    v_lshlrev_b32 v{T+3}, 5, v{T+3}
    v_and_b32 v{T+4}, 3, v1
    v_lshl_add_u32 v{T+3}, v{T+4}, 3, v{T+3}
    v_lshrrev_b32 v{T+4}, 2, v1                 ; 4g+r
    v_lshl_add_u32 v{T+3}, v{T+4}, 7, v{T+3}
    s_mul_i32 s50, s43, {10*4096}
    v_add_u32 v{VA}, s50, v{T+3}
    v_xor_b32 v{VA+1}, 32, v{VA}
    v_xor_b32 v{VA+2}, 64, v{VA}
    v_xor_b32 v{VA+3}, 96, v{VA}
    v_mul_u32_u24 v{T+3}, {PP}, v{T+1}
    v_lshl_add_u32 v{T+3}, v{T}, 4, v{T+3}
    s_mul_i32 s50, s{S_WAVE}, {32*PP}
    """)
    for tp in range(4):
        a(f"s_xor_b32 s52, s43, {tp}\ns_lshl_b32 s52, s52, 6\ns_add_u32 s52, s52, s50\nv_add_u32 v{VP+tp}, s52, v{T+3}")
    a(f"""
    v_lshlrev_b32 v{T+3}, 3, v{T}
    v_sub_u32 v{T+3}, v{T+1}, v{T+3}            ; n-8g
    v_and_b32 v{T+4}, 1, v1
    v_lshlrev_b32 v{T+4}, 4, v{T+4}
    v_mov_b32 v{T+5}, 0x3f80
    v_lshlrev_b32 v{T+5}, v{T+4}, v{T+5}
    v_ashrrev_i32 v{T+3}, 1, v{T+3}
    """)
    for j in range(2):
        for k in range(4):
            a(f"v_cmp_eq_i32 vcc, {k-8*j}, v{T+3}\ns_nop 1\nv_cndmask_b32 v{SEL+4*j+k}, 0, v{T+5}, vcc")
    def wreads(buf, slot):
        return [f"ds_read_b64_tr_b16 v[{WF+16*buf+4*t+2*rho}:{WF+16*buf+4*t+2*rho+1}], v{VA+t} offset:{slot*4096+rho*2048}" for t in range(4) for rho in range(2)]
    def mfmas(buf, step, first=False):
        return [f"v_mfma_f32_16x16x32_bf16 {vr(AC+8*t+4*j)}, {vr(WF+16*buf+4*t)}, {vr(HF+8*step+4*j)}, {0 if first else vr(AC+8*t+4*j)}" for t in range(4) for j in range(2)]
    a("s_waitcnt vmcnt(42)\ns_barrier")
    stamp(a, 1)
    for s in range(4):
        for x in wreads(s, s): a(x)
    a("s_waitcnt lgkmcnt(0)\ns_barrier")
    for s in range(10, 14): dma(s, s-10)
    for s in range(4):
        a(f"s_waitcnt vmcnt({58-8-2*(s+1)})")
        for m in mfmas(s, s, s == 0): a(m)
    a(f"s_waitcnt vmcnt({58-28})\ns_barrier")
    stamp(a, 2)
    slot = lambda s: s if s < 10 else s-10
    for x in wreads(0, 4): a(x)
    for s in range(4, 14):
        b = s & 1
        if s == 9: a("s_waitcnt vmcnt(0)\ns_barrier")
        nxt = wreads(1-b, slot(s+1)) if s < 13 else []
        a(f"s_waitcnt vmcnt({max(0, 58-28-2*(s-3))}) lgkmcnt(0)")
        for m in mfmas(b, s):
            a(m)
            if nxt: a(nxt.pop(0))
    for j in range(2):
        a(f"v_mfma_f32_16x16x32_bf16 {vr(AC+4*j)}, {vr(ATF)}, {vr(SEL+4*j)}, {vr(AC+4*j)}")
    stamp(a, 3)
    a("s_barrier")
    a("s_nop 4")
    for t in (1,2,3,0):
        for j in range(2):
            a(f"ds_write_b128 v{VP+t}, {vr(AC+8*t+4*j)} offset:{16*j*PP}")
    a("s_waitcnt lgkmcnt(0)\ns_barrier")
    for q in range(4):
        for hf in range(2):
            a(f"ds_read_b128 {vr(WF+8*q+4*hf)}, v{VO} offset:{q*64*PP+16*hf}")
    for k in range(4):
        a(f"v_lshlrev_b32 v{AC+2*k}, 16, v{XF+k}\nv_and_b32 v{AC+2*k+1}, 0xffff0000, v{XF+k}")
    for q in range(4):
        a(f"s_waitcnt lgkmcnt({6-2*q})")
        for k in range(4):
            a(f"v_pk_add_f32 v[{AC+2*k}:{AC+2*k+1}], v[{AC+2*k}:{AC+2*k+1}], v[{WF+8*q+2*k}:{WF+8*q+2*k+1}]")
    for k in range(4):
        a(f"v_cvt_pk_bf16_f32 v{XF+k}, v{AC+2*k}, v{AC+2*k+1}")
    a(f"buffer_store_dwordx4 {vr(XF)}, v{VX}, {sr(S_OUT)}, s51 offen")

def k_gemm2():
    a = Asm("H")
    prologue(a, 256, "H_end")
    g2_map(a)
    gemm2_v1(a)
    stamp(a, 4)
    stamp_flush(a, 3)
    a("H_end:\ns_endpgm")
    return dict(name="gemm2_kernel", body=a.text(), grid=256, block=512, lds=163840, vgpr=256, sgpr=102)

if __name__ == "__main__":
    import roles
    from k_aux import k_aux
    from gemm1 import k_gemm1
    from conv import k_conv
    ks = lambda: [k_aux(), k_gemm1(), k_conv(), k_gemm2()]
    open("../v1.s","w").write(make_file(ks()))
    roles.STAMPS = "s_memrealtime"
    open("../t_all.s","w").write(make_file(ks()))
    roles.STAMPS = "s_memtime"
    open("../t_allc.s","w").write(make_file(ks()))
```

```python
from roles import *
def k_aux():
    a = Asm("A")
    prologue(a, 32, "A_end")
    a("s_mov_b32 s5, s2")
    aux_role(a, 5)
    stamp(a, 3)
    a("s_waitcnt vmcnt(0)")
    stamp(a, 4)
    stamp_flush(a, 0)
    a("A_end:\ns_endpgm")
    return dict(name="aux_kernel", body=a.text(), grid=32, block=512, lds=81920, vgpr=200, sgpr=102)
if __name__ == "__main__":
    open("../t_aux.s","w").write(make_file([k_aux()]))
```

```python
from common import *

S_WAVE = 4
S_WS, S_X, S_WG, S_WU, S_WD, S_OUT, S_DBG = 8, 12, 16, 20, 24, 28, 32
S_KA = 64
def ka(name): return S_KA + KA[name]//4

def prologue(a, nwg, endlabel):
    a(f"""
    s_cmp_ge_u32 s2, {nwg}
    s_cbranch_scc1 {endlabel}
    {STAMPS + " s[92:93]" if STAMPS else ""}
    s_load_dwordx16 s[64:79], s[0:1], 0
    s_load_dwordx8 s[80:87], s[0:1], 64
    s_load_dwordx4 s[88:91], s[0:1], 96
    v_lshrrev_b32 v2, 6, v0
    v_and_b32 v1, 63, v0
    v_readfirstlane_b32 s{S_WAVE}, v2
    s_waitcnt lgkmcnt(0)
    """)
    srd(a, S_WS, ka("ws"), WS_SIZE)
    srd(a, S_X, ka("x"), 2048*512*2)
    srd(a, S_WG, ka("wg"), 512*1792*2)
    srd(a, S_WU, ka("wu"), 512*1792*2)
    srd(a, S_WD, ka("wd"), 512*1792*2)
    srd(a, S_OUT, ka("out"), 2048*512*2)
    srd(a, S_DBG, ka("dbg"), 256)

STAMPS = False
def stamp(a, i):
    if STAMPS: a(f"{STAMPS} s[{92+2*i}:{93+2*i}]")
def stamp_flush(a, kidx=0):
    if not STAMPS: return
    a("s_waitcnt lgkmcnt(0)")
    for i in range(5): a(f"v_mov_b32 v{2+i}, s{92+2*i}")
    a(f"""
    v_mov_b32 v7, 0
    v_mov_b32 v8, 0
    v_mov_b32 v9, 0
    s_lshl_b32 s92, s2, 3
    s_add_u32 s92, s92, s{S_WAVE}
    s_lshl_b32 s92, s92, 5
    s_add_u32 s92, s92, {TS_OFF + kidx*0x20000}
    s_mov_b64 exec, 1
    buffer_store_dwordx4 v[2:5], v9, {sr(S_WS)}, s92 offen
    buffer_store_dwordx4 v[6:9], v9, {sr(S_WS)}, s92 offen offset:16
    s_mov_b64 exec, -1
    """)

DBG_OFF = 0xF00000
def dump_lds(a, nbytes, wg=0, T=248):
    l = a.label("dump")
    a(f"s_cmp_lg_u32 s2, {wg}\ns_cbranch_scc1 {l}\nv_lshlrev_b32 v{T+4}, 4, v0\ns_mov_b32 s58, {DBG_OFF}")
    for o in range(0, nbytes, 8192):
        a(f"v_add_u32 v{T+5}, {o}, v{T+4}\nds_read_b128 v[{T}:{T+3}], v{T+5}\ns_waitcnt lgkmcnt(0)\nbuffer_store_dwordx4 v[{T}:{T+3}], v{T+5}, {sr(S_WS)}, s58 offen\ns_waitcnt vmcnt(0)")
    a(f"{l}:\ns_barrier")

def dpp_reduce(a, regs):
    assert len(regs) >= 3
    for ctl in ("row_shr:1 row_mask:0xf bank_mask:0xf", "row_shr:2 row_mask:0xf bank_mask:0xf", "row_shr:4 row_mask:0xf bank_mask:0xf",
                "row_shr:8 row_mask:0xf bank_mask:0xf", "row_bcast:15 row_mask:0xa bank_mask:0xf", "row_bcast:31 row_mask:0xc bank_mask:0xf"):
        for r in regs:
            a(f"v_add_f32_dpp v{r}, v{r}, v{r} {ctl}")

def aux_role(a, sq, st="", publish=None):
    X = 8
    F = 40
    W = 104
    CS = 168
    SUM = 176
    T = 184
    a(f"""
    v_lshlrev_b32 v2, 4, v1                 ; lane*16
    s_lshl_b32 s40, s{sq}, 6
    s_lshl_b32 s41, s{S_WAVE}, 3
    s_add_u32 s40, s40, s41
    s_lshl_b32 s42, s40, 10
    s_add_u32 s43, s42, 4096
    """)
    for i in range(8):
        a(f"buffer_load_dwordx4 {vr(X+4*i)}, v2, {sr(S_X)}, s{42+i//4} offen offset:{(i%4)*1024}")
    a(f"""
    s_cmp_ge_u32 s{sq}, 14
    s_cselect_b32 s36, s{ka('wu')}, s{ka('wg')}
    s_cselect_b32 s37, s{ka('wu')+1}, s{ka('wg')+1}
    s_cselect_b32 s44, 14, 0
    s_mov_b32 s38, {512*1792*2}
    s_mov_b32 s39, 0x20000
    s_sub_u32 s44, s{sq}, s44               ; jc
    s_lshl_b32 s45, s44, 8
    s_mul_i32 s46, s{S_WAVE}, {64*3584}
    s_add_u32 s45, s45, s46
    v_lshrrev_b32 v3, 4, v1
    v_mul_u32_u24 v3, 3584, v3
    v_and_b32 v4, 15, v1
    v_lshl_add_u32 v3, v4, 4, v3
    s_cmp_ge_u32 s{sq}, 28
    """)
    skip = a.label("nocs")
    a(f"s_cbranch_scc1 {skip}")
    for i in range(16):
        a(f"buffer_load_dwordx4 {vr(W+4*i)}, v3, s[36:39], s45 offen")
        if i < 15: a(f"s_add_u32 s45, s45, {4*3584}")
    a(f"s_waitcnt vmcnt(16)")
    a(f"{skip}:")
    a(f"s_cmp_ge_u32 s{sq}, 28")
    l2 = a.label("w2")
    a(f"s_cbranch_scc0 {l2}\ns_waitcnt vmcnt(0)\n{l2}:")
    for i in range(8):
        for j in range(4):
            a(f"v_lshlrev_b32 v{F+8*i+2*j}, 16, v{X+4*i+j}")
            a(f"v_and_b32 v{F+8*i+2*j+1}, 0xffff0000, v{X+4*i+j}")
    for i in range(8):
        a(f"v_add_f32 v{SUM+i}, v{F+8*i}, v{F+8*i+1}")
    for j in range(2, 8):
        for i in range(8):
            a(f"v_add_f32 v{SUM+i}, v{SUM+i}, v{F+8*i+j}")
    dpp_reduce(a, [SUM+i for i in range(8)])
    for i in range(8): a(f"v_readlane_b32 s{48+i}, v{SUM+i}, 63")
    a("s_nop 3")
    for i in range(8): a(f"v_writelane_b32 v{T}, s{48+i}, {i}")
    a(f"""
    v_mul_f32 v{T}, 0x3b000000, v{T}
    v_cvt_pk_bf16_f32 v{T+1}, v{T}, v{T}
    v_and_b32 v{T+1}, 0xffff0000, v{T+1}      ; m_bf
    v_sub_f32 v{T+2}, v{T}, v{T+1}
    s_nop 0
    """)
    for i in range(8): a(f"v_readlane_b32 s{48+i}, v{T+1}, {i}")
    a("s_nop 1")
    for i in range(8):
        for j in range(8):
            a(f"v_subrev_f32 v{F+8*i+j}, s{48+i}, v{F+8*i+j}")
    for i in range(8): a(f"v_mul_f32 v{SUM+i}, v{F+8*i}, v{F+8*i}")
    for j in range(1, 8):
        for i in range(8): a(f"v_fmac_f32 v{SUM+i}, v{F+8*i+j}, v{F+8*i+j}")
    dpp_reduce(a, [SUM+i for i in range(8)])
    for i in range(8): a(f"v_readlane_b32 s{48+i}, v{SUM+i}, 63")
    a("s_nop 3")
    for i in range(8): a(f"v_writelane_b32 v{T+3}, s{48+i}, {i}")
    a(f"""
    v_mul_f32 v{T+3}, 0x3b000000, v{T+3}
    v_fma_f32 v{T+3}, -v{T+2}, v{T+2}, v{T+3}     ; var
    v_max_f32 v{T+3}, 0, v{T+3}
    v_cvt_pk_bf16_f32 v{T+3}, v{T+3}, v{T+3}
    v_and_b32 v{T+3}, 0xffff0000, v{T+3}
    v_add_f32 v{T+3}, 0x3727c5ac, v{T+3}          ; + 1e-5
    v_cvt_pk_bf16_f32 v{T+3}, v{T+3}, v{T+3}
    v_and_b32 v{T+3}, 0xffff0000, v{T+3}
    v_sqrt_f32 v{T+3}, v{T+3}
    s_nop 0
    v_cvt_pk_bf16_f32 v{T+3}, v{T+3}, v{T+3}
    v_and_b32 v{T+3}, 0xffff0000, v{T+3}          ; s (bf16)
    v_rcp_f32 v{T+4}, v{T+3}
    s_nop 0
    v_fma_f32 v{T+5}, -v{T+3}, v{T+4}, 1.0
    v_fma_f32 v{T+4}, v{T+5}, v{T+4}, v{T+4}      ; rs
    v_xor_b32 v{T+6}, 0x80000000, v{T+1}          ; negm
    v_mul_f32 v{T+7}, v{T+4}, v{T+4}              ; rs2
    v_lshlrev_b32 v5, 3, v1
    s_lshl_b32 s46, s40, 3
    s_add_u32 s46, s46, {ST_OFF}
    s_mov_b64 exec, 0xff
    buffer_store_dwordx2 v[{T+6}:{T+7}], v5, {sr(S_WS)}, s46 offen {st}
    s_mov_b64 exec, -1
    """)
    for i in range(8): a(f"v_readlane_b32 s{48+i}, v{T+4}, {i}")
    l3 = a.label("nocs2")
    a(f"s_cmp_ge_u32 s{sq}, 28\ns_cbranch_scc1 {l3}")
    for i in range(16):
        a(f"s_waitcnt vmcnt({16-i})")
        for j in range(4):
            if i == 0:
                a(f"v_lshlrev_b32 v{CS+2*j}, 16, v{W+j}")
                a(f"v_and_b32 v{CS+2*j+1}, 0xffff0000, v{W+j}")
            else:
                a(f"v_lshlrev_b32 v{T+8}, 16, v{W+4*i+j}")
                a(f"v_and_b32 v{T+9}, 0xffff0000, v{W+4*i+j}")
                a(f"v_add_f32 v{CS+2*j}, v{CS+2*j}, v{T+8}")
                a(f"v_add_f32 v{CS+2*j+1}, v{CS+2*j+1}, v{T+9}")
    a(f"""
    v_lshlrev_b32 v6, 5, v0
    v_add_u32 v6, 0x10000, v6
    ds_write_b128 v6, {vr(CS)}
    ds_write_b128 v6, {vr(CS+4)} offset:16
    {l3}:
    """)
    a(f"""
    s_and_b32 s46, s{S_WAVE}, 1
    s_lshl_b32 s46, s46, 7
    s_lshl_b32 s47, s{S_WAVE}, 13
    s_add_u32 s46, s46, s47
    v_xor_b32 v7, s46, v2
    """)
    for i in range(8):
        for j in range(4):
            a(f"v_cvt_pk_bf16_f32 v{X+4*i+j}, v{F+8*i+2*j}, v{F+8*i+2*j+1}")
        for j in range(4):
            a(f"v_lshlrev_b32 v{F+8*i+2*j}, 16, v{X+4*i+j}")
            a(f"v_and_b32 v{F+8*i+2*j+1}, 0xffff0000, v{X+4*i+j}")
        for j in range(8):
            a(f"v_mul_f32 v{F+8*i+j}, s{48+i}, v{F+8*i+j}")
        for j in range(4):
            a(f"v_cvt_pk_bf16_f32 v{X+4*i+j}, v{F+8*i+2*j}, v{F+8*i+2*j+1}")
        a(f"v_xor_b32 v{T+8}, {(i&3)<<5}, v7")
        a(f"ds_write_b128 v{T+8}, {vr(X+4*i)} offset:{i*1024}")
    a("s_waitcnt lgkmcnt(0)\ns_barrier")
    l4 = a.label("nocs3")
    a(f"s_cmp_ge_u32 s{sq}, 28\ns_cbranch_scc1 {l4}\ns_cmp_ge_u32 s{S_WAVE}, 2\ns_cbranch_scc1 {l4}")
    a(f"v_lshlrev_b32 v6, 2, v0\nv_add_u32 v5, 0x10000, v6")
    for p in range(16):
        a(f"ds_read2st64_b32 v[{W+2*p}:{W+2*p+1}], v5 offset0:{4*p} offset1:{4*p+2}")
    a("s_waitcnt lgkmcnt(0)")
    n = 32
    while n > 1:
        for p in range(n//2): a(f"v_add_f32 v{W+p}, v{W+p}, v{W+p+n//2}")
        n //= 2
    a(f"""
    s_lshl_b32 s46, s{sq}, 9
    s_add_u32 s46, s46, {CS_OFF}
    buffer_store_dword v{W}, v6, {sr(S_WS)}, s46 offen {st}
    {l4}:
    """)
    if publish: publish(a, 1)
    a(f"""
    v_lshrrev_b32 v3, 4, v1                 ; g
    v_bfe_u32 v4, v1, 2, 2                  ; r
    v_and_b32 v5, 3, v1                     ; c'
    v_and_b32 v6, 1, v3
    v_lshl_or_b32 v6, v6, 2, v4             ; s
    s_lshl_b32 s46, s{S_WAVE}, 2
    v_xor_b32 v6, s46, v6                   ; (4w) ^ s
    v_lshlrev_b32 v6, 5, v6
    v_lshl_add_u32 v6, v5, 3, v6
    v_lshl_add_u32 v6, v4, 10, v6
    v_lshl_add_u32 v6, v3, 13, v6
    v_and_b32 v7, 15, v1
    v_lshlrev_b32 v7, 12, v7
    v_lshl_add_u32 v7, v3, 4, v7
    s_lshl_b32 s46, s{S_WAVE}, 18
    s_lshl_b32 s47, s{sq}, 7
    s_add_u32 s46, s46, s47
    s_add_u32 s46, s46, {XNT_OFF}
    """)
    for tt in range(4):
        a(f"v_xor_b32 v{T+tt}, {tt<<5}, v6")
    for tt in range(4):
        for o in range(2):
            for rho in range(2):
                d = F + (tt*2+o)*4 + rho*2
                a(f"ds_read_b64_tr_b16 v[{d}:{d+1}], v{T+tt} offset:{o*32768+rho*4096}")
    for tt in range(4):
        a(f"s_waitcnt lgkmcnt({12-4*tt})")
        for o in range(2):
            a(f"buffer_store_dwordx4 {vr(F+(tt*2+o)*4)}, v7, {sr(S_WS)}, s46 offen offset:{o*64} {st}")
        if tt < 3: a(f"s_add_u32 s46, s46, 0x10000")
    if publish: publish(a, 2)
```

```python
from roles import *
from k_aux import k_aux
from gemm1 import k_gemm1
from conv import k_conv
from gemm2 import k_gemm2
def k_empty():
    return dict(name="empty_kernel", body="    s_endpgm\n", grid=256, block=512, lds=0, vgpr=8, sgpr=16)
ks = lambda: [k_aux(), k_gemm1(), k_conv(), k_gemm2()]
open("../v1_e3front.s","w").write(make_file([k_empty()]*3 + ks()))
open("../v1_e3back.s","w").write(make_file(ks() + [k_empty()]*3))
```

```python
from common import *
class VM:
    def __init__(self, a): self.a = a; self.ops = []
    def issue(self, text, tag):
        self.a(text); self.ops.append(tag)
    def count_after(self, tag):
        idx = max(i for i, t in enumerate(self.ops) if t == tag)
        return len(self.ops) - 1 - idx
    def wait(self, tag, extra=""):
        n = self.count_after(tag)
        assert n <= 63
        self.a(f"s_waitcnt vmcnt({n}) {extra}".strip())
    def drained(self): self.ops = []

def pipeline(a, mfmas, loads, pool, per_gap=2, lead=None, pre=None):
    first = {}; last = {}
    for i, (f, ids) in enumerate(mfmas):
        for d in ids:
            if d in loads:
                first.setdefault(d, i); last[d] = i
    order = sorted(first, key=lambda d: first[d])
    free = list(pool); reg = {}; issued = []
    nxt = 0
    done_upto = 0
    def try_issue(maxn):
        nonlocal nxt
        n = 0
        while nxt < len(order) and free and n < maxn:
            d = order[nxt]
            reg[d] = free.pop(0)
            for ins in loads[d](reg[d]):
                a(ins); issued.append(d); n += 1
            nxt += 1
    try_issue(lead if lead else 12)
    for i, (f, ids) in enumerate(mfmas):
        for d in ids:
            while d in loads and d not in reg:
                assert free, "pool too small"
                try_issue(1)
        need = [max(k for k, x in enumerate(issued) if x == d) for d in ids if d in loads]
        if need and max(need) >= done_upto:
            outstanding = len(issued) - 1 - max(need)
            a(f"s_waitcnt lgkmcnt({min(outstanding, 15)})")
            done_upto = max(need) + 1 if outstanding <= 15 else len(issued) - 15
        if pre and i in pre:
            for x in pre[i]: a(x)
        a(f.format(*[vr(reg[d]) if d in loads else d for d in ids]))
        for d in set(ids):
            if d in loads and last[d] == i: free.append(reg[d])
        try_issue(per_gap)
```

```python
from common import *
from util import *
import struct, sys
def f2u(x): return struct.unpack("<I", struct.pack("<f", x))[0]
LOG2E = f2u(1.4426950408889634); INV2PI = f2u(0.15915494309189535)

S_WAVE = 4
S_WS, S_X, S_WG, S_WU, S_WD, S_OUT, S_DBG = 8, 12, 16, 20, 24, 28, 32
S_TAG = 62; S_ROLE = 61; S_DD = 63; S_LDT = 59
ST_G = ST_OFF
CS_G = CS_OFF
HF_OFF = FLAG_OFF
XF_OFF = FLAG_OFF + 0x2000
AF_OFF = FLAG_OFF + 0x4000
SLOT = 16384
NW = 5
S_ = NW*SLOT
XR = S_ + SLOT
KT = S_
AUXL = S_ + 3072
PX = (S_ + 5120, S_ + 13312)
UP = 4608; PC = 4160
LU = S_ + 5120
LC = S_ + 14336
WSLOT = [1*SLOT, 2*SLOT, 3*SLOT, XR+2*SLOT, 4*SLOT, 0, XR+3*SLOT]
WAVAIL = [12, 13, 14, 14, 15, 16, 16]
PP = 272
POLL_MAX = 1 << 16

class Opt:
    stamps = None
    stamp_sel = {}
O = Opt()
def stamp(a, name):
    if O.stamps and name in O.stamp_sel:
        i = O.stamp_sel[name]
        a(f"{O.stamps} s[{92+2*i}:{93+2*i}]")
def stamp_flush(a):
    if not O.stamps: return
    a("s_waitcnt lgkmcnt(0)")
    for i in range(5): a(f"v_mov_b32 v{2+i}, s{92+2*i}")
    a(f"""
    v_mov_b32 v7, 0
    v_mov_b32 v8, 0
    v_mov_b32 v9, 0
    s_lshl_b32 s92, s2, 3
    s_add_u32 s92, s92, s{S_WAVE}
    s_lshl_b32 s92, s92, 5
    s_add_u32 s92, s92, {TS_OFF}
    s_mov_b64 exec, 1
    buffer_store_dwordx4 v[2:5], v9, {sr(S_WS)}, s92 offen
    buffer_store_dwordx4 v[6:9], v9, {sr(S_WS)}, s92 offen offset:16
    s_mov_b64 exec, -1
    """)

def srd_tail(a, s, size):
    a(f"s_mov_b32 s{s+2}, {hex(size)}\ns_mov_b32 s{s+3}, 0x20000")

def late_loads(a):
    a(f"""
    s_load_dwordx2 s[{S_WS}:{S_WS+1}], s[0:1], 104
    s_load_dwordx2 s[{S_DBG}:{S_DBG+1}], s[0:1], 96
    s_load_dwordx2 s[{S_WD}:{S_WD+1}], s[0:1], 80
    s_load_dwordx2 s[{S_OUT}:{S_OUT+1}], s[0:1], 88
    s_load_dwordx8 s[64:71], s[0:1], 8
    s_load_dwordx4 s[72:75], s[0:1], 40
    """)
    srd_tail(a, S_WS, WS_SIZE); srd_tail(a, S_DBG, 256); srd_tail(a, S_WD, 512*1792*2); srd_tail(a, S_OUT, 2048*512*2)
    a("s_waitcnt lgkmcnt(0)")
    a(f"s_lshl_b32 s40, s2, 2\ns_load_dword s{S_LDT}, s[72:73], s40\ns_load_dword s{S_DD}, s[74:75], s40")

def poll(a, vm, vdst, vaddr, srdreg, soff, mask, cmp_src, tag="poll"):
    l = a.label("poll"); d = a.label("polld")
    a(f"s_mov_b64 exec, {mask}\ns_mov_b32 s58, {POLL_MAX}\n{l}:")
    a(f"buffer_load_dword v{vdst}, v{vaddr}, {sr(srdreg)}, {soff} offen sc1")
    a(f"""
    s_waitcnt vmcnt(0)
    v_cmp_ne_u32 vcc, {cmp_src}, v{vdst}
    s_cbranch_vccz {d}
    s_sleep 1
    s_sub_u32 s58, s58, 1
    s_cmp_lg_u32 s58, 0
    s_cbranch_scc1 {l}
    {d}:
    s_mov_b64 exec, -1
    """)
    if vm: vm.drained()

def get_tags(a, vm, VT, T):
    l = a.label("tags"); d = a.label("tagsd")
    a(f"v_and_b32 v{T}, 31, v1\nv_lshlrev_b32 v{T}, 2, v{T}\ns_mov_b32 s58, {POLL_MAX}\n{l}:")
    a(f"""
    buffer_load_dword v{VT}, v{T}, {sr(S_DBG)}, 0 offen sc1
    s_waitcnt vmcnt(0)
    v_cmp_eq_u32 vcc, 0, v{VT}
    s_cbranch_vccz {d}
    s_sleep 1
    s_sub_u32 s58, s58, 1
    s_cmp_lg_u32 s58, 0
    s_cbranch_scc1 {l}
    {d}:
    v_readfirstlane_b32 s{S_TAG}, v{VT}
    """)
    if vm: vm.drained()

def cmul(a, o, x, w, t):
    a(f"v_pk_mul_f32 v[{t}:{t+1}], v[{x}:{x+1}], v[{w}:{w+1}] op_sel_hi:[1,0]")
    a(f"v_pk_fma_f32 v[{o}:{o+1}], v[{x}:{x+1}], v[{w}:{w+1}], v[{t}:{t+1}] op_sel:[1,1,0] op_sel_hi:[0,1,1] neg_lo:[1,0,0]")
def anchor(a, o, p, AR, PH, t):
    a(f"""
    v_mul_f32 v{t}, {hex(f2u(float(p)))}, v{AR}
    v_mul_f32 v{t+1}, {hex(f2u(float(p)))}, v{PH}
    v_exp_f32 v{t}, v{t}
    v_fract_f32 v{t+1}, v{t+1}
    v_cos_f32 v{o}, v{t+1}
    v_sin_f32 v{o+1}, v{t+1}
    s_nop 0
    v_pk_mul_f32 v[{o}:{o+1}], v[{o}:{o+1}], v[{t}:{t+1}] op_sel_hi:[1,0]
    """)
PV = 16
AD = 20
RA = 36
GA = 40
KA0, KA1a, KA1b, KA2 = 51, 52, 53, 54
VT = 55
KW = 56
E2F = 128
EF = 144
KACC = 160
XW = 172
UF = 220
GF = 228

def kgen_param_loads(a, vm):
    a(f"v_lshlrev_b32 v{KW}, 1, v1\ns_lshl_b32 s40, s2, 9\ns_lshl_b32 s41, s56, 7\ns_add_u32 s40, s40, s41")
    a(f"s_mov_b32 s38, {512*128*2}\ns_mov_b32 s39, 0x20000")
    for i in range(4):
        a(f"s_mov_b32 s36, s{64+2*i}\ns_mov_b32 s37, s{65+2*i}")
        vm.issue(f"buffer_load_ushort v{PV+i}, v{KW}, s[36:39], s40 offen", "par")

def kgen_addr_setup(a):
    T = KW
    a(f"""
    s_lshl_b32 s40, s56, 12
    s_add_u32 s40, s40, {S_}
    v_lshl_add_u32 v{AD}, v1, 2, s40
    """)
    for r in range(1, 8): a(f"v_xor_b32 v{AD+r}, {r<<4}, v{AD}")
    a(f"""
    v_and_b32 v{T}, 15, v1                  ; m / b
    v_lshrrev_b32 v{T+1}, 4, v1             ; g
    v_lshrrev_b32 v{T+2}, 1, v{T}
    v_xor_b32 v{T+2}, v{T+2}, v{T+1}
    v_lshlrev_b32 v{T+2}, 4, v{T+2}
    v_lshl_add_u32 v{T+2}, v{T}, 8, v{T+2}
    v_add_u32 v{RA}, s40, v{T+2}
    v_xor_b32 v{RA+1}, 64, v{RA}
    v_xor_b32 v{RA+2}, 128, v{RA}
    v_xor_b32 v{RA+3}, 192, v{RA}
    s_lshr_b32 s41, s56, 1
    s_mul_i32 s41, s41, 1536
    s_add_u32 s41, s41, {KT}
    v_lshrrev_b32 v{T+2}, 1, v{T+1}
    v_lshlrev_b32 v{T+2}, 8, v{T+2}
    v_and_b32 v{T+3}, 1, v{T+1}
    v_lshl_add_u32 v{T+2}, v{T+3}, 3, v{T+2}
    v_lshl_add_u32 v{T+2}, v{T}, 4, v{T+2}
    v_add_u32 v{KA0}, s41, v{T+2}           ; tile0: 2*(128(g>>1)+4(g&1)+8b)
    v_cmp_gt_u32 vcc, 2, v{T+1}
    v_lshlrev_b32 v{T+2}, 7, v{T+1}         ; 2*64g
    v_lshlrev_b32 v{T+3}, 2, v{T}
    v_lshlrev_b32 v{T+4}, 3, v{T}
    v_cndmask_b32 v{T+3}, v{T+3}, v{T+4}, vcc
    v_add3_u32 v{KA1a}, v{T+2}, v{T+3}, s41
    v_mov_b32 v{T+3}, 64
    v_cndmask_b32 v{T+3}, v{T+3}, 4, vcc
    v_add_u32 v{KA1b}, v{KA1a}, v{T+3}
    v_lshl_add_u32 v{T+2}, v{T}, 1, v{T+2}
    v_add_u32 v{KA2}, s41, v{T+2}
    v_and_b32 v{T}, 255, v0
    v_lshlrev_b32 v{T}, 3, v{T}
    v_sub_u32 v{T}, 2051, v{T}
    s_movk_i32 s41, 128
    s_mov_b32 s40, {KT}
    """)
    for e in range(11):
        a(f"""
        v_subrev_u32 v{T+1}, {e}, v{T}
        v_cvt_f32_u32 v{T+2}, v{T+1}
        v_cvt_pk_bf16_f32 v{T+2}, v{T+2}, v{T+2}
        v_lshrrev_b32 v{T+2}, 16, v{T+2}
        v_subrev_u32 v{T+2}, 0x4280, v{T+2}
        v_med3_i32 v{T+2}, v{T+2}, v{T+1}, s41
        v_lshl_add_u32 v{GA+e}, v{T+2}, 1, s40
        """)

def kgen_body(a):
    W = KW
    AR, PH, T, PK, DT = W, W+1, W+2, W+4, W+5
    C2, W8, Y, T2, O_ = W+6, W+8, W+10, W+12, W+14
    Fk = lambda k: W+20+2*k
    Ca = lambda k: W+34+2*k
    V = PV
    a(f"""
    s_lshr_b32 s57, s56, 1
    s_lshl_b32 s57, s57, 4
    s_lshr_b32 s57, s{S_LDT}, s57
    s_lshl_b32 s57, s57, 16
    v_mov_b32 v{DT}, {hex(LOG2E)}
    v_mul_f32 v{DT}, s57, v{DT}
    v_lshlrev_b32 v{V}, 16, v{V}
    v_lshlrev_b32 v{V+1}, 16, v{V+1}
    v_lshlrev_b32 v{V+2}, 16, v{V+2}
    v_lshlrev_b32 v{V+3}, 16, v{V+3}
    v_mul_f32 v{V}, {hex(LOG2E)}, v{V}
    v_exp_f32 v{V}, v{V}
    v_exp_f32 v{DT}, v{DT}
    s_nop 0
    v_cvt_pk_bf16_f32 v{T}, v{DT}, v{V}
    v_lshlrev_b32 v{DT}, 16, v{T}
    v_and_b32 v{V}, 0xffff0000, v{T}
    v_mul_f32 v{AR}, v{V}, v{DT}
    v_mul_f32 v{PH}, v{V+1}, v{DT}
    v_mul_f32 v{AR}, {hex(LOG2E ^ 0x80000000)}, v{AR}
    v_mul_f32 v{PH}, {hex(INV2PI)}, v{PH}
    v_mul_f32 v{C2}, v{V+2}, v{DT}
    v_mul_f32 v{C2+1}, v{V+3}, v{DT}
    v_add_f32 v{C2}, v{C2}, v{C2}
    v_add_f32 v{C2+1}, v{C2+1}, v{C2+1}
    """)
    PKB = AD+8
    have = {}
    def put(row, x, neg=False):
        r = PKB + (row & 7)
        if x is None: a(f"v_mov_b32 v{r}, 0x3f80")
        else: a(f"v_cvt_pk_bf16_f32 v{r}, v{x}, {'-' if neg else ''}v{x+1}")
        have[row] = r
    def flush(row):
        if row+1 in have: a(f"ds_write2st64_b32 v{AD+row//2}, v{have[row]}, v{have[row+1]} offset0:{row} offset1:{row+1}")
        else: a(f"ds_write_b32 v{AD+row//2}, v{have[row]} offset:{row*256}")
        have.pop(row); have.pop(row+1, None)
    def rd(dst):
        for ks in range(4): a(f"ds_read_b128 {vr(dst+4*ks)}, v{RA+ks}")
    def mm(t):
        a("s_waitcnt lgkmcnt(0)")
        for ks in range(4):
            a(f"v_mfma_f32_16x16x32_bf16 {vr(KACC+4*t)}, {vr(EF+4*ks)}, {vr(E2F+4*ks)}, {vr(KACC+4*t) if ks else 0}")
    def cm_multi(ops):
        for (o,x,w,t) in ops: a(f"v_pk_mul_f32 v[{t}:{t+1}], v[{x}:{x+1}], v[{w}:{w+1}] op_sel_hi:[1,0]")
        for (o,x,w,t) in ops: a(f"v_pk_fma_f32 v[{o}:{o+1}], v[{x}:{x+1}], v[{w}:{w+1}], v[{t}:{t+1}] op_sel:[1,1,0] op_sel_hi:[0,1,1] neg_lo:[1,0,0]")
    W16 = W+50; C3 = W+52; TT = W+54
    anc = [(W8, 8), (W16, 16), (Fk(1), 1), (Ca(1), 128), (Y, 1024)]
    for i, (o, p) in enumerate(anc): a(f"v_mul_f32 v{TT+2*i}, {hex(f2u(float(p)))}, v{AR}\nv_mul_f32 v{TT+2*i+1}, {hex(f2u(float(p)))}, v{PH}")
    for i, (o, p) in enumerate(anc): a(f"v_fract_f32 v{TT+2*i+1}, v{TT+2*i+1}\nv_exp_f32 v{TT+2*i}, v{TT+2*i}")
    for i, (o, p) in enumerate(anc): a(f"v_cos_f32 v{o}, v{TT+2*i+1}\nv_sin_f32 v{o+1}, v{TT+2*i+1}")
    for i, (o, p) in enumerate(anc): a(f"v_pk_mul_f32 v[{o}:{o+1}], v[{o}:{o+1}], v[{TT+2*i}:{TT+2*i+1}] op_sel_hi:[1,0]")
    cm_multi([(C3, C2, W8, TT)])
    for b in range(0, 16, 2):
        put(b, C2, True); put(b+1, C3, True)
        k = b//2 + 2
        ops = []
        if b < 14: ops += [(C2, C2, W16, TT), (C3, C3, W16, TT+2)]
        if k <= 7: ops += [(Fk(k), Fk(k-1), Fk(1), TT+4), (Ca(k), Ca(k-1), Ca(1), TT+6)]
        cm_multi(ops)
        flush(b)
    rd(E2F)
    O4 = [W+64+2*i for i in range(4)]
    put(0, None)
    for k in range(1, 8): put(k, Fk(k))
    cm_multi([(O4[k-1], Ca(1), Fk(k), TT+2*(k-1)) for k in (1,2,3)])
    for r in (0,2,4,6): flush(r)
    put(8, Ca(1))
    for k in (1,2,3): put(8+k, O4[k-1])
    cm_multi([(O4[k-4], Ca(1), Fk(k), TT+2*(k-4)) for k in (4,5,6,7)])
    flush(8); flush(10)
    for k in (4,5,6,7): put(8+k, O4[k-4])
    cm_multi([(O4[i-1], Ca(2), Fk(2*i), TT+2*(i-1)) for i in (1,2,3)])
    flush(12); flush(14)
    rd(EF)
    put(0, Ca(2))
    for i in (1,2,3): put(i, O4[i-1])
    cm_multi([(O4[i-1], Ca(3), Fk(2*i), TT+2*(i-1)) for i in (1,2,3)])
    flush(0); flush(2)
    put(4, Ca(3))
    for i in (1,2,3): put(4+i, O4[i-1])
    cm_multi([(O4[c-4], Ca(c), Fk(4), TT+2*(c-4)) for c in (4,5,6,7)])
    flush(4); flush(6)
    mm(0)
    for c in (4,5,6,7): put(8+2*(c-4), Ca(c)); put(9+2*(c-4), O4[c-4])
    cm_multi([(O4[c-1], Y, Ca(c), TT+2*(c-1)) for c in (1,2,3)])
    for r in (8,10,12,14): flush(r)
    rd(EF)
    put(0, Y)
    for c in (1,2,3): put(c, O4[c-1])
    cm_multi([(O4[c-4], Y, Ca(c), TT+2*(c-4)) for c in (4,5,6,7)] + [(C2, Y, Y, TT+8)])
    flush(0); flush(2)
    mm(1)
    for c in (4,5,6,7): put(c, O4[c-4])
    flush(4); flush(6)
    put(8, C2); flush(8)
    rd(EF)
    mm(2)

def kgen_send(a):
    l = a.label("ks")
    a(f"""
    s_bitcmp1_b32 s56, 0
    s_cbranch_scc0 {l}
    s_cmp_eq_u32 s56, 1
    s_cselect_b32 s40, {PX[0]}, s55
    v_lshl_add_u32 v{KW}, v1, 4, s40
    s_nop 4
    """)
    for t in range(3): a(f"ds_write_b128 v{KW}, {vr(KACC+4*t)} offset:{1024*t}")
    a(f"{l}:\ns_waitcnt lgkmcnt(0)")
def kgen_recv(a):
    l = a.label("kr")
    a(f"""
    s_bitcmp1_b32 s56, 0
    s_cbranch_scc1 {l}
    s_cmp_eq_u32 s56, 0
    s_cselect_b32 s40, {PX[0]}, s55
    v_lshl_add_u32 v{KW}, v1, 4, s40
    """)
    for t in range(3): a(f"ds_read_b128 {vr(EF+4*t)}, v{KW} offset:{1024*t}")
    a("s_waitcnt lgkmcnt(0)")
    for k in range(6):
        a(f"v_pk_add_f32 v[{KACC+2*k}:{KACC+2*k+1}], v[{KACC+2*k}:{KACC+2*k+1}], v[{EF+2*k}:{EF+2*k+1}]")
    for k in range(6): a(f"v_cvt_pk_bf16_f32 v{EF+k}, v{KACC+2*k}, v{KACC+2*k+1}")
    a(f"""
    ds_write_b64 v{KA0}, v[{EF}:{EF+1}]
    ds_write_b32 v{KA1a}, v{EF+2} offset:512
    ds_write_b32 v{KA1b}, v{EF+3} offset:512
    ds_write_b16 v{KA2}, v{EF+4} offset:1024
    ds_write_b16_d16_hi v{KA2}, v{EF+4} offset:1056
    ds_write_b16 v{KA2}, v{EF+5} offset:1088
    ds_write_b16_d16_hi v{KA2}, v{EF+5} offset:1120
    {l}:
    s_waitcnt lgkmcnt(0)
    """)

def expand(a, ch):
    P = XW; O_ = XW+12; A_ = XW+28
    for e in range(11): a(f"ds_read_u16 v{P+e}, v{GA+e} offset:{1536*ch}")
    if ch == 0:
        a(f"v_and_b32 v{A_}, 255, v0\nv_lshlrev_b32 v{A_}, 4, v{A_}\nv_add_u32 v{A_}, {LC}, v{A_}")
    a("s_waitcnt lgkmcnt(0)")
    for s_ in range(4):
        for k in range(4):
            e = 3 - s_ + 2*k
            a(f"v_lshl_or_b32 v{O_+4*s_+k}, v{P+e+1}, 16, v{P+e}")
        a(f"ds_write_b128 v{A_}, {vr(O_+4*s_)} offset:{4*PC*ch + s_*PC}")

def tails(a):
    T = XW+32
    l1 = a.label("t1"); l2 = a.label("t2")
    a(f"""
    s_cmp_lg_u32 s56, 0
    s_cbranch_scc1 {l1}
    v_lshrrev_b32 v{T}, 3, v1               ; ch*4+s
    v_and_b32 v{T+1}, 3, v{T}               ; s
    v_and_b32 v{T+2}, 7, v1
    v_lshlrev_b32 v{T+2}, 1, v{T+2}         ; i0
    v_sub_u32 v{T+3}, v{T+1}, v{T+2}        ; j0 = s-i0
    v_lshrrev_b32 v{T+4}, 5, v1
    v_mul_u32_u24 v{T+4}, 1536, v{T+4}
    v_max_i32 v{T+5}, 1, v{T+3}
    v_lshl_add_u32 v{T+4}, v{T+5}, 1, v{T+4}
    v_add_u32 v{T+4}, {KT-2}, v{T+4}
    ds_read_u16 v{T+6}, v{T+4} offset:2     ; K[max(j0,1)]
    ds_read_u16 v{T+7}, v{T+4}              ; K[max(j0,1)-1]
    v_mul_u32_u24 v{T}, {PC}, v{T}
    v_lshl_add_u32 v{T}, v{T+2}, 1, v{T}
    v_add_u32 v{T}, {LC+4096}, v{T}
    v_cmp_eq_u32 vcc, 0, v{T+3}
    v_cmp_lt_i32 s[40:41], 0, v{T+3}
    s_waitcnt lgkmcnt(0)
    v_lshl_or_b32 v{T+6}, v{T+7}, 16, v{T+6}    ; j0>=1: (K[j0], K[j0-1])
    v_cndmask_b32 v{T+7}, 0, v{T+7}, vcc        ; j0==0: (K[0], 0)
    v_cndmask_b32 v{T+6}, v{T+7}, v{T+6}, s[40:41]
    ds_write_b32 v{T}, v{T+6}
    s_branch {l2}
    {l1}:
    s_cmp_lg_u32 s56, 1
    s_cbranch_scc1 {l2}
    v_mov_b32 v{T}, 0
    v_mov_b32 v{T+1}, 0
    v_mov_b32 v{T+2}, 0
    v_mov_b32 v{T+3}, 0
    v_lshrrev_b32 v{T+4}, 5, v1
    v_mul_u32_u24 v{T+4}, {UP}, v{T+4}
    v_and_b32 v{T+5}, 31, v1
    v_min_u32 v{T+5}, 29, v{T+5}
    v_lshl_add_u32 v{T+4}, v{T+5}, 4, v{T+4}
    v_add_u32 v{T+4}, {LU}, v{T+4}
    ds_write_b128 v{T+4}, {vr(T)}
    {l2}:
    """)

def u_fetch(a, vm):
    T = XW+32
    a(f"""
    v_and_b32 v{T}, 31, v1
    v_lshlrev_b32 v{T}, 2, v{T}
    s_lshr_b32 s40, s2, 5
    s_lshl_b32 s40, s40, 7
    s_add_u32 s40, s40, {XF_OFF}
    """)
    poll(a, vm, T+1, T, S_WS, "s40", -1, f"v{VT}")
    T = XW+44
    a(f"""
    v_and_b32 v{T}, 255, v0
    v_lshlrev_b32 v{T}, 4, v{T}
    s_lshl_b32 s40, s2, 13
    s_add_u32 s40, s40, {XNT_OFF}
    s_add_u32 s41, s40, 4096
    buffer_load_dwordx4 {vr(UF)}, v{T}, {sr(S_WS)}, s40 offen sc1
    buffer_load_dwordx4 {vr(UF+4)}, v{T}, {sr(S_WS)}, s41 offen sc1
    v_add_u32 v{T}, {LU+480}, v{T}
    """)
def u_store(a):
    T = XW+44
    a(f"""
    s_waitcnt vmcnt(0)
    ds_write_b128 v{T}, {vr(UF)}
    ds_write_b128 v{T}, {vr(UF+4)} offset:{UP}
    """)

def g2_ids(a):
    a(f"""
    s_bfe_u32 s53, s2, 0x20001
    s_lshl_b32 s53, s53, 3
    s_lshr_b32 s40, s2, 5
    s_add_u32 s53, s53, s40
    s_and_b32 s54, s2, 1
    s_lshl_b32 s54, s54, 2
    s_bfe_u32 s40, s2, 0x20003
    s_add_u32 s54, s54, s40
    """)
VWD = 11
def wd_setup(a):
    a(f"""
    v_lshrrev_b32 v2, 4, v1
    v_bfe_u32 v3, v1, 1, 2
    v_xor_b32 v3, v3, v2
    v_and_b32 v4, 1, v1
    v_lshl_or_b32 v3, v3, 1, v4
    v_lshrrev_b32 v4, 3, v1
    v_lshlrev_b32 v4, 10, v4
    v_lshl_add_u32 v{VWD}, v3, 4, v4
    s_mul_i32 s51, s56, {14*32*1024}
    s_lshl_b32 s40, s54, 7
    s_add_u32 s51, s51, s40
    s_lshl_b32 s52, s56, 12
    """)
def wd_dma(a, vm, step, slot):
    for e in range(4):
        a(f"s_add_u32 m0, s52, {WSLOT[slot] + e*1024}\ns_add_u32 s49, s51, {step*32768 + e*8192}")
        t = f"buffer_load_dwordx4 v{VWD}, {sr(S_WD)}, s49 offen lds"
        if vm: vm.issue(t, "wd")
        else: a(t)

def chunks(lines, n):
    k = (len(lines) + n - 1)//n
    return [lines[i*k:(i+1)*k] for i in range(n)]

def g1_producer(a):
    vm = VM(a)
    a(f"""
    s_sub_u32 s56, s{S_WAVE}, 4
    v_lshrrev_b32 v2, 4, v1                 ; r
    v_bfe_u32 v3, v1, 1, 3
    s_and_b32 s41, s56, 1
    s_lshl_b32 s41, s41, 2
    v_xor_b32 v3, v3, v2
    v_xor_b32 v3, s41, v3
    v_and_b32 v4, 1, v1
    v_lshl_or_b32 v3, v3, 1, v4
    v_mul_u32_u24 v4, 3584, v2
    v_lshl_add_u32 v8, v3, 4, v4            ; vW
    v_and_b32 v3, 7, v1
    v_xor_b32 v3, v3, v2
    v_lshrrev_b32 v4, 3, v1
    v_lshlrev_b32 v4, 10, v4
    v_lshl_add_u32 v9, v3, 4, v4
    v_xor_b32 v10, 64, v9
    v_add_u32 v10, 0x1c00, v10
    v_add_u32 v12, {4*3584-2048}, v8
    s_mul_i32 s42, s56, {8*3584}
    s_lshl_b32 s43, s7, 8
    s_add_u32 s42, s42, s43
    s_add_u32 s41, s42, {512*3584}
    s_mul_i32 s47, s60, {64*3584}
    s_add_u32 s47, s47, s42
    s_lshl_b32 s43, s6, 17
    s_lshl_b32 s44, s56, 14
    s_add_u32 s43, s43, s44
    s_lshl_b32 s46, s60, 7
    s_lshl_b32 s44, s56, 12
    s_lshl_b32 s45, s56, 11
    s_add_u32 s45, s45, {XR}
    s_mov_b32 s50, s41
    s_waitcnt lgkmcnt(0)
    s_sub_u32 s{S_WU}, s{S_WU}, 1024
    s_subb_u32 s{S_WU+1}, s{S_WU+1}, 0
    """)
    def xhalf(h, tag):
        sig, hh = h >> 1, h & 1
        pre = f"s_add_u32 m0, s45, {(sig&3)*SLOT + hh*8192}\n"
        if hh == 0: pre += "s_add_u32 s48, s46, s43"
        else: pre += "s_add_u32 s48, s48, 0x10000\ns_add_u32 s46, s46, 128\ns_and_b32 s46, s46, 0x3ff"
        return [(pre, f"buffer_load_dwordx4 v9, {sr(S_X)}, s48 offen lds", tag),
                ("", f"buffer_load_dwordx4 v10, {sr(S_X)}, s48 offen offset:1024 lds", tag)]
    def group(g):
        b = (g % NW)*SLOT
        adv = f"s_add_u32 s47, s47, {32*3584}\ns_cmp_eq_u32 s47, s50\ns_cselect_b32 s47, s42, s47" if g else "s_nop 0"
        o = [(f"s_add_u32 m0, s44, {b}\n{adv}", f"buffer_load_dwordx4 v8, {sr(S_WG)}, s47 offen lds", g),
             ("", f"buffer_load_dwordx4 v8, {sr(S_WU)}, s47 offen offset:1024 lds", g),
             ("", f"buffer_load_dwordx4 v12, {sr(S_WG)}, s47 offen offset:2048 lds", g),
             ("", f"buffer_load_dwordx4 v12, {sr(S_WU)}, s47 offen offset:3072 lds", g)]
        if g < 15: o += xhalf(g+1, g)
        return o
    def wdg(step, slot):
        return [(f"s_add_u32 m0, s52, {WSLOT[slot] + e*1024}\ns_add_u32 s49, s51, {step*32768 + e*8192}", f"buffer_load_dwordx4 v{VWD}, {sr(S_WD)}, s49 offen lds", "wd") for e in range(4)]
    def emit(dmas, lines):
        n = len(dmas)
        cuts = [i*len(lines)//n for i in range(n)] if n else []
        k = 0
        for i in range(len(lines)+1):
            while k < n and cuts[k] == i:
                a(dmas[k][0]); vm.issue(dmas[k][1], dmas[k][2]); k += 1
            if i < len(lines): a.lines.append(lines[i])
    stamp(a, "p_start")
    emit(xhalf(0, 0) + group(0) + group(1) + group(2), [])
    a("F_prod2:")
    late_loads(a)
    kgen_param_loads(a, vm)
    kgen_addr_setup(a); g2_ids(a); wd_setup(a); a(f"s_mov_b32 s55, {PX[1]}\ns_mov_b32 s{S_ROLE}, 0")
    b2 = Asm("B2"); kgen_body(b2)
    K0, K1 = 2, 13
    c2 = chunks(b2.lines, K1-K0+1)
    bg = {K0+k: c2[k] for k in range(K1-K0+1)}
    issue_after = {0:[3], 1:[4,5]}
    for s in range(2, 12): issue_after[s] = [s+4]
    for s in range(17):
        if s <= 15: vm.wait(s)
        if s == 16: a("s_waitcnt lgkmcnt(0)")
        a("s_barrier")
        if s == 0: stamp(a, "p_b0")
        stamp(a, f"pb{s}")
        if s == K0: vm.wait("par", "lgkmcnt(0)")
        dm = []
        for g in issue_after.get(s, []): dm += group(g)
        for k in range(7):
            if WAVAIL[k] == s: dm += wdg(k, k)
        if s == 14: kgen_send(a)
        if s == 15: kgen_recv(a); granule_check(a, vm)
        emit(dm, bg.get(s, []))
        if s == 8:
            a(f"v_and_b32 v2, 31, v1\nv_lshlrev_b32 v2, 2, v2")
            vm.issue(f"buffer_load_dword v{VT}, v2, {sr(S_DBG)}, 0 offen sc1", "tag")
        if s == 11: granule_issue(a, vm)
    stamp(a, "p_b16")
    expand(a, 0)
    u_fetch(a, vm)
    expand(a, 1)
    tails(a)
    u_store(a)

def granule_addr(a):
    a(f"""
    v_lshlrev_b32 v3, 4, v1
    s_lshl_b32 s40, s7, 10
    s_mul_i32 s41, s56, {1792*8}
    s_add_u32 s40, s40, s41
    s_add_u32 s40, s40, {CS_G}
    s_lshl_b32 s41, s6, 10
    s_add_u32 s41, s41, {ST_G}
    s_cmp_lt_u32 s56, 2
    s_cselect_b32 s50, s40, s41
    """)
def granule_issue(a, vm):
    granule_addr(a)
    vm.issue(f"buffer_load_dwordx4 {vr(GF)}, v3, {sr(S_WS)}, s50 offen sc1", "gr")
def granule_check(a, vm):
    lt = a.label("tagok"); lr = a.label("grre"); lo = a.label("grok")
    vm.wait("gr")
    a(f"v_cmp_eq_u32 vcc, 0, v{VT}\ns_cbranch_vccz {lt}")
    get_tags(a, None, VT, 2)
    a(f"{lt}:\nv_readfirstlane_b32 s{S_TAG}, v{VT}")
    a(f"""
    s_mul_i32 s40, s56, 14
    s_add_u32 s40, s40, s7
    s_lshl_b32 s41, s6, 1
    s_cmp_lt_u32 s56, 2
    s_cselect_b32 s40, s40, s41
    s_cselect_b32 s41, 0, 1
    s_add_u32 s41, s41, s40
    s_nop 2
    v_readlane_b32 s40, v{VT}, s40
    v_readlane_b32 s41, v{VT}, s41
    v_cmp_gt_u32 vcc, 32, v1
    v_mov_b32 v5, s40
    v_mov_b32 v4, s41
    v_cndmask_b32 v4, v4, v5, vcc
    s_mov_b32 s58, {POLL_MAX}
    {lr}:
    v_cmp_ne_u32 vcc, v4, v{GF+1}
    v_cmp_ne_u32 s[40:41], v4, v{GF+3}
    s_or_b64 vcc, vcc, s[40:41]
    s_cbranch_scc0 {lo}
    buffer_load_dwordx4 {vr(GF)}, v3, {sr(S_WS)}, s50 offen sc1
    s_waitcnt vmcnt(0)
    s_sub_u32 s58, s58, 1
    s_cmp_lg_u32 s58, 0
    s_cbranch_scc1 {lr}
    {lo}:
    """)
    l2 = a.label("gst"); l3 = a.label("gdn")
    a(f"""
    s_cmp_lt_u32 s56, 2
    s_cbranch_scc0 {l2}
    s_lshl_b32 s40, s56, 9
    s_add_u32 s40, s40, {AUXL}
    v_lshl_add_u32 v4, v1, 3, s40
    ds_write2_b32 v4, v{GF}, v{GF+2} offset0:0 offset1:1
    s_branch {l3}
    {l2}:
    v_lshlrev_b32 v{GF}, 16, v{GF}
    v_lshlrev_b32 v{GF+2}, 16, v{GF+2}
    v_xor_b32 v{GF}, 0x80000000, v{GF}
    v_xor_b32 v{GF+2}, 0x80000000, v{GF+2}
    v_and_b32 v4, 7, v1                     ; n/2
    v_lshlrev_b32 v4, 5, v4
    v_bfe_u32 v5, v1, 3, 2                  ; nt
    v_lshl_add_u32 v4, v5, 2, v4
    v_lshrrev_b32 v5, 5, v1                 ; nh
    v_lshl_add_u32 v4, v5, 8, v4
    v_add_u32 v4, {AUXL+1024}, v4
    ds_write2_b32 v4, v{GF}, v{GF+2} offset0:0 offset1:4
    v_mov_b32 v4, {AUXL+1536}
    v_mov_b32 v5, s{S_TAG}
    ds_write_b32 v4, v5
    {l3}:
    """)

ACC = 128
def acc(t, mat, nt): return ACC + ((nt*4+t)*2+mat)*4
def FA(b, t, mat): return 32 + 48*b + (t*2+mat)*4
def FB(b, nt): return 32 + 48*b + 32 + 4*nt
def g1_consumer(a):
    VA, VB = 8, 12
    a(f"""
    s_and_b32 s40, s{S_WAVE}, 1             ; mh
    s_lshr_b32 s41, s{S_WAVE}, 1            ; nh
    v_lshrrev_b32 v2, 4, v1
    v_bfe_u32 v3, v1, 2, 2
    v_and_b32 v4, 3, v1
    v_and_b32 v5, 1, v2
    v_lshl_or_b32 v5, v5, 2, v3
    s_lshl_b32 s42, s40, 2
    v_xor_b32 v5, s42, v5
    v_lshlrev_b32 v5, 5, v5
    v_lshl_add_u32 v5, v4, 3, v5
    v_lshl_add_u32 v5, v3, 8, v5
    v_lshl_add_u32 v{VA}, v2, 12, v5
    v_xor_b32 v{VA+1}, 32, v{VA}
    v_xor_b32 v{VA+2}, 64, v{VA}
    v_xor_b32 v{VA+3}, 96, v{VA}
    v_and_b32 v6, 15, v1
    v_lshrrev_b32 v7, 1, v6
    v_xor_b32 v7, v7, v2
    v_lshlrev_b32 v7, 4, v7
    v_lshl_add_u32 v7, v6, 7, v7
    s_lshl_b32 s42, s41, 13
    s_add_u32 s42, s42, {XR}
    v_add_u32 v{VB}, s42, v7
    v_xor_b32 v{VB+1}, 64, v{VB}
    s_lshl_b32 s42, s40, 8
    s_add_u32 s42, s42, {AUXL}
    v_lshl_add_u32 v14, v2, 4, s42          ; vCS
    s_lshl_b32 s42, s41, 8
    s_add_u32 s42, s42, {AUXL+1024}
    v_lshl_add_u32 v15, v6, 4, s42          ; vST
    v_lshlrev_b32 v16, 4, v1
    s_lshl_b32 s42, s6, 1
    s_add_u32 s42, s42, s41
    s_lshl_b32 s57, s42, 7
    s_mul_i32 s42, s42, 28
    s_lshl_b32 s43, s7, 1
    s_add_u32 s43, s43, s40                 ; 2j+mh
    s_add_u32 s42, s42, s43
    s_lshl_b32 s50, s42, 13
    s_add_u32 s51, s50, 4096
    s_lshl_b32 s43, s43, 2
    s_add_u32 s57, s57, s43
    s_add_u32 s57, s57, {HF_OFF}
    s_mov_b32 s44, 0
    s_mov_b32 s45, 0
    s_mov_b32 s52, {SLOT}
    s_mov_b32 s{S_ROLE}, 1
    """)
    assert H_OFF == 0
    a("s_setprio 3")
    if O.code_pf:
        a(f"""
        s_getpc_b64 s[46:47]
        F_pc:
        s_sub_u32 s46, s46, F_pc-{O.kname}
        s_subb_u32 s47, s47, 0
        s_lshr_b32 s48, s2, 3
        s_sub_u32 s48, s48, 4
        s_and_b32 s48, s48, 7
        s_lshl_b32 s48, s48, 2
        s_add_u32 s48, s48, s{S_WAVE}
        s_lshl_b32 s48, s48, 10
        s_min_u32 s48, s48, F_last-{O.kname}-1024
        v_add_u32 v17, s48, v16
        global_load_dwordx4 v[24:27], v17, s[46:47]
        """)
    a("s_waitcnt lgkmcnt(0)")
    late_loads(a)
    g2_ids(a)
    for r in range(ACC, 256, 2): a(f"v_pk_mov_b32 v[{r}:{r+1}], 0, 0" if False else f"v_mov_b64 v[{r}:{r+1}], 0")
    def reads(b, sp):
        out = [f"ds_read_b128 {vr(FB(b,nt))}, v{VB+sp} offset:{nt*2048}" for nt in range(4)]
        for t in range(4):
            for mat in range(2):
                for rho in range(2):
                    d = FA(b,t,mat)+2*rho
                    out.append(f"ds_read_b64_tr_b16 v[{d}:{d+1}], v{VA+t} offset:{rho*2048+mat*1024}")
        return out
    def advW():
        return [f"s_add_u32 s44, s44, 1", f"s_cmp_eq_u32 s44, {NW}", f"s_cselect_b32 s46, {-(NW-1)*SLOT & 0xffffffff}, s52", f"s_cselect_b32 s44, 0, s44"] + \
               [f"v_add_u32 v{VA+t}, s46, v{VA+t}" for t in range(4)]
    def advX():
        return [f"s_add_u32 s45, s45, 1", f"s_cmp_eq_u32 s45, 4", f"s_cselect_b32 s47, {-3*SLOT & 0xffffffff}, s52", f"s_cselect_b32 s45, 0, s45"] + \
               [f"v_add_u32 v{VB+k}, s47, v{VB+k}" for k in range(2)]
    def mfma(b, t, mat, nt):
        c = acc(t,mat,nt)
        return f"v_mfma_f32_16x16x32_bf16 {vr(c)}, {vr(FA(b,t,mat))}, {vr(FB(b,nt))}, {vr(c)}"
    def stage(b, rd, late, post=()):
        ms = [mfma(b,t,mat,nt) for t in range(4) for mat in range(2) for nt in range(4)]
        late = list(late); post = list(post)
        for i, m in enumerate(ms):
            a(m)
            if i < len(rd): a(rd[i])
            elif i < 27 and late:
                for _ in range(2):
                    if late: a(late.pop(0))
            if i == 27: a("s_waitcnt lgkmcnt(0)\ns_barrier")
            if i >= 27:
                for _ in range(2):
                    if post: a(post.pop(0))
        assert not late and not post
    a("s_waitcnt lgkmcnt(0)\ns_barrier")
    stamp(a, "c_b0")
    for r in reads(0, 0): a(r)
    for x in advW(): a(x)
    a("s_waitcnt lgkmcnt(0)\ns_barrier")
    a("s_mov_b32 s48, 7")
    lp = a.label("g1loop")
    a(f"{lp}:")
    stage(0, reads(1, 1), advW() + advX())
    stage(1, reads(0, 0), advW())
    a(f"s_sub_u32 s48, s48, 1\ns_cmp_lg_u32 s48, 0\ns_cbranch_scc1 {lp}")
    NM = 20
    csr = lambda t, mat: f"ds_read_b128 {vr(FA(0,t,mat))}, v14 offset:{mat*512+t*64}"
    post = [f"ds_read_b128 {vr(NM)}, v15"] + [csr(t, mat) for t in range(3) for mat in range(2)]
    stage(0, reads(1, 1), [], post)
    stamp(a, "c_s15")
    a(csr(3,0)); a(csr(3,1))
    def corr(ksl, nt):
        o = []
        for t in (2*ksl, 2*ksl+1):
            for mat in range(2):
                for hf in range(2):
                    c = acc(t,mat,nt)+2*hf; cs = FA(0,t,mat)+2*hf
                    nm = NM + (nt & ~1); sel = nt & 1
                    o.append(f"v_pk_fma_f32 v[{c}:{c+1}], v[{cs}:{cs+1}], v[{nm}:{nm+1}], v[{c}:{c+1}] op_sel:[0,{sel},0] op_sel_hi:[1,{sel},1]")
        return o
    def fin(ksl, nt):
        o = []
        for t in (2*ksl, 2*ksl+1):
            for hf in range(2):
                g = acc(t,0,nt)+2*hf; u = acc(t,1,nt)+2*hf
                o.append(f"v_pk_mul_f32 v[{g}:{g+1}], v[{g}:{g+1}], v[{u}:{u+1}]")
        d = acc(2*ksl,1,nt); k = 0
        for t in (2*ksl, 2*ksl+1):
            for hf in range(2):
                g = acc(t,0,nt)+2*hf
                o.append(f"v_cvt_pk_bf16_f32 v{d+k}, v{g}, v{g+1}"); k += 1
        o.append(f"buffer_store_dwordx4 {vr(d)}, v16, {sr(S_WS)}, s{50+ksl} offen offset:{nt*1024} sc1")
        return o
    groups = [(ksl, nt) for ksl in range(2) for nt in range(4)]
    for gi, (ksl, nt) in enumerate(groups):
        fill = []
        if gi == 1: a("s_waitcnt lgkmcnt(0)")
        if 1 <= gi <= 6: fill = corr(*groups[gi+1])
        if gi == 7: fill = corr(*groups[0])
        mm = [mfma(1, t, mat, nt) for t in (2*ksl, 2*ksl+1) for mat in range(2)]
        for k, m in enumerate(mm):
            a(m)
            for x in fill[2*k:2*k+2]: a(x)
    for x in fin(*groups[0]): a(x)
    for x in corr(*groups[1]) + fin(*groups[1]): a(x)
    for gi in range(2, 8):
        for x in fin(*groups[gi]): a(x)
    stamp(a, "c_end")


def dpp_reduce(a, regs):
    for ctl in ("row_shr:1 row_mask:0xf bank_mask:0xf", "row_shr:2 row_mask:0xf bank_mask:0xf", "row_shr:4 row_mask:0xf bank_mask:0xf",
                "row_shr:8 row_mask:0xf bank_mask:0xf", "row_bcast:15 row_mask:0xa bank_mask:0xf", "row_bcast:31 row_mask:0xc bank_mask:0xf"):
        for r in regs: a(f"v_add_f32_dpp v{r}, v{r}, v{r} {ctl}")

def aux_role(a):
    X = 8; F = 40; W = 104; CS = 168; SUM = 176; T = 192; SEL = 172
    a(f"""
    s_memrealtime s[40:41]
    v_lshlrev_b32 v2, 4, v1
    s_lshl_b32 s44, s2, 6
    s_lshl_b32 s45, s{S_WAVE}, 3
    s_add_u32 s44, s44, s45
    s_lshl_b32 s42, s44, 10
    s_add_u32 s43, s42, 4096
    s_cmp_ge_u32 s2, 14
    s_cselect_b32 s46, 14, 0
    s_sub_u32 s46, s2, s46
    s_lshl_b32 s45, s46, 8
    s_mul_i32 s46, s{S_WAVE}, {64*3584}
    s_add_u32 s45, s45, s46
    v_lshrrev_b32 v3, 4, v1
    v_mul_u32_u24 v3, 3584, v3
    v_and_b32 v4, 15, v1
    v_lshl_add_u32 v3, v4, 4, v3
    s_waitcnt lgkmcnt(0)
    """)
    for i in range(8):
        a(f"buffer_load_dwordx4 {vr(X+4*i)}, v2, {sr(S_X)}, s{42+i//4} offen offset:{(i%4)*1024}")
    a(f"""
    s_cmp_ge_u32 s2, 14
    s_cselect_b32 s36, s{S_WU}, s{S_WG}
    s_cselect_b32 s37, s{S_WU+1}, s{S_WG+1}
    s_cmp_ge_u32 s2, 28
    s_cselect_b32 s38, 0, s{S_WG+2}
    s_mov_b32 s39, 0x20000
    s_mov_b32 s3, s40
    """)
    late_loads(a)
    lt = a.label("atag")
    a(f"""
    s_or_b32 s3, s3, 1
    v_mov_b32 v5, {S_ + 16380}
    v_mov_b32 v6, s3
    s_cmp_lg_u32 s{S_WAVE}, 0
    s_cbranch_scc1 {lt}
    ds_write_b32 v5, v6
    s_lshl_b32 s40, s2, 2
    v_mov_b32 v7, 0
    s_mov_b64 exec, 1
    buffer_store_dword v6, v7, {sr(S_DBG)}, s40 offen sc1
    s_mov_b64 exec, -1
    {lt}:
    s_waitcnt lgkmcnt(0)
    s_barrier
    ds_read_b32 v6, v5
    """)
    def wl(i):
        a(f"buffer_load_dwordx4 {vr(W+4*i)}, v3, s[36:39], s45 offen")
        if i < 15: a(f"s_add_u32 s45, s45, {4*3584}")
    for i in range(4): wl(i)
    a(f"""
    v_and_b32 v7, 1, v1
    v_lshlrev_b32 v7, 4, v7
    v_mov_b32 v{T}, 0x3f80
    v_lshlrev_b32 v7, v7, v{T}
    v_lshrrev_b32 v4, 1, v4
    """)
    for k in range(4): a(f"v_cmp_eq_u32 vcc, {k}, v4\ns_nop 1\nv_cndmask_b32 v{SEL+k}, 0, v7, vcc")
    a(f"s_waitcnt vmcnt(4) lgkmcnt(0)\nv_readfirstlane_b32 s3, v6")
    stamp(a, "a_x")
    for i in range(8):
        for j in range(4):
            a(f"v_lshlrev_b32 v{F+8*i+2*j}, 16, v{X+4*i+j}")
            a(f"v_and_b32 v{F+8*i+2*j+1}, 0xffff0000, v{X+4*i+j}")
        wl(4+i)
    pr = lambda r: f"v[{r}:{r+1}]"
    for i in range(8): a(f"v_pk_add_f32 {pr(SUM+2*i)}, {pr(F+8*i)}, {pr(F+8*i+2)}")
    wl(12)
    for j in (4, 6):
        for i in range(8): a(f"v_pk_add_f32 {pr(SUM+2*i)}, {pr(SUM+2*i)}, {pr(F+8*i+j)}")
        wl(11+j//2)
    for i in range(8): a(f"v_add_f32 v{SUM+2*i}, v{SUM+2*i}, v{SUM+2*i+1}")
    wl(15)
    dpp_reduce(a, [SUM+2*i for i in range(8)])
    for i in range(8): a(f"v_readlane_b32 s{76+2*i}, v{SUM+2*i}, 63")
    for i in range(8): a(f"v_writelane_b32 v{T}, s{76+2*i}, {i}")
    a(f"""
    v_mul_f32 v{T}, 0x3b000000, v{T}
    v_cvt_pk_bf16_f32 v{T+1}, v{T}, v{T}
    v_and_b32 v{T+1}, 0xffff0000, v{T+1}      ; m_bf
    v_sub_f32 v{T+2}, v{T}, v{T+1}
    """)
    for i in range(8): a(f"v_readlane_b32 s{76+2*i}, v{T+1}, {i}")
    for i in range(8):
        for j in range(0, 8, 2):
            a(f"v_pk_add_f32 {pr(F+8*i+j)}, {pr(F+8*i+j)}, s[{76+2*i}:{77+2*i}] op_sel_hi:[1,0] neg_lo:[0,1] neg_hi:[0,1]")
    for i in range(8): a(f"v_pk_mul_f32 {pr(SUM+2*i)}, {pr(F+8*i)}, {pr(F+8*i)}")
    for j in (2, 4, 6):
        for i in range(8): a(f"v_pk_fma_f32 {pr(SUM+2*i)}, {pr(F+8*i+j)}, {pr(F+8*i+j)}, {pr(SUM+2*i)}")
    for i in range(8): a(f"v_add_f32 v{SUM+2*i}, v{SUM+2*i}, v{SUM+2*i+1}")
    dpp_reduce(a, [SUM+2*i for i in range(8)])
    for i in range(8): a(f"v_readlane_b32 s{76+2*i}, v{SUM+2*i}, 63")
    for i in range(8): a(f"v_writelane_b32 v{T+3}, s{76+2*i}, {i}")
    a(f"""
    v_mul_f32 v{T+3}, 0x3b000000, v{T+3}
    v_fma_f32 v{T+3}, -v{T+2}, v{T+2}, v{T+3}
    v_max_f32 v{T+3}, 0, v{T+3}
    v_cvt_pk_bf16_f32 v{T+3}, v{T+3}, v{T+3}
    v_and_b32 v{T+3}, 0xffff0000, v{T+3}
    v_add_f32 v{T+3}, 0x3727c5ac, v{T+3}
    v_cvt_pk_bf16_f32 v{T+3}, v{T+3}, v{T+3}
    v_and_b32 v{T+3}, 0xffff0000, v{T+3}
    v_sqrt_f32 v{T+3}, v{T+3}
    v_lshlrev_b32 v5, 3, v1
    v_cvt_pk_bf16_f32 v{T+6}, v{T+1}, v{T+3}      ; {{m, s}} packed
    v_mov_b32 v{T+7}, s3
    s_lshl_b32 s46, s44, 3
    s_add_u32 s46, s46, {ST_G}
    s_mov_b64 exec, 0xff
    buffer_store_dwordx2 v[{T+6}:{T+7}], v5, {sr(S_WS)}, s46 offen sc1
    s_mov_b64 exec, -1
    v_and_b32 v{T+3}, 0xffff0000, v{T+6}
    v_rcp_f32 v{T+4}, v{T+3}
    s_and_b32 s46, s{S_WAVE}, 1
    v_fma_f32 v{T+5}, -v{T+3}, v{T+4}, 1.0
    v_fma_f32 v{T+4}, v{T+5}, v{T+4}, v{T+4}      ; rs
    s_lshl_b32 s46, s46, 7
    s_lshl_b32 s47, s{S_WAVE}, 13
    s_add_u32 s46, s46, s47
    s_lshr_b32 s47, s{S_WAVE}, 2
    s_lshl_b32 s47, s47, 4
    s_add_u32 s46, s46, s47
    v_xor_b32 v7, s46, v2
    """)
    stamp(a, "a_st")
    for i in range(8): a(f"v_readlane_b32 s{76+2*i}, v{T+4}, {i}")
    for i in range(8):
        for j in range(4): a(f"v_cvt_pk_bf16_f32 v{X+4*i+j}, v{F+8*i+2*j}, v{F+8*i+2*j+1}")
        for j in range(4):
            a(f"v_lshlrev_b32 v{F+8*i+2*j}, 16, v{X+4*i+j}")
            a(f"v_and_b32 v{F+8*i+2*j+1}, 0xffff0000, v{X+4*i+j}")
        for j in range(0, 8, 2): a(f"v_pk_mul_f32 {pr(F+8*i+j)}, {pr(F+8*i+j)}, s[{76+2*i}:{77+2*i}] op_sel_hi:[1,0]")
        for j in range(4): a(f"v_cvt_pk_bf16_f32 v{X+4*i+j}, v{F+8*i+2*j}, v{F+8*i+2*j+1}")
        a(f"v_xor_b32 v{T+8}, {(i&3)<<5}, v7")
        a(f"ds_write_b128 v{T+8}, {vr(X+4*i)} offset:{i*1024}")
    for i in range(16):
        a(f"s_waitcnt vmcnt({16-i})")
        a(f"v_mfma_f32_16x16x32_bf16 {vr(CS)}, {vr(SEL)}, {vr(W+4*i)}, {vr(CS) if i else 0}")
    a(f"""
    v_and_b32 v4, 15, v1
    v_lshlrev_b32 v4, 5, v4
    v_bfe_u32 v5, v1, 4, 1
    v_lshl_add_u32 v4, v5, 4, v4
    s_lshl_b32 s46, s{S_WAVE}, 9
    s_add_u32 s46, s46, 0x10000
    v_add_u32 v4, s46, v4
    s_mov_b32 exec_hi, 0
    s_nop 1
    ds_write_b128 v4, {vr(CS)}
    s_mov_b64 exec, -1
    s_waitcnt lgkmcnt(0)
    s_barrier
    """)
    stamp(a, "a_bar")
    l4 = a.label("nocs3")
    a(f"s_cmp_ge_u32 s2, 28\ns_cbranch_scc1 {l4}\ns_cmp_ge_u32 s{S_WAVE}, 2\ns_cbranch_scc1 {l4}")
    a(f"v_lshlrev_b32 v5, 2, v0\nv_add_u32 v5, 0x10000, v5")
    for p in range(4): a(f"ds_read2st64_b32 v[{W+2*p}:{W+2*p+1}], v5 offset0:{4*p} offset1:{4*p+2}")
    a(f"""
    v_lshlrev_b32 v6, 3, v0
    s_lshl_b32 s46, s2, 10
    s_add_u32 s46, s46, {CS_G}
    s_waitcnt lgkmcnt(0)
    v_pk_add_f32 {pr(W)}, {pr(W)}, {pr(W+2)}
    v_pk_add_f32 {pr(W+4)}, {pr(W+4)}, {pr(W+6)}
    v_pk_add_f32 {pr(W)}, {pr(W)}, {pr(W+4)}
    v_add_f32 v{W}, v{W}, v{W+1}
    v_mov_b32 v{W+1}, s3
    buffer_store_dwordx2 {pr(W)}, v6, {sr(S_WS)}, s46 offen sc1
    {l4}:
    v_lshrrev_b32 v3, 4, v1                 ; g
    v_bfe_u32 v4, v1, 2, 2                  ; r
    v_and_b32 v5, 1, v1                     ; c'&1
    v_and_b32 v6, 1, v3
    v_lshl_or_b32 v6, v6, 2, v4
    s_lshl_b32 s46, s{S_WAVE}, 2
    v_xor_b32 v6, s46, v6
    v_lshlrev_b32 v6, 5, v6
    v_lshl_add_u32 v6, v5, 3, v6
    v_lshl_add_u32 v6, v4, 10, v6
    v_lshl_add_u32 v6, v3, 13, v6
    v_bfe_u32 v5, v1, 1, 1                  ; o = c'>>1
    v_mul_u32_u24 v5, 0x8010, v5
    v_add_u32 v6, v6, v5
    v_and_b32 v7, 7, v1
    v_lshlrev_b32 v7, 12, v7
    v_lshl_add_u32 v7, v3, 4, v7
    v_bfe_u32 v5, v1, 3, 1
    v_lshl_add_u32 v7, v5, 6, v7
    s_lshl_b32 s46, s{S_WAVE}, 18
    s_lshl_b32 s47, s2, 7
    s_add_u32 s46, s46, s47
    s_add_u32 s46, s46, {XNT_OFF}
    """)
    for tt in range(8): a(f"v_xor_b32 v{T+tt}, {tt<<4}, v6")
    for tt in range(8):
        for rho in range(2):
            d = F + tt*4 + rho*2
            a(f"ds_read_b64_tr_b16 v[{d}:{d+1}], v{T+tt} offset:{rho*4096}")
    for tt in range(8):
        a(f"s_waitcnt lgkmcnt({14-2*tt})")
        a(f"buffer_store_dwordx4 {vr(F+tt*4)}, v7, {sr(S_WS)}, s46 offen sc1")
        if tt < 7: a(f"s_add_u32 s46, s46, 0x8000")
    a(f"""
    s_lshl_b32 s46, s{S_WAVE}, 7
    s_lshl_b32 s47, s2, 2
    s_add_u32 s46, s46, s47
    s_add_u32 s46, s46, {XF_OFF}
    v_mov_b32 v6, s3
    v_mov_b32 v7, 0
    s_waitcnt vmcnt(0)
    s_mov_b64 exec, 1
    buffer_store_dword v6, v7, {sr(S_WS)}, s46 offen sc1
    s_mov_b64 exec, -1
    """)
    stamp(a, "a_end")
    lp = a.label("auxp"); lb = a.label("auxb")
    g2_ids(a)
    a(f"""
    s_mov_b32 s{S_ROLE}, 0
    s_barrier
    s_cmp_ge_u32 s{S_WAVE}, 4
    s_cbranch_scc1 {lp}
    s_mov_b32 s40, 17
    {lb}:
    s_barrier
    s_sub_u32 s40, s40, 1
    s_cmp_lg_u32 s40, 0
    s_cbranch_scc1 {lb}
    s_branch F_ph2
    {lp}:
    s_sub_u32 s56, s{S_WAVE}, 4
    s_mov_b32 s{S_X+2}, 0
    s_mov_b32 s{S_WG+2}, 0
    s_mov_b32 s{S_WU+2}, 0
    s_mov_b32 s6, 0
    s_mov_b32 s7, 0
    s_mov_b32 s60, 0
    s_mov_b32 s42, 0
    s_mov_b32 s43, 0
    s_lshl_b32 s44, s56, 12
    s_lshl_b32 s45, s56, 11
    s_add_u32 s45, s45, {XR}
    s_mov_b32 s46, 0
    s_mov_b32 s47, 0
    s_mov_b32 s48, 0
    s_mov_b32 s50, 0
    v_mov_b32 v8, 0
    v_mov_b32 v9, 0
    v_mov_b32 v10, 0
    v_mov_b32 v12, 0
    s_branch F_prod2
    """)

GROUPS = ((7,4,3,0),(6,5,2,1))
def phase2(a):
    VA, VP = 2, 6
    VH, VX, VO, VAT = 10, 12, 13, 14
    CA, CB, CU, CR, CS_ = 15, 16, 17, 18, 19
    T = 20
    WA = 32
    CAC = 144; CPOOL = list(range(160, 256, 4))
    AC = 144; HF = 176
    a(f"""
    F_ph2:
    s_setprio 0
    s_mov_b32 s{S_X+2}, {2048*512*2}
    s_lshr_b32 s43, s{S_WAVE}, 1                ; kq
    s_and_b32 s44, s{S_WAVE}, 1                 ; lh
    v_lshrrev_b32 v{T}, 4, v1                   ; g
    v_and_b32 v{T+1}, 15, v1                    ; n
    v_bfe_u32 v{T+2}, v1, 2, 2                  ; r
    v_and_b32 v{T+3}, 1, v{T}
    v_lshrrev_b32 v{T+4}, 1, v{T+2}
    v_lshl_or_b32 v{T+3}, v{T+3}, 1, v{T+4}
    v_xor_b32 v{T+3}, s43, v{T+3}
    v_lshlrev_b32 v{T+3}, 5, v{T+3}
    v_and_b32 v{T+4}, 3, v1
    v_lshl_add_u32 v{T+3}, v{T+4}, 3, v{T+3}
    v_lshrrev_b32 v{T+5}, 2, v1
    v_lshl_add_u32 v{T+3}, v{T+5}, 7, v{T+3}
    s_lshl_b32 s50, s43, 12
    v_add_u32 v{VA}, s50, v{T+3}
    v_xor_b32 v{VA+1}, 32, v{VA}
    v_xor_b32 v{VA+2}, 64, v{VA}
    v_xor_b32 v{VA+3}, 96, v{VA}
    """)
    for t in range(4): a(f"v_add_u32 v{VP+t}, 0x18000, v{VA+t}")
    lw = a.label("p0w")
    a(f"s_cmp_eq_u32 s{S_ROLE}, 1\ns_cbranch_scc1 {lw}\ns_waitcnt vmcnt(0)\n{lw}:\ns_waitcnt lgkmcnt(0)\ns_barrier")
    stamp(a, "P0")
    def wrd(reg, slot, t):
        base = WSLOT[slot]
        o = []
        for rho in range(2):
            off = base + rho*2048
            if off + 0 >= 65536+16384: v = VP+t; off -= 0x18000
            elif off >= 65536: v = None
            else: v = VA+t
            o.append((v, off))
        return o
    V3 = T+6
    for t in range(4): a(f"v_add_u32 v{V3+t}, 0x8000, v{VA+t}")
    def wread(reg, slot, t):
        base = WSLOT[slot]; o = []
        for rho in range(2):
            off = base + rho*2048
            if off >= XR: v, off = VP+t, off - 0x18000
            elif off >= 65536 - 4096: v, off = V3+t, off - 0x8000
            else: v = VA+t
            o.append(f"ds_read_b64_tr_b16 v[{reg+2*rho}:{reg+2*rho+1}], v{v} offset:{off}")
        return o
    a(f"v_mov_b32 v{T+10}, {AUXL+1536}\nds_read_b32 v{T+11}, v{T+10}\nv_mov_b32 v{T+10}, 0")
    for s in range(7):
        for t in range(4):
            for x in wread(WA+16*s+4*t, s, t): a(x)
    a(f"""
    s_lshr_b32 s45, s{S_WAVE}, 2                ; ch
    s_bfe_u32 s46, s{S_WAVE}, 0x10001           ; hc
    v_mul_u32_u24 v{CA}, {PC}, v{T+4}
    v_lshl_add_u32 v{CA}, v{T}, 4, v{CA}
    v_and_b32 v{T+2}, 12, v1
    v_lshlrev_b32 v{T+2}, 1, v{T+2}
    v_sub_u32 v{CA}, v{CA}, v{T+2}
    s_mul_i32 s47, s45, {4*PC}
    s_lshl_b32 s48, s46, 8
    s_sub_u32 s47, s47, s48
    s_add_u32 s47, s47, {LC + 2*(2048-16-1792) - 192}
    v_add_u32 v{CA}, s47, v{CA}
    v_lshlrev_b32 v{CU}, 5, v{T+1}
    v_lshl_add_u32 v{CB}, v{T}, 4, v{CU}
    v_lshl_add_u32 v{CS_}, v{T}, 3, v{CU}
    s_mul_i32 s47, s45, {UP}
    s_add_u32 s49, s47, {LU + 480}
    v_add_u32 v{CU}, s49, v{CS_}
    s_sub_u32 s47, s47, s48
    s_add_u32 s47, s47, {LU + 480 - 32 - 192}
    v_add_u32 v{CB}, s47, v{CB}
    s_xor_b32 s47, s{S_WAVE}, 2
    s_lshl_b32 s47, s47, 11
    s_add_u32 s47, s47, {LC}
    v_lshl_add_u32 v{CR}, v1, 4, s47
    s_lshl_b32 s42, s2, 13
    s_lshl_b32 s47, s45, 12
    s_add_u32 s42, s42, s47
    s_add_u32 s42, s42, {AT_OFF}
    s_lshl_b32 s47, s45, 4
    s_lshr_b32 s41, s{S_DD}, s47
    s_lshl_b32 s41, s41, 16                     ; D (f32)
    s_lshl_b32 s40, s2, 1
    s_add_u32 s40, s40, s45
    s_lshl_b32 s40, s40, 2
    s_add_u32 s40, s40, {AF_OFF}
    s_waitcnt lgkmcnt(0)
    v_readfirstlane_b32 s{S_TAG}, v{T+11}
    s_barrier
    """)
    stamp(a, "P1")
    og1 = a.label("og1"); fin = a.label("cfin")
    a(f"s_bitcmp1_b32 s{S_WAVE}, 0\ns_cbranch_scc1 {og1}")
    for og in range(2):
        G = GROUPS[og]; tm = G[0]
        mf = []; loads = {}
        for cls in range(4):
            for k in range(tm+1):
                loads[("A",cls,k)] = (lambda r, cls=cls, k=k: [f"ds_read_b64 v[{r}:{r+1}], v{CA} offset:{512*(7-k)+192-64*cls}", f"ds_read_b64 v[{r+2}:{r+3}], v{CA} offset:{512*(7-k)+192-64*cls+8}"])
                loads[("B",cls,k)] = (lambda r, cls=cls, k=k: [f"ds_read_b128 {vr(r)}, v{CB} offset:{512*k+192-64*cls}"])
                for ti, tau in enumerate(G):
                    if k <= tau:
                        first = (cls == 0 and k == 0)
                        mf.append((f"v_mfma_f32_16x16x32_bf16 {vr(CAC+4*ti)}, {{0}}, {{1}}, {0 if first else vr(CAC+4*ti)}", [("A",cls,k), ("B",cls,tau-k)]))
        lf = a.label("hfl")
        hflag = [f"s_cmp_eq_u32 s{S_ROLE}, 1", f"s_cbranch_scc0 {lf}",
                 f"s_waitcnt vmcnt(0)",
                 f"s_mov_b64 exec, 1",
                 f"buffer_store_dword v{T+11}, v{T+10}, {sr(S_WS)}, s57 offen sc1",
                 f"s_mov_b64 exec, -1", f"{lf}:"]
        pre = {O.hflag_at: hflag}
        for k in range(7):
            ld = a.label("pb")
            b = Asm("X"); b(f"s_cmp_lt_u32 s{S_WAVE}, 4\ns_cbranch_scc1 {ld}"); wd_dma(b, None, 7+k, k); b(f"{ld}:")
            pre[1 + 8*k] = [x.strip() for x in b.lines]
        pipeline(a, mf, loads, CPOOL, per_gap=2, lead=14, pre=pre)
        h1 = a.label("h1")
        FR = 160
        a(f"s_barrier\ns_nop 5\ns_cmp_eq_u32 s46, 1\ns_cbranch_scc1 {h1}")
        for hc in range(2):
            keep = (0,1) if hc == 0 else (2,3)
            send = (2,3) if hc == 0 else (0,1)
            for k, ti in enumerate(send): a(f"ds_write_b128 v{CR}, {vr(CAC+4*ti)} offset:{1024*k}")
            for k, ti in enumerate(keep): a(f"ds_read_b64 v[{FR+16+2*k}:{FR+17+2*k}], v{CU} offset:{512*G[ti]}")
            a(f"v_xor_b32 v{CR}, 0x1000, v{CR}" if (LC & 0x1000) == 0 and False else f"s_lshl_b32 s47, s{S_WAVE}, 11\ns_add_u32 s47, s47, {LC}\nv_lshl_add_u32 v{CR}, v1, 4, s47")
            a("s_waitcnt lgkmcnt(0)\ns_barrier")
            for k in range(2): a(f"ds_read_b128 {vr(FR+4*k)}, v{CR} offset:{1024*k}")
            for k in range(2):
                for j in range(2):
                    a(f"v_lshlrev_b32 v{FR+24+4*k+2*j}, 16, v{FR+16+2*k+j}")
                    a(f"v_and_b32 v{FR+24+4*k+2*j+1}, 0xffff0000, v{FR+16+2*k+j}")
            for k, ti in enumerate(keep):
                for r in range(4): a(f"v_fmac_f32 v{CAC+4*ti+r}, s41, v{FR+24+4*k+r}")
            a("s_waitcnt lgkmcnt(0)")
            for k, ti in enumerate(keep):
                for r in (0, 2): a(f"v_pk_add_f32 v[{CAC+4*ti+r}:{CAC+4*ti+r+1}], v[{CAC+4*ti+r}:{CAC+4*ti+r+1}], v[{FR+4*k+r}:{FR+4*k+r+1}]")
                a(f"v_cvt_pk_bf16_f32 v{FR+8+2*k}, v{CAC+4*ti}, v{CAC+4*ti+1}")
                a(f"v_cvt_pk_bf16_f32 v{FR+9+2*k}, v{CAC+4*ti+2}, v{CAC+4*ti+3}")
                a(f"buffer_store_dwordx2 v[{FR+8+2*k}:{FR+9+2*k}], v{CS_}, {sr(S_WS)}, s42 offen offset:{512*G[ti]} sc1")
            a(f"v_mov_b32 v{CA}, {G[keep[0]]*2048}\nv_writelane_b32 v{CA}, {G[keep[1]]*2048 if G[keep[1]]*2048 <= 64 else 's47'}, 1" if False else
              f"s_mov_b32 s47, {G[keep[1]]*2048}\nv_mov_b32 v{CA}, {G[keep[0]]*2048}\nv_writelane_b32 v{CA}, s47, 1")
            if not (og == 1 and hc == 1): a(f"s_branch {fin}")
            if hc == 0: a(f"{h1}:")
        if og == 0: a(f"{og1}:")
    a(f"{fin}:")
    stamp(a, "conv_end")
    a(f"""
    v_lshlrev_b32 v{VH}, 4, v1
    v_lshlrev_b32 v{CB}, 2, v1
    s_lshl_b32 s47, s53, 7
    s_mul_i32 s48, s43, 28
    s_add_u32 s47, s47, s48
    s_add_u32 s47, s47, {HF_OFF}
    s_mul_i32 s45, s53, 56
    s_mul_i32 s48, s43, 14
    s_add_u32 s45, s45, s48
    s_lshl_b32 s45, s45, 12
    s_lshl_b32 s48, s44, 11
    s_add_u32 s45, s45, s48
    """)
    poll(a, None, CU, CB, S_WS, "s47", 0x7f, f"s{S_TAG}")
    stamp(a, "hflag")
    vm = VM(a)
    hreg = {s: HF + 8*s for s in range(10)}
    hreg.update({10: WA, 11: WA+8, 12: WA+16, 13: WA+24})
    def hload(step):
        a(f"s_add_u32 s49, s45, {step*4096}")
        for j in range(2):
            vm.issue(f"buffer_load_dwordx4 {vr(hreg[step]+4*j)}, v{VH}, {sr(S_WS)}, s49 offen offset:{j*1024} sc1", ("h", step))
    for s in range(10): hload(s)
    a(f"v_mov_b32 v{CU}, s{S_TAG}\ns_mov_b64 exec, 3")
    vm.issue(f"buffer_store_dword v{CU}, v{CA}, {sr(S_WS)}, s40 offen sc1", "af")
    a("s_mov_b64 exec, -1")
    a(f"""
    v_lshlrev_b32 v{VAT}, 12, v{T+1}
    v_lshl_add_u32 v{VAT}, v{T}, 4, v{VAT}
    s_lshl_b32 s46, s54, 2
    s_add_u32 s46, s46, s43                     ; 4C+kq
    s_lshl_b32 s42, s46, 16
    s_lshl_b32 s50, s53, 7
    s_add_u32 s42, s42, s50
    s_lshl_b32 s50, s44, 6
    s_add_u32 s42, s42, s50
    s_add_u32 s42, s42, {AT_OFF}
    s_lshl_b32 s46, s46, 6
    s_lshr_b32 s50, s53, 2
    s_lshl_b32 s50, s50, 11
    s_add_u32 s46, s46, s50
    s_add_u32 s46, s46, {AF_OFF}
    v_lshrrev_b32 v{T+2}, 3, v0
    v_lshlrev_b32 v{VX}, 10, v{T+2}
    v_and_b32 v{T+3}, 7, v0
    v_lshl_add_u32 v{VX}, v{T+3}, 4, v{VX}
    s_lshl_b32 s51, s53, 16
    s_lshl_b32 s50, s54, 7
    s_add_u32 s51, s51, s50
    v_mul_u32_u24 v{VO}, {PP}, v{T+2}
    v_lshl_add_u32 v{VO}, v{T+3}, 5, v{VO}
    v_lshlrev_b32 v{CR}, 3, v{T+2}
    s_lshl_b32 s52, s53, 9
    s_add_u32 s52, s52, {ST_G}
    """)
    def mm(wreg, step, first=False):
        return [f"v_mfma_f32_16x16x32_bf16 {vr(AC+8*t+4*j)}, {vr(wreg+4*t)}, {vr(hreg[step]+4*j)}, {0 if first else vr(AC+8*t+4*j)}" for t in range(4) for j in range(2)]
    BB = [WA+32, WA+48]
    XF = WA+64; ATF = WA+68; SEL = WA+72; AAC = WA+80; RS = WA+88
    for s in range(14):
        if s == 2:
            hload(10); hload(11); hload(12); hload(13)
            a(f"s_mov_b64 exec, 0xffff")
            vm.issue(f"buffer_load_dword v{CS_}, v{CB}, {sr(S_WS)}, s46 offen sc1", "afp")
            a("s_mov_b64 exec, -1")
        if s == 4: a("s_barrier")
        nxt = []
        if 6 <= s <= 12:
            for t in range(4): nxt += wread(BB[(s+1) & 1]+4*t, s+1-7, t)
        if s == 6:
            vm.issue(f"buffer_load_dwordx4 {vr(XF)}, v{VX}, {sr(S_X)}, s51 offen", "x")
            vm.issue(f"buffer_load_dword v{RS}, v{CR}, {sr(S_WS)}, s52 offen sc1", "rs")
            a(f"""
            v_lshlrev_b32 v{T+3}, 3, v{T}
            v_sub_u32 v{T+3}, v{T+1}, v{T+3}
            v_and_b32 v{T+4}, 1, v1
            v_lshlrev_b32 v{T+4}, 4, v{T+4}
            v_mov_b32 v{T+5}, 0x3f80
            v_lshlrev_b32 v{T+5}, v{T+4}, v{T+5}
            v_ashrrev_i32 v{T+3}, 1, v{T+3}
            """)
            for j in range(2):
                for k in range(4): a(f"v_cmp_eq_i32 vcc, {k-8*j}, v{T+3}\ns_nop 1\nv_cndmask_b32 v{SEL+4*j+k}, 0, v{T+5}, vcc")
        if s == 10:
            ok = a.label("afok")
            vm.wait("afp")
            a(f"s_mov_b64 exec, 0xffff\nv_cmp_ne_u32 vcc, s{S_TAG}, v{CS_}\ns_mov_b64 exec, -1\ns_cbranch_vccz {ok}")
            poll(a, None, CS_, CB, S_WS, "s46", 0xffff, f"s{S_TAG}")
            a(f"{ok}:")
            vm.issue(f"buffer_load_dwordx4 {vr(ATF)}, v{VAT}, {sr(S_WS)}, s42 offen sc1", "at")
        vm.wait(("h", s), "lgkmcnt(0)" if s >= 7 else "")
        if s == 0: stamp(a, "h0")
        for m in mm(WA+16*s if s < 7 else BB[s & 1], s, s == 0):
            a(m)
            if nxt: a(nxt.pop(0))
    a(f"""
    v_mul_u32_u24 v{T+3}, {PP}, v{T+1}
    v_lshl_add_u32 v{T+3}, v{T}, 4, v{T+3}
    s_mul_i32 s50, s{S_WAVE}, {32*PP}
    """)
    for tp in range(4):
        a(f"s_xor_b32 s49, s43, {tp}\ns_lshl_b32 s49, s49, 6\ns_add_u32 s49, s49, s50\nv_add_u32 v{VP+tp}, s49, v{T+3}")
    a(f"s_mul_i32 s50, s44, {32*PP}\ns_lshl_b32 s49, s43, 6\ns_add_u32 s49, s49, s50\ns_add_u32 s49, s49, {4*64*PP}\nv_add_u32 v{VA}, s49, v{T+3}")
    a("s_waitcnt vmcnt(0)")
    for j in range(2): a(f"v_mfma_f32_16x16x32_bf16 {vr(AAC+4*j)}, {vr(ATF)}, {vr(SEL+4*j)}, 0")
    stamp(a, "g2_end")
    a("s_barrier")
    for t in range(4):
        for j in range(2): a(f"ds_write_b128 v{VP+t}, {vr(AC+8*t+4*j)} offset:{16*j*PP}")
    for j in range(2): a(f"ds_write_b128 v{VA}, {vr(AAC+4*j)} offset:{16*j*PP}")
    a(f"""
    v_add_u32 v{VA+1}, {4*64*PP}, v{VO}
    v_and_b32 v{RS}, 0xffff0000, v{RS}
    v_rcp_f32 v{RS+1}, v{RS}
    s_nop 0
    v_fma_f32 v{RS+2}, -v{RS}, v{RS+1}, 1.0
    v_fma_f32 v{RS+1}, v{RS+2}, v{RS+1}, v{RS+1}
    v_mul_f32 v{RS}, v{RS+1}, v{RS+1}
    """)
    for k in range(4): a(f"v_lshlrev_b32 v{HF+40+2*k}, 16, v{XF+k}\nv_and_b32 v{HF+40+2*k+1}, 0xffff0000, v{XF+k}")
    a("s_waitcnt lgkmcnt(0)\ns_barrier")
    for hf in range(2): a(f"ds_read_b128 {vr(HF+32+4*hf)}, v{VA+1} offset:{16*hf}")
    for q in range(4):
        for hf in range(2): a(f"ds_read_b128 {vr(HF+8*q+4*hf)}, v{VO} offset:{q*64*PP+16*hf}")
    pr = lambda r: f"v[{r}:{r+1}]"
    a("s_waitcnt lgkmcnt(8)")
    for k in range(4): a(f"v_pk_add_f32 {pr(HF+40+2*k)}, {pr(HF+40+2*k)}, {pr(HF+32+2*k)}")
    for q in range(1, 4):
        a(f"s_waitcnt lgkmcnt({6-2*q})")
        for k in range(4): a(f"v_pk_add_f32 {pr(HF+2*k)}, {pr(HF+2*k)}, {pr(HF+8*q+2*k)}")
    for k in range(4): a(f"v_pk_fma_f32 {pr(HF+2*k)}, {pr(HF+2*k)}, {pr(RS)}, {pr(HF+40+2*k)} op_sel_hi:[1,0,1]")
    for k in range(4): a(f"v_cvt_pk_bf16_f32 v{XF+k}, v{HF+2*k}, v{HF+2*k+1}")
    a(f"buffer_store_dwordx4 {vr(XF)}, v{VX}, {sr(S_OUT)}, s51 offen")
    stamp(a, "end")

def k_fused(name):
    a = Asm("F")
    a(f"""
    s_cmp_ge_u32 s2, 256
    s_cbranch_scc1 F_end
    s_load_dwordx2 s[{S_X}:{S_X+1}], s[0:1], 0
    s_load_dwordx2 s[{S_WG}:{S_WG+1}], s[0:1], 64
    s_load_dwordx2 s[{S_WU}:{S_WU+1}], s[0:1], 72
    """)
    if O.stamps: a(f"{O.stamps} s[92:93]")
    a(f"""
    v_lshrrev_b32 v2, 6, v0
    v_and_b32 v1, 63, v0
    v_readfirstlane_b32 s{S_WAVE}, v2
    """)
    srd_tail(a, S_X, 2048*512*2); srd_tail(a, S_WG, 512*1792*2); srd_tail(a, S_WU, 512*1792*2+1024)
    a(f"""
    s_cmp_lt_u32 s2, 32
    s_cbranch_scc1 F_aux
    s_and_b32 s60, s2, 7
    s_bfe_u32 s6, s2, 0x20001
    s_lshl_b32 s6, s6, 2
    s_bfe_u32 s40, s2, 0x20003
    s_add_u32 s6, s6, s40                   ; i
    s_and_b32 s7, s2, 1
    s_mul_i32 s7, s7, 7
    s_lshr_b32 s40, s2, 5
    s_add_u32 s7, s7, s40
    s_sub_u32 s7, s7, 1                     ; j
    s_cmp_lt_u32 s{S_WAVE}, 4
    s_cbranch_scc1 F_cons
    """)
    g1_producer(a)
    a("s_branch F_ph2\nF_cons:")
    g1_consumer(a)
    phase2(a)
    stamp_flush(a)
    a("F_end:\ns_endpgm\nF_aux:")
    aux_role(a)
    a("F_last:\ns_endpgm")
    return dict(name=name, body=a.text(), grid=256, block=512, lds=163840, vgpr=256, sgpr=102)

NAME = "parallel_sum__ssm_conv_s4d__glu_gated_bilinear__prompt_kernel"
O.hflag_at = 18
O.code_pf = True
O.kname = NAME
def single_file(k):
    t = make_file([k])
    return t.replace("; @launch kernel=%s " % k["name"], "; @launch ")
if __name__ == "__main__":
    O.stamps = None
    open("../f1.s","w").write(single_file(k_fused(NAME)))
    O.stamps = "s_memrealtime"
    sets = {"A": dict(c_b0=1, p_b0=1, a_x=1, c_s15=2, p_b16=2, a_st=2, c_end=3, a_bar=3, P0=4),
            "B": dict(a_end=1, P1=1, conv_end=2, hflag=3, h0=4),
            "C": dict(P0=1, hflag=2, g2_end=3, end=4),
            "D": dict(pb1=1, pb3=2, pb6=3, pb10=4, a_x=1, a_st=2, a_bar=3, a_end=4),
            "E": dict(pb12=1, pb14=2, pb15=3, pb16=4)}
    for k, v in sets.items():
        O.stamp_sel = v
        open(f"../f1_{k}.s","w").write(single_file(k_fused(NAME)))
```

```python
from common import *
class VM:
    def __init__(self, a): self.a = a; self.ops = []
    def issue(self, text, tag):
        self.a(text); self.ops.append(tag)
    def count_after(self, tag):
        idx = max(i for i, t in enumerate(self.ops) if t == tag)
        return len(self.ops) - 1 - idx
    def wait(self, tag, extra=""):
        n = self.count_after(tag)
        n = min(n, 63)
        self.a(f"s_waitcnt vmcnt({n}) {extra}".strip())
    def drained(self): self.ops = []

def pipeline(a, mfmas, loads, pool, per_gap=2, lead=None, pre=None):
    first = {}; last = {}
    for i, (f, ids) in enumerate(mfmas):
        for d in ids:
            if d in loads:
                first.setdefault(d, i); last[d] = i
    order = sorted(first, key=lambda d: first[d])
    free = list(pool); reg = {}; issued = []
    nxt = 0
    done_upto = 0
    def try_issue(maxn):
        nonlocal nxt
        n = 0
        while nxt < len(order) and free and n < maxn:
            d = order[nxt]
            reg[d] = free.pop(0)
            for ins in loads[d](reg[d]):
                a(ins); issued.append(d); n += 1
            nxt += 1
    try_issue(lead if lead else 12)
    for i, (f, ids) in enumerate(mfmas):
        for d in ids:
            while d in loads and d not in reg:
                assert free, "pool too small"
                try_issue(1)
        need = [max(k for k, x in enumerate(issued) if x == d) for d in ids if d in loads]
        if need and max(need) >= done_upto:
            outstanding = len(issued) - 1 - max(need)
            a(f"s_waitcnt lgkmcnt({min(outstanding, 15)})")
            done_upto = max(need) + 1 if outstanding <= 15 else len(issued) - 15
        if pre and i in pre:
            for x in pre[i]:
                a(x)
                if x.startswith("ds_"): issued.append(None)
        a(f.format(*[vr(reg[d]) if d in loads else d for d in ids]))
        for d in set(ids):
            if d in loads and last[d] == i: free.append(reg[d])
        try_issue(per_gap)
```

```python
from common import Asm, vr, sr, make_file
from util import *
import struct, sys
def f2u(x): return struct.unpack("<I", struct.pack("<f", x))[0]
LOG2E = f2u(1.4426950408889634); INV2PI = f2u(0.15915494309189535)
pr = lambda r: f"v[{r}:{r+1}]"
NAME = "parallel_sum__ssm_conv_s4d__glu_gated_bilinear__prompt_kernel"

WS_SIZE = 0x10000000
ST_G = 0x700000; CS_G = 0x704000; HF_OFF = 0x990000; HFS = 3328; XF_OFF = 0x70D000; AF_OFF = 0x720000
XNT_OFF = 0x780000; XP = 8448; AT_OFF = 0xA00000; ATP = 8192+256; AFS = 1280; TS_OFF = 0xE00000
S_WAVE = 4
S_WS, S_X, S_WG, S_WU, S_WD, S_OUT, S_DBG = 8, 12, 16, 20, 24, 28, 32
S_TAG = 62; S_DD = 63; S_LDT = 59; S_FM = 76; S_FO = 57
VFL = 15
SLOT = 16384; NW = 6
XR = 6*SLOT; HS = 8192
LC = XR + 2*HS; LU = LC + 8*4160; PXB = XR + 7*HS; KT = PXB; KTP = 3072; AUXL = PXB + 6144; CNT = AUXL + 1536
SCR = 5*SLOT
UP = 4608; PC = 4160; PP = 272
assert LU + 2*UP <= AUXL and CNT + 512 == 163840
C_PS, C_A, C_TAG, C_ST, C_KF, C_LN, C_KX, C_PAIR = 0, 4, 8, 12, 16, 24, 28, 32
WSLOT = [4*SLOT, 5*SLOT, 0, SLOT, 2*SLOT, 3*SLOT, XR]
WAVAIL = [11, 12, 13, 14, 15, 16, 16]
NRG = 4
POLL_MAX = 1 << 16

class Opt: pass
O = Opt()
O.stamps = None; O.stamp_sel = {}
O.upfront = 20; O.quota = [8,8,8,8,8,8,8,8,8,8,8,8,8,8,8,8]
O.rate = [0,16,28,28,28,28,28,28,28,28,28,28,28,28,10,0]
O.psleep = 3; O.up2 = 6; O.kpre = 40; O.xfc = 15; O.asleep = 8; O.a0sleep = 16; O.wreg = 6; O.g2prio = 0; O.auxw0 = 2; O.pre0 = 85; O.hlead = 5; O.cprio = 3; O.shadow = 4

def stamp(a, name):
    if O.stamps and name in O.stamp_sel:
        i = O.stamp_sel[name]; a(f"{O.stamps} s[100:101]\ns_waitcnt lgkmcnt(0)\ns_mov_b32 s{92+i}, s100")
def stamp_flush(a):
    if not O.stamps: return
    for i in range(8): a(f"v_mov_b32 v{2+i}, s{92+i}")
    a(f"""
    v_mov_b32 v10, 0
    s_lshl_b32 s92, s2, 3
    s_add_u32 s92, s92, s{S_WAVE}
    s_lshl_b32 s92, s92, 5
    s_add_u32 s92, s92, {TS_OFF}
    s_mov_b64 exec, 1
    buffer_store_dwordx4 v[2:5], v10, {sr(S_WS)}, s92 offen
    buffer_store_dwordx4 v[6:9], v10, {sr(S_WS)}, s92 offen offset:16
    s_mov_b64 exec, -1
    """)
def srd_tail(a, s, size): a(f"s_mov_b32 s{s+2}, {hex(size)}\ns_mov_b32 s{s+3}, 0x20000")
MAPA = """    s_bfe_u32 s53, s2, 0x20001
    s_lshl_b32 s53, s53, 3
    s_lshr_b32 s40, s2, 5
    s_add_u32 s53, s53, s40                 ; R64
    s_and_b32 s54, s2, 1
    s_lshl_b32 s54, s54, 2
    s_bfe_u32 s40, s2, 0x20003
    s_add_u32 s54, s54, s40                 ; C64"""
MAPB = """    s_and_b32 s53, s2, 7
    s_lshl_b32 s53, s53, 2
    s_lshr_b32 s40, s2, 6
    s_add_u32 s53, s53, s40
    s_bfe_u32 s54, s2, 0x30003"""
def rotc(r):
    if O.map2: return f"s_mul_i32 s{r}, s54, {O.rotm}\ns_lshr_b32 s{r}, s{r}, 2"
    return f"s_and_b32 s{r}, s54, 3\ns_mul_i32 s{r}, s{r}, {O.rotm}\ns_add_u32 s{r}, s{r}, 1\ns_lshr_b32 s{r}, s{r}, 1"
def late_loads(a):
    a(f"""
    s_load_dwordx2 s[{S_WS}:{S_WS+1}], s[0:1], 104
    s_load_dwordx2 s[{S_DBG}:{S_DBG+1}], s[0:1], 96
    s_load_dwordx2 s[{S_WD}:{S_WD+1}], s[0:1], 80
    s_load_dwordx2 s[{S_OUT}:{S_OUT+1}], s[0:1], 88
    """)
    srd_tail(a, S_WS, WS_SIZE); srd_tail(a, S_DBG, 256); srd_tail(a, S_WD, 512*1792*2); srd_tail(a, S_OUT, 2048*512*2)
    a(f"""
    {MAPB if O.map2 else MAPA}
    s_lshl_b32 s40, s2, 2
    s_waitcnt lgkmcnt(0)
    s_load_dword s{S_DD}, s[74:75], s40
    """)
def poll(a, vdst, vaddr, srdreg, soff, mask, cmp_src, op="ne", sleep=None):
    l = a.label("poll"); d = a.label("polld")
    a(f"s_mov_b64 exec, {mask}\ns_mov_b32 s58, {POLL_MAX}\n{l}:")
    a(f"""
    buffer_load_dword v{vdst}, v{vaddr}, {sr(srdreg)}, {soff} offen sc1
    s_waitcnt vmcnt(0)
    v_cmp_{op}_u32 vcc, {cmp_src}, v{vdst}
    s_cbranch_vccz {d}
    s_sleep {sleep or O.psleep}
    s_sub_u32 s58, s58, 1
    s_cmp_lg_u32 s58, 0
    s_cbranch_scc1 {l}
    {d}:
    s_mov_b64 exec, -1
    """)
def lds_signal(a, vaddr, off, vone):
    a(f"s_mov_b64 exec, 1\nds_add_u32 v{vaddr}, v{vone} offset:{off}\ns_mov_b64 exec, -1")
def lds_wait(a, vaddr, off, target, vt, sleep=1):
    l = a.label("lw"); d = a.label("lwd")
    a(f"""
    s_mov_b32 s58, {POLL_MAX}
    {l}:
    ds_read_b32 v{vt}, v{vaddr} offset:{off}
    s_waitcnt lgkmcnt(0)
    v_readfirstlane_b32 s40, v{vt}
    s_cmp_ge_u32 s40, {target}
    s_cbranch_scc1 {d}
    s_sleep {sleep}
    s_sub_u32 s58, s58, 1
    s_cmp_lg_u32 s58, 0
    s_cbranch_scc1 {l}
    {d}:
    """)

VWD = 11; VCN = 6; VONE = 7
PV = 16; AD = 20; RA = 28; KA0, KA1a, KA1b, KA2 = 32, 33, 34, 35
VT = 36; XFL = 37; GA = 38; CA, CB, CU, CS_ = 49, 50, 51, 52; UA = 53; UV = 54; UG = 55
KW = 56; PKR = 128; UF = 188; GF = 196; EF = 200; KACC = 212

def kgen_param_loads(a, vm):
    a(f"v_lshlrev_b32 v{KW}, 1, v1\ns_lshl_b32 s40, s2, 9\ns_lshl_b32 s41, s56, 7\ns_add_u32 s40, s40, s41")
    a(f"s_mov_b32 s38, {512*128*2}\ns_mov_b32 s39, 0x20000")
    for i in range(4):
        a(f"s_mov_b32 s36, s{64+2*i}\ns_mov_b32 s37, s{65+2*i}")
        vm.issue(f"buffer_load_ushort v{PV+i}, v{KW}, s[36:39], s40 offen", "par")

def rot_calc(a, sd):
    a(f"s_and_b32 s{sd}, s54, 3\ns_mul_i32 s{sd}, s{sd}, 7\ns_add_u32 s{sd}, s{sd}, 1\ns_lshr_b32 s{sd}, s{sd}, 1")
def wd_voff(a):
    a(f"""
    v_lshrrev_b32 v2, 4, v1
    v_bfe_u32 v3, v1, 1, 2
    v_xor_b32 v3, v3, v2
    v_and_b32 v4, 1, v1
    v_lshl_or_b32 v3, v3, 1, v4
    v_lshrrev_b32 v4, 3, v1
    v_lshlrev_b32 v4, 10, v4
    v_lshl_add_u32 v{VWD}, v3, 4, v4
    """)
def kaddr_setup(a):
    T = KW+2
    a(f"""
    v_mov_b32 v{VCN}, {CNT}
    v_mov_b32 v{VONE}, 1
    s_lshl_b32 s40, s56, 12
    s_add_u32 s40, s40, {SCR}
    v_lshl_add_u32 v{AD}, v1, 2, s40
    """)
    for r in range(1, 8): a(f"v_xor_b32 v{AD+r}, {r<<4}, v{AD}")
    a(f"""
    v_and_b32 v{T}, 15, v1                  ; m / b / n
    v_lshrrev_b32 v{T+1}, 4, v1             ; g
    v_lshrrev_b32 v{T+2}, 1, v{T}
    v_xor_b32 v{T+2}, v{T+2}, v{T+1}
    v_lshlrev_b32 v{T+2}, 4, v{T+2}
    v_lshl_add_u32 v{T+2}, v{T}, 8, v{T+2}
    v_add_u32 v{RA}, s40, v{T+2}
    v_xor_b32 v{RA+1}, 64, v{RA}
    v_xor_b32 v{RA+2}, 128, v{RA}
    v_xor_b32 v{RA+3}, 192, v{RA}
    s_lshr_b32 s5, s56, 1                   ; ch
    s_mul_i32 s41, s5, {KTP}
    s_add_u32 s41, s41, {KT}
    v_lshrrev_b32 v{T+2}, 1, v{T+1}
    v_lshlrev_b32 v{T+2}, 8, v{T+2}
    v_and_b32 v{T+3}, 1, v{T+1}
    v_lshl_add_u32 v{T+2}, v{T+3}, 3, v{T+2}
    v_lshl_add_u32 v{T+2}, v{T}, 4, v{T+2}
    v_add_u32 v{KA0}, s41, v{T+2}
    v_cmp_gt_u32 vcc, 2, v{T+1}
    v_lshlrev_b32 v{T+2}, 7, v{T+1}
    v_lshlrev_b32 v{T+3}, 2, v{T}
    v_lshlrev_b32 v{T+4}, 3, v{T}
    v_cndmask_b32 v{T+3}, v{T+3}, v{T+4}, vcc
    v_add3_u32 v{KA1a}, v{T+2}, v{T+3}, s41
    v_mov_b32 v{T+3}, 64
    v_cndmask_b32 v{T+3}, v{T+3}, 4, vcc
    v_add_u32 v{KA1b}, v{KA1a}, v{T+3}
    v_lshl_add_u32 v{T+2}, v{T}, 1, v{T+2}
    v_add_u32 v{KA2}, s41, v{T+2}
    """)

def prod_setup(a):
    T = KW+2
    wd_voff(a)
    a(f"""
    s_mul_i32 s86, s56, {14*32*1024}
    s_lshl_b32 s40, s54, 7
    s_add_u32 s86, s86, s40
    s_add_u32 s87, s86, {14*32768}
    {rotc(51)}
    s_lshl_b32 s51, s51, 15
    s_add_u32 s51, s51, s86
    s_lshl_b32 s52, s56, 12
    v_mov_b32 v{VCN}, {CNT}
    v_mov_b32 v{VONE}, 1
    v_and_b32 v14, 31, v1
    v_lshlrev_b32 v14, 2, v14
    s_lshr_b32 s5, s56, 1                   ; ch
    v_and_b32 v{T}, 15, v1
    v_lshrrev_b32 v{T+1}, 4, v1
    v_and_b32 v{T+2}, 3, v1
    v_mul_u32_u24 v{CA}, {PC}, v{T+2}
    v_lshl_add_u32 v{CA}, v{T+1}, 4, v{CA}
    v_and_b32 v{T+2}, 12, v1
    v_lshlrev_b32 v{T+2}, 1, v{T+2}
    v_sub_u32 v{CA}, v{CA}, v{T+2}
    s_mul_i32 s40, s5, {4*PC}
    s_and_b32 s39, s56, 1
    s_lshl_b32 s39, s39, 8
    s_sub_u32 s40, s40, s39
    s_add_u32 s40, s40, {LC + 2*(2048-16-1792) - 192}
    v_add_u32 v{CA}, s40, v{CA}
    v_lshlrev_b32 v{CU}, 5, v{T}
    v_lshl_add_u32 v{CB}, v{T+1}, 4, v{CU}
    v_lshl_add_u32 v{CS_}, v{T+1}, 3, v{CU}
    s_mul_i32 s40, s5, {UP}
    s_add_u32 s41, s40, {LU + 480}
    v_add_u32 v{CU}, s41, v{CS_}
    v_mul_u32_u24 v{CS_}, {8*ATP}, v{T+1}
    v_lshl_add_u32 v{CS_}, v{T}, 3, v{CS_}
    s_sub_u32 s40, s40, s39
    s_add_u32 s40, s40, {LU + 480 - 32 - 192}
    v_add_u32 v{CB}, s40, v{CB}
    v_and_b32 v{UV}, 255, v0
    v_lshlrev_b32 v{T}, 3, v{UV}
    v_lshlrev_b32 v{UV}, 4, v{UV}
    v_bfe_u32 v{T+1}, v0, 1, 7
    v_and_b32 v{UG}, 16, v{UV}
    v_mul_u32_u24 v{UA}, {XP}, v{T+1}
    v_add_u32 v{UG}, v{UG}, v{UA}
    v_and_b32 v{UA}, 1, v0
    v_mul_u32_u24 v{UA}, {UP}, v{UA}
    v_lshl_add_u32 v{UA}, v{T+1}, 4, v{UA}
    v_add_u32 v{UA}, {LU+480}, v{UA}
    v_sub_u32 v{T}, 2051, v{T}
    s_movk_i32 s41, 128
    s_mov_b32 s40, {KT}
    """)
    for e in range(11):
        a(f"""
        v_subrev_u32 v{T+1}, {e}, v{T}
        v_cvt_f32_u32 v{T+2}, v{T+1}
        v_cvt_pk_bf16_f32 v{T+2}, v{T+2}, v{T+2}
        v_lshrrev_b32 v{T+2}, 16, v{T+2}
        v_subrev_u32 v{T+2}, 0x4280, v{T+2}
        v_med3_i32 v{T+2}, v{T+2}, v{T+1}, s41
        v_lshl_add_u32 v{GA+e}, v{T+2}, 1, s40
        """)

SFR = 192
def kgen_valu(a, scalar=True, stream=False):
    W = KW
    AR, PH, T, DT = W, W+1, W+2, W+5
    C2, W8, Y = W+6, W+8, W+10
    Fk = lambda k: W+20+2*k
    Ca = lambda k: W+34+2*k
    V = PV
    a(f"""
    s_lshl_b32 s3, s5, 4
    s_lshr_b32 s3, s{S_LDT}, s3
    s_lshl_b32 s3, s3, 16
    v_mov_b32 v{DT}, {hex(LOG2E)}
    v_mul_f32 v{DT}, s3, v{DT}
    v_lshlrev_b32 v{V}, 16, v{V}
    v_lshlrev_b32 v{V+1}, 16, v{V+1}
    v_lshlrev_b32 v{V+2}, 16, v{V+2}
    v_lshlrev_b32 v{V+3}, 16, v{V+3}
    v_mul_f32 v{V}, {hex(LOG2E)}, v{V}
    v_exp_f32 v{V}, v{V}
    v_exp_f32 v{DT}, v{DT}
    s_nop 0
    v_cvt_pk_bf16_f32 v{T}, v{DT}, v{V}
    v_lshlrev_b32 v{DT}, 16, v{T}
    v_and_b32 v{V}, 0xffff0000, v{T}
    v_mul_f32 v{AR}, v{V}, v{DT}
    v_mul_f32 v{PH}, v{V+1}, v{DT}
    v_mul_f32 v{AR}, {hex(LOG2E ^ 0x80000000)}, v{AR}
    v_mul_f32 v{PH}, {hex(INV2PI)}, v{PH}
    v_mul_f32 v{C2}, v{V+2}, v{DT}
    v_mul_f32 v{C2+1}, v{V+3}, v{DT}
    v_add_f32 v{C2}, v{C2}, v{C2}
    v_add_f32 v{C2+1}, v{C2+1}, v{C2+1}
    """)
    have = set(); wr = [0, 0]
    NR = (16, 16, 16, 9)
    def drain():
        while wr[0] < 4:
            t, r = wr
            if r >= NR[t]:
                for ks in range(4): a(f"ds_read_b128 {vr(SFR+16*t+4*ks)}, v{RA+ks}")
                wr[0] += 1; wr[1] = 0; continue
            if (t, r) in have and (r+1 >= NR[t] or (t, r+1) in have):
                if r+1 < NR[t]: a(f"ds_write2st64_b32 v{AD+r//2}, v{PKR+16*t+r}, v{PKR+16*t+r+1} offset0:{r} offset1:{r+1}")
                else: a(f"ds_write_b32 v{AD+r//2}, v{PKR+16*t+r} offset:{r*256}")
                wr[1] += 2
            return
    def put(tile, row, x, neg=False):
        r = PKR + 16*tile + row
        if stream: drain()
        if x is None: a(f"v_mov_b32 v{r}, 0x3f80")
        else: a(f"v_cvt_pk_bf16_f32 v{r}, v{x}, {'-' if neg else ''}v{x+1}")
        have.add((tile, row))
    def cm_multi(ops):
        if scalar:
            for (o,x,w,t) in ops: a(f"v_mul_f32 v{t}, v{x}, v{w}\nv_mul_f32 v{t+1}, v{x}, v{w+1}")
            for (o,x,w,t) in ops: a(f"v_fma_f32 v{o}, -v{x+1}, v{w+1}, v{t}\nv_fma_f32 v{o+1}, v{x+1}, v{w}, v{t+1}")
        else:
            for (o,x,w,t) in ops: a(f"v_pk_mul_f32 {pr(t)}, {pr(x)}, {pr(w)} op_sel_hi:[1,0]")
            for (o,x,w,t) in ops: a(f"v_pk_fma_f32 {pr(o)}, {pr(x)}, {pr(w)}, {pr(t)} op_sel:[1,1,0] op_sel_hi:[0,1,1] neg_lo:[1,0,0]")
    W16 = W+50; C3 = W+52; TT = W+54
    anc = [(W8, 8), (W16, 16), (Fk(1), 1), (Ca(1), 128), (Y, 1024)]
    for i, (o, p) in enumerate(anc): a(f"v_mul_f32 v{TT+2*i}, {hex(f2u(float(p)))}, v{AR}\nv_mul_f32 v{TT+2*i+1}, {hex(f2u(float(p)))}, v{PH}")
    for i, (o, p) in enumerate(anc): a(f"v_fract_f32 v{TT+2*i+1}, v{TT+2*i+1}\nv_exp_f32 v{TT+2*i}, v{TT+2*i}")
    for i, (o, p) in enumerate(anc): a(f"v_cos_f32 v{o}, v{TT+2*i+1}\nv_sin_f32 v{o+1}, v{TT+2*i+1}")
    for i, (o, p) in enumerate(anc): a(f"v_mul_f32 v{o}, v{o}, v{TT+2*i}\nv_mul_f32 v{o+1}, v{o+1}, v{TT+2*i}")
    cm_multi([(C3, C2, W8, TT)])
    for b in range(0, 16, 2):
        put(0, b, C2, True); put(0, b+1, C3, True)
        k = b//2 + 2
        ops = []
        if b < 14: ops += [(C2, C2, W16, TT), (C3, C3, W16, TT+2)]
        if k <= 7: ops += [(Fk(k), Fk(k-1), Fk(1), TT+4), (Ca(k), Ca(k-1), Ca(1), TT+6)]
        cm_multi(ops)
    O4 = [W+64+2*i for i in range(4)]
    put(1, 0, None)
    for k in range(1, 8): put(1, k, Fk(k))
    put(1, 8, Ca(1)); put(2, 0, Ca(2)); put(2, 4, Ca(3)); put(3, 0, Y)
    for c in (4,5,6,7): put(2, 8+2*(c-4), Ca(c))
    prods = [(1, 8+k, Ca(1), Fk(k)) for k in range(1,8)] + [(2, i, Ca(2), Fk(2*i)) for i in (1,2,3)] + [(2, 4+i, Ca(3), Fk(2*i)) for i in (1,2,3)] \
          + [(2, 9+2*(c-4), Ca(c), Fk(4)) for c in (4,5,6,7)] + [(3, c, Y, Ca(c)) for c in range(1,8)] + [(3, 8, Y, Y)]
    for i in range(0, len(prods), 4):
        grp = prods[i:i+4]
        cm_multi([(O4[k], x, w, TT+2*k) for k, (t, r, x, w) in enumerate(grp)])
        for k, (t, r, x, w) in enumerate(grp): put(t, r, O4[k])
    if stream:
        stamp(a, "c_k1")
        while wr[0] < 4: drain()
        a("s_waitcnt lgkmcnt(0)")
        for ks in range(4):
            for t in range(3):
                a(f"v_mfma_f32_16x16x32_bf16 {vr(AKACC+4*t)}, {vr(SFR+16*(t+1)+4*ks)}, {vr(SFR+4*ks)}, {vr(AKACC+4*t) if ks else 0}")

AKACC = 128; AEF = 140
def kgen_ds(a, kacc=None):
    KACC = kacc or globals()['KACC']
    FRG = KW
    for t in range(4):
        n = 16 if t < 3 else 9
        for r in range(0, n, 2):
            if r+1 < n: a(f"ds_write2st64_b32 v{AD+r//2}, v{PKR+16*t+r}, v{PKR+16*t+r+1} offset0:{r} offset1:{r+1}")
            else: a(f"ds_write_b32 v{AD+r//2}, v{PKR+16*t+r} offset:{r*256}")
        for ks in range(4): a(f"ds_read_b128 {vr(FRG+16*t+4*ks)}, v{RA+ks}")
    a("s_waitcnt lgkmcnt(0)")
    for ks in range(4):
        for t in range(3):
            a(f"v_mfma_f32_16x16x32_bf16 {vr(KACC+4*t)}, {vr(FRG+16*(t+1)+4*ks)}, {vr(FRG+4*ks)}, {vr(KACC+4*t) if ks else 0}")

def cnt_init(a):
    a(f"v_lshl_add_u32 v2, v1, 2, v{VCN}\nv_mov_b32 v3, 0\nds_write_b32 v2, v3")

def kgen_exchange(a, kacc=None, ef=None, bar=False):
    KACC = kacc or globals()['KACC']; EF = ef or globals()['EF']
    l = a.label("kr"); d = a.label("kd")
    a(f"""
    s_mul_i32 s40, s5, {KTP}
    s_add_u32 s40, s40, {PXB}
    v_lshl_add_u32 v2, v1, 4, s40
    s_lshl_b32 s41, s5, 2
    v_add_u32 v3, s41, v{VCN}
    s_bitcmp1_b32 s56, 0
    s_cbranch_scc0 {l}
    s_nop 1
    """)
    for t in range(3): a(f"ds_write_b128 v2, {vr(KACC+4*t)} offset:{1024*t}")
    if bar: a("s_waitcnt lgkmcnt(0)\ns_barrier")
    a(f"ds_write_b32 v3, v{VONE} offset:{C_KF}\ns_branch {d}\n{l}:")
    if bar: a("s_barrier")
    else: lds_wait(a, 3, C_KF, 1, 4)
    for t in range(3): a(f"ds_read_b128 {vr(EF+4*t)}, v2 offset:{1024*t}")
    a("s_waitcnt lgkmcnt(0)")
    for k in range(12): a(f"v_add_f32 v{KACC+k}, v{KACC+k}, v{EF+k}")
    for k in range(6): a(f"v_cvt_pk_bf16_f32 v{EF+k}, v{KACC+2*k}, v{KACC+2*k+1}")
    a(f"""
    ds_write_b64 v{KA0}, v[{EF}:{EF+1}]
    ds_write_b32 v{KA1a}, v{EF+2} offset:512
    ds_write_b32 v{KA1b}, v{EF+3} offset:512
    ds_write_b16 v{KA2}, v{EF+4} offset:1024
    ds_write_b16_d16_hi v{KA2}, v{EF+4} offset:1056
    ds_write_b16 v{KA2}, v{EF+5} offset:1088
    ds_write_b16_d16_hi v{KA2}, v{EF+5} offset:1120
    {d}:
    """)

EXO = 128
TLV, TLA = 160, 161
def expand_gather(a, step=None):
    P = KW
    for ch in range(2):
        for e in range(11): a(f"ds_read_u16 v{P+11*ch+e}, v{GA+e} offset:{KTP*ch}")
    a("s_waitcnt lgkmcnt(0)")
    for ch in range(2):
        for s_ in range(4):
            for k in range(4):
                e = 11*ch + 3 - s_ + 2*k
                a(f"v_lshl_or_b32 v{EXO+16*ch+4*s_+k}, v{P+e+1}, 16, v{P+e}")
    a(f"v_add_u32 v{KW+22}, {LC}, v{UV}")
def expand_writes():
    return [f"    ds_write_b128 v{KW+22}, {vr(EXO+16*ch+4*s_)} offset:{4*PC*ch + s_*PC}" for ch in range(2) for s_ in range(4)]

def tails_prep(a):
    T = KW+24
    a(f"""
    v_lshrrev_b32 v{T}, 3, v1
    v_and_b32 v{T+1}, 3, v{T}
    v_and_b32 v{T+2}, 7, v1
    v_lshlrev_b32 v{T+2}, 1, v{T+2}
    v_sub_u32 v{T+3}, v{T+1}, v{T+2}
    v_lshrrev_b32 v{T+4}, 5, v1
    v_mul_u32_u24 v{T+4}, {KTP}, v{T+4}
    v_max_i32 v{T+5}, 1, v{T+3}
    v_lshl_add_u32 v{T+4}, v{T+5}, 1, v{T+4}
    v_add_u32 v{T+4}, {KT-2}, v{T+4}
    ds_read_u16 v{T+6}, v{T+4} offset:2
    ds_read_u16 v{T+7}, v{T+4}
    v_mul_u32_u24 v{T}, {PC}, v{T}
    v_lshl_add_u32 v{T}, v{T+2}, 1, v{T}
    v_add_u32 v{TLA}, {LC+4096}, v{T}
    v_cmp_eq_u32 vcc, 0, v{T+3}
    v_cmp_lt_i32 s[40:41], 0, v{T+3}
    s_waitcnt lgkmcnt(0)
    v_lshl_or_b32 v{T+6}, v{T+7}, 16, v{T+6}
    v_cndmask_b32 v{T+7}, 0, v{T+7}, vcc
    v_cndmask_b32 v{TLV}, v{T+7}, v{T+6}, s[40:41]
    v_mov_b64 v[164:165], 0
    v_mov_b64 v[166:167], 0
    v_lshrrev_b32 v{T+4}, 5, v1
    v_mul_u32_u24 v{T+4}, {UP}, v{T+4}
    v_and_b32 v{T+5}, 31, v1
    v_min_u32 v{T+5}, 29, v{T+5}
    v_lshl_add_u32 v{T+4}, v{T+5}, 4, v{T+4}
    v_add_u32 v162, {LU}, v{T+4}
    """)
def tails(a):
    l = a.label("t1")
    a(f"s_cmp_lg_u32 s56, 0\ns_cbranch_scc1 {l}\nds_write_b32 v{TLA}, v{TLV}\nds_write_b128 v162, v[164:167]\n{l}:")

def xf_addr(a, s):
    a(f"s_lshr_b32 s{s}, s2, 6\ns_lshl_b32 s{s}, s{s}, 7\ns_add_u32 s{s}, s{s}, {XF_OFF}")
def u_loads(a, vm):
    a(f"s_lshl_b32 s36, s2, 5\ns_add_u32 s36, s36, {XNT_OFF}\ns_add_u32 s37, s36, {128*XP}")
    for k in range(2):
        t = f"buffer_load_dwordx4 {vr(UF+4*k)}, v{UG}, {sr(S_WS)}, s{36+k} offen sc1"
        if vm: vm.issue(t, "u")
        else: a(t)

def tags_check(a):
    lt = a.label("tagok")
    a(f"v_cmp_eq_u32 vcc, 0, v{VT}\ns_cbranch_vccz {lt}")
    poll(a, VT, 14, S_DBG, "0", -1, "0", "eq")
    a(f"{lt}:\nv_readfirstlane_b32 s{S_TAG}, v{VT}\ns_nop 1\nv_mov_b32 v2, s{S_TAG}\nds_write_b32 v{VCN}, v2 offset:{C_TAG}")

def granule_issue(a, vm):
    a(f"""
    v_lshlrev_b32 v13, 4, v1
    s_lshl_b32 s36, s7, 10
    s_mul_i32 s37, s56, {1792*8}
    s_add_u32 s36, s36, s37
    s_add_u32 s36, s36, {CS_G}
    s_lshl_b32 s37, s6, 10
    s_add_u32 s37, s37, {ST_G}
    s_cmp_lt_u32 s56, 2
    s_cselect_b32 s61, s36, s37
    """)
    vm.issue(f"buffer_load_dwordx4 {vr(GF)}, v13, {sr(S_WS)}, s61 offen sc1", "gr")
def csq(a, sd, smat, sj):
    a(f"""
    s_cmp_ge_u32 s{sj}, 7
    s_cselect_b32 s37, 13, 0
    s_mul_i32 s{sd}, s{smat}, 7
    s_add_u32 s{sd}, s{sd}, s{sj}
    s_lshl_b32 s{sd}, s{sd}, 1
    s_sub_u32 s{sd}, s{sd}, s37
    """)
def granule_check(a, vm):
    lr = a.label("grre"); lo = a.label("grok"); l2 = a.label("gst"); l3 = a.label("gdn")
    csq(a, 36, 56, 7)
    a(f"""
    s_lshl_b32 s37, s6, 1
    s_cmp_lt_u32 s56, 2
    s_cselect_b32 s36, s36, s37
    s_cselect_b32 s37, 0, 1
    s_add_u32 s37, s37, s36
    v_readlane_b32 s36, v{VT}, s36
    v_readlane_b32 s37, v{VT}, s37
    v_cmp_gt_u32 vcc, 32, v1
    v_mov_b32 v5, s36
    v_mov_b32 v4, s37
    v_cndmask_b32 v4, v4, v5, vcc
    s_mov_b32 s58, {POLL_MAX}
    """)
    vm.wait("gr")
    a(f"""
    {lr}:
    v_cmp_ne_u32 vcc, v4, v{GF+1}
    v_cmp_ne_u32 s[36:37], v4, v{GF+3}
    s_or_b64 vcc, vcc, s[36:37]
    s_cbranch_scc0 {lo}
    buffer_load_dwordx4 {vr(GF)}, v13, {sr(S_WS)}, s61 offen sc1
    s_waitcnt vmcnt(0)
    s_sub_u32 s58, s58, 1
    s_cmp_lg_u32 s58, 0
    s_cbranch_scc1 {lr}
    {lo}:
    s_cmp_lt_u32 s56, 2
    s_cbranch_scc0 {l2}
    s_lshl_b32 s36, s56, 9
    s_add_u32 s36, s36, {AUXL}
    v_lshl_add_u32 v4, v1, 3, s36
    ds_write2_b32 v4, v{GF}, v{GF+2} offset0:0 offset1:1
    s_branch {l3}
    {l2}:
    v_lshlrev_b32 v{GF}, 16, v{GF}
    v_lshlrev_b32 v{GF+2}, 16, v{GF+2}
    v_xor_b32 v{GF}, 0x80000000, v{GF}
    v_xor_b32 v{GF+2}, 0x80000000, v{GF+2}
    v_and_b32 v4, 7, v1
    v_lshlrev_b32 v4, 5, v4
    v_bfe_u32 v5, v1, 3, 2
    v_lshl_add_u32 v4, v5, 2, v4
    v_lshrrev_b32 v5, 5, v1
    v_lshl_add_u32 v4, v5, 8, v4
    v_add_u32 v4, {AUXL+1024}, v4
    ds_write2_b32 v4, v{GF}, v{GF+2} offset0:0 offset1:4
    {l3}:
    """)

WADV = "s_add_u32 s51, s51, 0x8000\ns_cmp_eq_u32 s51, s87\ns_cselect_b32 s51, s86, s51\n"
def wdA_units(k):
    return [((WADV if (k and e == 0) else "") + f"s_add_u32 m0, s52, {WSLOT[k] + e*1024}\ns_add_u32 s49, s51, {e*8192}", f"buffer_load_dwordx4 v{VWD}, {sr(S_WD)}, s49 offen lds", "wd") for e in range(4)]

DF = 16
GROUPS = ((7,4,3,0),(6,5,2,1))
def conv_setup(a):
    a(f"""
    s_lshr_b32 s91, s2, 5
    s_mul_i32 s91, s91, {ATP}
    s_and_b32 s41, s2, 31
    s_lshl_b32 s41, s41, 1
    s_add_u32 s41, s41, s5
    s_lshl_b32 s41, s41, 7
    s_add_u32 s91, s91, s41
    s_add_u32 s91, s91, {AT_OFF}
    s_lshl_b32 s41, s5, 4
    s_lshr_b32 s38, s{S_DD}, s41
    s_and_b32 s38, s38, 0xffff
    s_bitcmp1_b32 s56, 0
    s_cselect_b32 s38, 0, s38
    v_and_b32 v2, 15, v1
    v_lshrrev_b32 v3, 4, v1
    v_lshlrev_b32 v3, 3, v3
    v_sub_u32 v2, v2, v3
    v_add_u32 v2, 16, v2                        ; i = m+16-8g
    v_ashrrev_i32 v2, 1, v2
    v_and_b32 v3, 1, v1
    v_lshlrev_b32 v3, 4, v3
    v_lshlrev_b32 v3, v3, s38
    v_cmp_eq_i32 s[78:79], 0, v2
    v_cmp_eq_i32 s[80:81], 1, v2
    v_cmp_eq_i32 s[82:83], 2, v2
    v_cmp_eq_i32 s[84:85], 3, v2
    v_cndmask_b32 v{DF}, 0, v3, s[78:79]
    v_cndmask_b32 v{DF+1}, 0, v3, s[80:81]
    v_cndmask_b32 v{DF+2}, 0, v3, s[82:83]
    v_cndmask_b32 v{DF+3}, 0, v3, s[84:85]
    s_and_b32 s41, s56, 1
    s_lshl_b32 s41, s41, 5
    s_lshr_b32 s{S_FO}, s2, 3
    s_add_u32 s{S_FO}, s{S_FO}, s41
    s_mul_i32 s{S_FO}, s{S_FO}, {AFS}
    s_and_b32 s41, s2, 7
    s_lshl_b32 s41, s41, 1
    s_add_u32 s41, s41, s5
    s_lshl_b32 s41, s41, 2
    s_add_u32 s{S_FO}, s{S_FO}, s41
    s_add_u32 s{S_FO}, s{S_FO}, {AF_OFF}
    """)

def post_b16(a):
    lu = a.label("uok")
    a("F_pp:")
    tails(a)
    l2 = a.label("uj")
    a(f"s_waitcnt vmcnt(28)\ns_cmp_eq_u32 s55, 2\ns_cbranch_scc1 {l2}\ns_cmp_eq_u32 s55, 1\ns_cbranch_scc1 {lu}")
    xf_addr(a, 41)
    poll(a, XFL, 14, S_WS, "s41", -1, f"v{VT}")
    u_loads(a, None)
    a(f"{lu}:\ns_waitcnt vmcnt(0)\n{l2}:")
    stamp(a, "ps1")
    a(f"""
    ds_write_b128 v{UA}, {vr(UF)}
    ds_write_b128 v{UA}, {vr(UF+4)} offset:2048
    s_mov_b64 exec, 1
    ds_add_u32 v{VCN}, v{VONE} offset:{C_PS}
    s_mov_b64 exec, -1
    """)
    lds_wait(a, VCN, C_PS, 4, 2)
    stamp(a, "ps2")
    a(f"s_setprio {O.cvprio}")
    CAC = KW; POOL = list(range(KW+32, 256, 4))
    mf = []; loads = {}
    for cls in range(4):
        for k in range(8):
            loads[("A",cls,k)] = (lambda r, cls=cls, k=k: [f"ds_read_b64 v[{r}:{r+1}], v{CA} offset:{512*(7-k)+192-64*cls}", f"ds_read_b64 v[{r+2}:{r+3}], v{CA} offset:{512*(7-k)+192-64*cls+8}"])
            loads[("B",cls,k)] = (lambda r, cls=cls, k=k: [f"ds_read_b128 {vr(r)}, v{CB} offset:{512*k+192-64*cls}"])
        for k in range(8):
            for tau in range(k, 8):
                first = (cls == 0 and k == 0)
                mf.append((f"v_mfma_f32_16x16x32_bf16 {vr(CAC+4*tau)}, {{1}}, {{0}}, {0 if first else vr(CAC+4*tau)}", [("A",cls,k), ("B",cls,tau-k)]))
        if cls == 0:
            for tau in range(8):
                mf.insert(8+tau, (f"v_mfma_f32_16x16x32_bf16 {vr(CAC+4*tau)}, {{0}}, {vr(DF)}, {vr(CAC+4*tau)}", [("B",0,tau)]))
    pipeline(a, mf, loads, POOL[:O.cpool], per_gap=O.cgap, lead=14)
    stamp(a, 'cv_m')
    FR = KW+32
    a(f"""
    s_lshl_b32 s41, s5, 2
    v_add_u32 v3, s41, v{VCN}
    s_mov_b64 exec, 1
    ds_add_u32 v3, v{VONE} offset:{C_KF}
    s_mov_b64 exec, -1
    s_mul_i32 s41, s5, {4*PC}
    s_and_b32 s40, s56, 1
    s_lshl_b32 s44, s40, 12
    s_add_u32 s41, s41, {LC}
    s_add_u32 s45, s41, s44
    v_lshl_add_u32 v4, v1, 4, s45
    s_xor_b32 s44, s44, 0x1000
    s_add_u32 s45, s41, s44
    v_lshl_add_u32 v13, v1, 4, s45
    s_mul_i32 s44, s40, {128*ATP}
    s_add_u32 s42, s91, s44
    """)
    lds_wait(a, 3, C_KF, 3, 2)
    h1 = a.label("h1"); hj = a.label("hj")
    a(f"s_bitcmp1_b32 s56, 0\ns_cbranch_scc1 {h1}")
    for k in range(4): a(f"ds_write_b128 v13, {vr(CAC+16+4*k)} offset:{1024*k}")
    a(f"s_branch {hj}\n{h1}:")
    for k in range(4): a(f"ds_write_b128 v13, {vr(CAC+4*k)} offset:{1024*k}")
    for k in range(8): a(f"v_mov_b64 {pr(CAC+2*k)}, {pr(CAC+16+2*k)}")
    a(f"{hj}:\ns_mov_b64 exec, 1\nds_add_u32 v3, v{VONE} offset:{C_KF}\ns_mov_b64 exec, -1")
    lds_wait(a, 3, C_KF, 5, 2)
    stamp(a, 'cv_x')
    for k in range(4): a(f"ds_read_b128 {vr(FR+4*k)}, v4 offset:{1024*k}")
    for k in range(4):
        U = FR+16+4*k
        a(f"s_waitcnt lgkmcnt({3-k})")
        for r in range(4): a(f"v_add_f32 v{CAC+4*k+r}, v{CAC+4*k+r}, v{FR+4*k+r}")
        a(f"v_cvt_pk_bf16_f32 v{U}, v{CAC+4*k}, v{CAC+4*k+1}\nv_cvt_pk_bf16_f32 v{U+1}, v{CAC+4*k+2}, v{CAC+4*k+3}")
        a(f"s_add_u32 s44, s42, {k*32*ATP}\nbuffer_store_dwordx2 {pr(U)}, v{CS_}, {sr(S_WS)}, s44 offen sc1")
    stamp(a, "conv_end")
    prod_tail(a)
O.cpool = 32; O.cpf = 1; O.tch = 0; O.wb1 = 4; O.map2 = 1; O.go_at = 7; O.epk = 0; O.lalign = None; O.cvprio = 1; O.noa = 0; O.nob = 0; O.noconv = 0; O.hpol = 'sc1'; O.rotm = 7; O.hgap = 3; O.wpf = 7; O.pprio = 0; O.dsn = 5; O.pair_at = 36; O.cgap = 2


E1B = 3*SLOT; E2B = XR + 4*HS
def k8_pre(a):
    a(f"""
    s_lshr_b32 s5, s56, 1
    s_and_b32 s40, s56, 1
    s_lshl_b32 s40, s40, 8
    s_mul_i32 s41, s5, {48*512}
    s_add_u32 s41, s41, s40
    s_add_u32 s41, s41, {E1B}
    v_lshl_add_u32 v200, v1, 2, s41
    """)
    for r in range(1, 8): a(f"v_xor_b32 v{200+r}, {r<<4}, v200")
def k8_head(a, W):
    AR, PH, T, DT, C2 = W, W+1, W+2, W+5, W+6
    V = PV
    a(f"""
    s_lshl_b32 s3, s5, 4
    s_lshr_b32 s3, s{S_LDT}, s3
    s_lshl_b32 s3, s3, 16
    v_mov_b32 v{DT}, {hex(LOG2E)}
    v_mul_f32 v{DT}, s3, v{DT}
    v_lshlrev_b32 v{V}, 16, v{V}
    v_lshlrev_b32 v{V+1}, 16, v{V+1}
    v_mul_f32 v{V}, {hex(LOG2E)}, v{V}
    v_exp_f32 v{V}, v{V}
    v_exp_f32 v{DT}, v{DT}
    v_lshlrev_b32 v{V+2}, 16, v{V+2}
    v_cvt_pk_bf16_f32 v{T}, v{DT}, v{V}
    v_lshlrev_b32 v{DT}, 16, v{T}
    v_and_b32 v{V}, 0xffff0000, v{T}
    v_mul_f32 v{AR}, v{V}, v{DT}
    v_mul_f32 v{PH}, v{V+1}, v{DT}
    v_mul_f32 v{AR}, {hex(LOG2E ^ 0x80000000)}, v{AR}
    v_mul_f32 v{PH}, {hex(INV2PI)}, v{PH}
    """)
def k8_cm(a, ops):
    for (o,x,w,t) in ops: a(f"v_pk_mul_f32 {pr(t)}, {pr(x)}, {pr(w)} op_sel_hi:[1,0]")
    for (o,x,w,t) in ops: a(f"v_pk_fma_f32 {pr(o)}, {pr(x)}, {pr(w)}, {pr(t)} op_sel:[1,1,0] op_sel_hi:[0,1,1] neg_lo:[1,0,0]")
def k8_anchors(a, anc, AR, PH, TT):
    for i, (o, p) in enumerate(anc): a(f"v_mul_f32 v{TT+2*i}, {hex(f2u(float(p)))}, v{AR}\nv_mul_f32 v{TT+2*i+1}, {hex(f2u(float(p)))}, v{PH}")
    for i, (o, p) in enumerate(anc): a(f"v_fract_f32 v{TT+2*i+1}, v{TT+2*i+1}\nv_exp_f32 v{TT+2*i}, v{TT+2*i}")
    for i, (o, p) in enumerate(anc): a(f"v_cos_f32 v{o}, v{TT+2*i+1}\nv_sin_f32 v{o+1}, v{TT+2*i+1}")
    a("s_nop 0")
    for i, (o, p) in enumerate(anc): a(f"v_pk_mul_f32 {pr(o)}, {pr(o)}, {pr(TT+2*i)} op_sel_hi:[1,0]")
def k8_part0(a):
    W = KW; AR, PH, DT, C2 = W, W+1, W+5, W+6
    W8, W16, C3, Y, Y2, W128, W256, TT, PK = W+8, W+10, W+12, W+14, W+16, W+18, W+20, W+24, W+40
    k8_head(a, W)
    a(f"""
    v_lshlrev_b32 v{PV+3}, 16, v{PV+3}
    v_add_f32 v{DT}, v{DT}, v{DT}
    v_mul_f32 v{C2}, v{PV+2}, v{DT}
    v_mul_f32 v{C2+1}, v{PV+3}, v{DT}
    """)
    k8_anchors(a, [(W8, 8), (W16, 16), (Y, 1024), (Y2, 1152), (W256, 256)], AR, PH, TT)
    k8_cm(a, [(C3, C2, W8, TT)])
    for i in range(8):
        pk = PK + 4*(i % 2)
        a(f"v_cvt_pk_bf16_f32 v{pk}, v{C2}, -v{C2+1}\nv_cvt_pk_bf16_f32 v{pk+1}, v{C3}, -v{C3+1}")
        if i < 5: a(f"v_cvt_pk_bf16_f32 v{pk+2}, v{Y}, v{Y+1}")
        if i < 4: a(f"v_cvt_pk_bf16_f32 v{pk+3}, v{Y2}, v{Y2+1}")
        ops = []
        if i < 7: ops += [(C2, C2, W16, TT), (C3, C3, W16, TT+2)]
        if i < 4: ops += [(Y, Y, W256, TT+4)]
        if i < 3: ops += [(Y2, Y2, W256, TT+6)]
        k8_cm(a, ops)
        a(f"ds_write2st64_b32 v{208+i}, v{pk}, v{pk+1} offset0:{4*i} offset1:{4*i+2}")
        if i < 4: a(f"ds_write2st64_b32 v{200+i}, v{pk+2}, v{pk+3} offset0:{64+4*i} offset1:{64+4*i+2}")
        if i == 4: a(f"ds_write_b32 v{204}, v{pk+2} offset:{40*512}")
def k8_part1(a):
    W = KW; AR, PH = W, W+1
    Fk = lambda k: W+6+2*k; Ca = lambda k: W+20+2*k
    TT = W+36; O4 = [W+48+2*i for i in range(4)]; PK = 128
    k8_head(a, W)
    k8_anchors(a, [(Fk(1), 1), (Fk(2), 2), (Ca(1), 128), (Ca(2), 256)], AR, PH, TT)
    have = set()
    def put(row, x):
        if x is None: a(f"v_mov_b32 v{PK+row}, 0x3f80")
        else: a(f"v_cvt_pk_bf16_f32 v{PK+row}, v{x}, v{x+1}")
        have.add(row)
    done = set()
    def flush():
        for r in range(0, 32, 2):
            if r not in done and r in have and r+1 in have:
                a(f"ds_write2st64_b32 v{200+(r//2)%8}, v{PK+r}, v{PK+r+1} offset0:{2*r} offset1:{2*r+2}"); done.add(r)
    crow = {1:8, 2:16, 3:20, 4:24, 5:26, 6:28, 7:30}
    put(0, None); put(1, Fk(1)); put(2, Fk(2)); put(8, Ca(1)); put(16, Ca(2))
    for k in (3, 5, 7):
        ops = [(Fk(k), Fk(k-2), Fk(2), TT), (Ca(k), Ca(k-2), Ca(2), TT+2)]
        if k < 7: ops += [(Fk(k+1), Fk(k-1), Fk(2), TT+4), (Ca(k+1), Ca(k-1), Ca(2), TT+6)]
        k8_cm(a, ops); flush()
        put(k, Fk(k)); put(crow[k], Ca(k))
        if k < 7: put(k+1, Fk(k+1)); put(crow[k+1], Ca(k+1))
    prods = [(8+k, Ca(1), Fk(k)) for k in range(1,8)] + [(16+i, Ca(2), Fk(2*i)) for i in (1,2,3)] + [(20+i, Ca(3), Fk(2*i)) for i in (1,2,3)] + [(crow[c]+1, Ca(c), Fk(4)) for c in (4,5,6,7)]
    for i in range(0, len(prods), 4):
        grp = prods[i:i+4]
        k8_cm(a, [(O4[k], x, w, TT+2*k) for k, (r, x, w) in enumerate(grp)]); flush()
        for k, (r, x, w) in enumerate(grp): put(r, O4[k])
    flush(); assert len(done) == 16
def k8_mfma_pre(a, tile_s, ch_s):
    a(f"""
    v_and_b32 v2, 15, v1
    v_lshrrev_b32 v3, 4, v1
    v_lshrrev_b32 v4, 1, v2
    v_xor_b32 v4, v4, v3
    v_lshlrev_b32 v4, 4, v4
    v_lshl_add_u32 v4, v2, 9, v4
    s_mul_i32 s40, s{ch_s}, 3
    s_add_u32 s40, s40, s{tile_s}
    s_lshl_b32 s40, s40, 13
    s_add_u32 s40, s40, {E1B}
    v_add_u32 v214, s40, v4
    v_xor_b32 v215, 64, v214
    s_lshl_b32 s40, s{ch_s}, 13
    s_add_u32 s40, s40, {E2B}
    v_add_u32 v216, s40, v4
    v_xor_b32 v217, 64, v216
    """)
def k8_mfma(a):
    FR = 128; AK = 220
    for ks in range(8):
        a(f"ds_read_b128 {vr(FR+8*ks)}, v{214+(ks&1)} offset:{(ks>>1)*128}")
        a(f"ds_read_b128 {vr(FR+8*ks+4)}, v{216+(ks&1)} offset:{(ks>>1)*128}")
    for ks in range(8):
        a(f"s_waitcnt lgkmcnt({14-2*ks})")
        a(f"v_mfma_f32_16x16x32_bf16 {vr(AK+4*(ks&1))}, {vr(FR+8*ks)}, {vr(FR+8*ks+4)}, {vr(AK+4*(ks&1)) if ks > 1 else 0}")
    a("s_nop 7")
    a(f"v_pk_add_f32 {pr(AK)}, {pr(AK)}, {pr(AK+4)}\nv_pk_add_f32 {pr(AK+2)}, {pr(AK+2)}, {pr(AK+6)}")
    a(f"v_cvt_pk_bf16_f32 v{AK}, v{AK}, v{AK+1}\nv_cvt_pk_bf16_f32 v{AK+1}, v{AK+2}, v{AK+3}")

def dma_setup(a, sp):
    a(f"""
    v_lshrrev_b32 v2, 4, v1
    v_bfe_u32 v3, v1, 1, 3
    s_and_b32 s41, s{sp}, 1
    s_lshl_b32 s41, s41, 2
    v_xor_b32 v3, v3, v2
    v_xor_b32 v3, s41, v3
    v_and_b32 v4, 1, v1
    v_lshl_or_b32 v3, v3, 1, v4
    v_mul_u32_u24 v4, 3584, v2
    v_lshl_add_u32 v8, v3, 4, v4
    v_and_b32 v3, 7, v1
    v_xor_b32 v3, v3, v2
    v_lshrrev_b32 v4, 3, v1
    v_lshlrev_b32 v4, 10, v4
    v_lshl_add_u32 v9, v3, 4, v4
    v_xor_b32 v10, 64, v9
    v_add_u32 v10, 0x1c00, v10
    v_add_u32 v12, {4*3584-2048}, v8
    s_mul_i32 s42, s{sp}, {8*3584}
    s_lshl_b32 s43, s7, 8
    s_add_u32 s42, s42, s43
    s_add_u32 s50, s42, {512*3584}
    s_mul_i32 s47, s60, {64*3584}
    s_add_u32 s47, s47, s42
    s_lshl_b32 s43, s6, 17
    s_lshl_b32 s44, s{sp}, 14
    s_add_u32 s43, s43, s44
    s_lshl_b32 s46, s60, 7
    s_lshl_b32 s44, s{sp}, 12
    s_lshl_b32 s45, s{sp}, 11
    s_add_u32 s45, s45, {XR}
    """)
def wu_fix(a): a(f"s_sub_u32 s{S_WU}, s{S_WU}, 1024\ns_subb_u32 s{S_WU+1}, s{S_WU+1}, 0")
def xhalf(h, tag):
    sig, hh = h >> 1, h & 1
    pre = f"s_add_u32 m0, s45, {(h % 7)*HS}\n"
    if hh == 0: pre += "s_add_u32 s48, s46, s43"
    else: pre += "s_add_u32 s48, s48, 0x10000\ns_add_u32 s46, s46, 128\ns_and_b32 s46, s46, 0x3ff"
    return [(pre, f"buffer_load_dwordx4 v9, {sr(S_X)}, s48 offen lds", tag), ("", f"buffer_load_dwordx4 v10, {sr(S_X)}, s48 offen offset:1024 lds", tag)]
ADV = f"s_add_u32 s47, s47, {32*3584}\ns_cmp_eq_u32 s47, s50\ns_cselect_b32 s47, s42, s47"
def group(g):
    b = (g % NW)*SLOT
    adv = ADV if g else "s_nop 0"
    o = [(f"s_add_u32 m0, s44, {b}\n{adv}", f"buffer_load_dwordx4 v8, {sr(S_WG)}, s47 offen lds", g),
         ("", f"buffer_load_dwordx4 v8, {sr(S_WU)}, s47 offen offset:1024 lds", g),
         ("", f"buffer_load_dwordx4 v12, {sr(S_WG)}, s47 offen offset:2048 lds", g),
         ("", f"buffer_load_dwordx4 v12, {sr(S_WU)}, s47 offen offset:3072 lds", g)]
    if g < 15: o += xhalf(g+1, g)
    return o
NCG = 0

def prefetches(a):
    if O.cpf: a(f"""
    s_getpc_b64 s[36:37]
    F_pc:
    s_sub_u32 s36, s36, F_pc-{NAME}
    s_subb_u32 s37, s37, 0
    s_bfe_u32 s38, s2, 0x30003
    s_lshl_b32 s38, s38, 2
    s_add_u32 s38, s38, s56
    s_lshl_b32 s38, s38, 10
    s_min_u32 s38, s38, F_last-{NAME}-1024
    v_lshlrev_b32 v2, 4, v1
    v_add_u32 v2, s38, v2
    global_load_dwordx4 v[240:243], v2, s[36:37]
    """)
    if O.tch: a(f"""
    v_lshlrev_b32 v2, 21, v1
    s_mov_b64 exec, 0x7f
    buffer_load_dword v244, v2, {sr(S_WS)}, 0 offen
    s_mov_b64 exec, 1
    buffer_load_dword v245, v2, {sr(S_OUT)}, 0 offen
    buffer_load_dword v246, v2, {sr(S_WD)}, 0 offen
    s_mov_b64 exec, -1
    """)

def g1_producer(a):
    vm = VM(a)
    dma_setup(a, 56); a('s_waitcnt lgkmcnt(0)'); wu_fix(a)
    stamp(a, "p_start")
    units = [(u, -1) for u in xhalf(0, 0)]
    for g in range(NCG, 16):
        for k, u in enumerate(group(g)):
            h = g+1
            if k < 4: mb = g-5 if g > 5 else -1
            else: mb = -1 if h < 7 else 2*((h-7) >> 1) + 2
            units.append((u, mb))
    for k in range(NRG): units += [(u, WAVAIL[k]) for u in wdA_units(k)]
    def take(s, n):
        o = []
        while units and len(o) < n and units[0][1] <= s: o.append(units.pop(0)[0])
        return o
    def emit(dmas, lines):
        n = len(dmas); cuts = [i*len(lines)//n for i in range(n)] if n else []
        k = 0
        for i in range(len(lines)+1):
            while k < n and cuts[k] == i:
                a(dmas[k][0]); vm.issue(dmas[k][1], dmas[k][2]); k += 1
            if i < len(lines): a.lines.append(lines[i])
    def L(fn, *args, **kw):
        b = Asm("B"); fn(b, *args, **kw); return b.lines
    emit(take(-1, 20), [])
    late_loads(a)
    prefetches(a); vm.ops += ["pf"]*(O.cpf + 3*O.tch)
    emit(take(-1, 12), L(prod_setup))
    stamp(a, "p_kg")
    a("s_waitcnt lgkmcnt(0)")
    conv_setup(a)
    a("s_barrier")
    bg = {}
    for s in range(17):
        if s <= 15:
            assert any(t == s for t in vm.ops) and not any(u[0][2] == s for u in units), s
            vm.wait(s)
        if s == 16: vm.wait("wd", "lgkmcnt(0)")
        a("s_barrier")
        stamp(a, f"pb{s}")
        if s == 11:
            vm.wait("tag")
            tags_check(a)
        if s == O.xfc:
            vm.wait("xf")
            a(f"v_cmp_ne_u32 vcc, v{VT}, v{XFL}\ns_cmp_eq_u64 vcc, 0\ns_cselect_b32 s55, 2, 0")
            u_loads(a, vm)
        emit(take(s, O.quota[s] if s < 16 else 99), bg.get(s, []))
        if O.wpf and s == O.wpf-1:
            a(f"""
            s_lshr_b32 s88, s2, 3
            s_sub_u32 s88, s88, 4
            s_lshl_b32 s88, s88, 2
            s_add_u32 s88, s88, s56
            s_lshl_b32 s88, s88, 14
            s_and_b32 s89, s2, 1
            s_lshl_b32 s89, s89, 9
            s_add_u32 s88, s88, s89
            s_and_b32 s89, s2, 6
            s_lshl_b32 s89, s89, 11
            v_lshrrev_b32 v2, 5, v1
            v_lshlrev_b32 v2, 10, v2
            v_and_b32 v3, 31, v1
            v_lshl_add_u32 v228, v3, 4, v2
            """)
        if O.wpf and O.wpf <= s < O.wpf+8:
            a("s_add_u32 s90, s88, s89")
            vm.issue(f"buffer_load_dwordx4 v[224:227], v228, {sr(S_WD)}, s90 offen", "wpf")
            if O.map2 == 2:
                a("s_xor_b32 s90, s90, 0x2200")
                vm.issue(f"buffer_load_dwordx4 v[232:235], v228, {sr(S_WD)}, s90 offen", "wpf")
            a("s_add_u32 s89, s89, 0x800\ns_and_b32 s89, s89, 0x3fff")
        if s == 7: vm.issue(f"buffer_load_dword v{VT}, v14, {sr(S_DBG)}, 0 offen sc1", "tag")
        if s == O.xfc-2:
            xf_addr(a, 36)
            vm.issue(f"buffer_load_dword v{XFL}, v14, {sr(S_WS)}, s36 offen sc1", "xf")
        if s == 12: granule_issue(a, vm)
        if s == 15: granule_check(a, vm)
    assert not units
    stamp(a, "p_b16")
    expand_gather(a); tails_prep(a)
    lds_signal(a, VCN, C_KX, VONE)
    a.lines += expand_writes()
    lds_wait(a, VCN, C_KX, 4, 2)
    n = vm.count_after("u"); assert n <= 28
    a(f"s_waitcnt vmcnt({n})")
    post_b16(a)

ACC = 128
def acc(t, mat, nt): return ACC + ((nt*4+t)*2+mat)*4
def FA(b, t, mat): return 32 + 48*b + (t*2+mat)*4
def FB(b, nt): return 32 + 48*b + 32 + 4*nt
def g1_consumer(a):
    VA, VB = 8, 12
    a(f"""
    s_setprio {O.cprio}
    v_mov_b32 v{VCN}, {CNT}
    v_lshl_add_u32 v2, v1, 2, v{VCN}
    v_mov_b32 v3, 0
    ds_write_b32 v2, v3
    """)
    late_loads(a)
    a(f"""
    """)
    a(f"""
    s_and_b32 s40, s{S_WAVE}, 1
    s_lshr_b32 s41, s{S_WAVE}, 1
    v_lshrrev_b32 v2, 4, v1
    v_bfe_u32 v3, v1, 2, 2
    v_and_b32 v4, 3, v1
    v_and_b32 v5, 1, v2
    v_lshl_or_b32 v5, v5, 2, v3
    s_lshl_b32 s42, s40, 2
    v_xor_b32 v5, s42, v5
    v_lshlrev_b32 v5, 5, v5
    v_lshl_add_u32 v5, v4, 3, v5
    v_lshl_add_u32 v5, v3, 8, v5
    v_lshl_add_u32 v{VA}, v2, 12, v5
    v_xor_b32 v{VA+1}, 32, v{VA}
    v_xor_b32 v{VA+2}, 64, v{VA}
    v_xor_b32 v{VA+3}, 96, v{VA}
    v_and_b32 v6, 15, v1
    v_lshrrev_b32 v7, 1, v6
    v_xor_b32 v7, v7, v2
    v_lshlrev_b32 v7, 4, v7
    v_lshl_add_u32 v7, v6, 7, v7
    s_lshl_b32 s42, s41, 13
    s_add_u32 s42, s42, {XR}
    v_add_u32 v{VB}, s42, v7
    v_xor_b32 v{VB+1}, 64, v{VB}
    s_lshl_b32 s42, s40, 8
    s_add_u32 s42, s42, {AUXL}
    v_lshl_add_u32 v14, v2, 4, s42
    s_lshl_b32 s42, s41, 8
    s_add_u32 s42, s42, {AUXL+1024}
    v_lshl_add_u32 v44, v6, 4, s42
    v_mov_b32 v{VFL}, 0
    s_lshl_b32 s42, s6, 1
    s_add_u32 s42, s42, s41
    s_lshl_b32 s{S_FO}, s42, 2
    s_mul_i32 s42, s42, 28
    s_lshl_b32 s43, s7, 1
    s_add_u32 s43, s43, s40
    s_add_u32 s42, s42, s43
    s_lshl_b32 s50, s42, 13
    s_add_u32 s51, s50, 4096
    s_mul_i32 s42, s43, 37
    s_lshr_b32 s42, s42, 8
    s_add_u32 s{S_FO}, s{S_FO}, s42
    s_mul_i32 s{S_FO}, s{S_FO}, {HFS}
    s_mul_i32 s42, s42, 7
    s_sub_u32 s43, s43, s42
    s_lshl_b32 s43, s43, 2
    s_add_u32 s{S_FO}, s{S_FO}, s43
    s_add_u32 s{S_FO}, s{S_FO}, {HF_OFF}
    s_mov_b64 s[{S_FM}:{S_FM+1}], 1
    s_mov_b32 s44, 0
    s_mov_b32 s45, s41
    s_mov_b32 s52, {SLOT}
    """)
    kaddr_setup(a)
    a("s_waitcnt vmcnt(0) lgkmcnt(0)")
    stamp(a, "c_par")
    kgen_valu(a, scalar=False, stream=True)
    stamp(a, "c_kv")
    kgen_exchange(a, kacc=AKACC, ef=AEF, bar=True)
    stamp(a, "c_kg")
    a("v_lshlrev_b32 v16, 4, v1\nv_mov_b32 v17, v44")
    def reads(b, sp):
        out = [f"ds_read_b128 {vr(FB(b,nt))}, v{VB+sp} offset:{nt*2048}" for nt in range(4)]
        for t in range(4):
            for mat in range(2):
                for rho in range(2):
                    d = FA(b,t,mat)+2*rho
                    out.append(f"ds_read_b64_tr_b16 v[{d}:{d+1}], v{VA+t} offset:{rho*2048+mat*1024}")
        return out
    def advW():
        return [f"s_add_u32 s44, s44, 1", f"s_cmp_eq_u32 s44, {NW}", f"s_cselect_b32 s46, {-(NW-1)*SLOT & 0xffffffff}, s52", f"s_cselect_b32 s44, 0, s44"] + \
               [f"v_add_u32 v{VA+t}, s46, v{VA+t}" for t in range(4)]
    def advX():
        return [f"s_add_u32 s45, s45, 2", f"s_cmp_ge_u32 s45, 7", f"s_cselect_b32 s47, {-5*HS & 0xffffffff}, s52", f"s_cselect_b32 s49, 7, 0", "s_sub_u32 s45, s45, s49"] + \
               [f"v_add_u32 v{VB+k}, s47, v{VB+k}" for k in range(2)]
    def mfma(b, t, mat, nt, first=False):
        c = acc(t,mat,nt)
        return f"v_mfma_f32_16x16x32_bf16 {vr(c)}, {vr(FA(b,t,mat))}, {vr(FB(b,nt))}, {0 if first else vr(c)}"
    def stage(b, rd, late, post=(), first=False):
        ms = [mfma(b,t,mat,nt,first) for t in range(4) for mat in range(2) for nt in range(4)]
        late = list(late); post = list(post)
        for i, m in enumerate(ms):
            a(m)
            if i < len(rd): a(rd[i])
            elif i < 27 and late:
                for _ in range(3 if len(late) > 2*(27-i) else 2):
                    if late: a(late.pop(0))
            if i == 27: a("s_waitcnt lgkmcnt(0)\ns_barrier")
            if i >= 27:
                for _ in range(2):
                    if post: a(post.pop(0))
        assert not late and not post
    a("s_waitcnt vmcnt(0) lgkmcnt(0)\ns_barrier")
    stamp(a, "c_b0")
    for r in reads(0, 0): a(r)
    for x in advW(): a(x)
    a("s_waitcnt lgkmcnt(0)\ns_barrier")
    a("s_mov_b32 s48, 7")
    lp = a.label("g1loop"); lm = a.label("g1mid")
    stage(0, reads(1, 1), advW() + advX(), first=True)
    a(f"s_branch {lm}\n{lp}:")
    stage(0, reads(1, 1), advW() + advX())
    a(f"{lm}:")
    stage(1, reads(0, 0), advW())
    a(f"s_sub_u32 s48, s48, 1\ns_cmp_lg_u32 s48, 0\ns_cbranch_scc1 {lp}")
    NM = 20
    csr = lambda t, mat: f"ds_read_b128 {vr(FA(0,t,mat))}, v14 offset:{mat*512+t*64}"
    post = [f"ds_read_b128 {vr(NM)}, v17"] + [csr(t, mat) for t in range(3) for mat in range(2)]
    stage(0, reads(1, 1), [], post)
    stamp(a, "c_s15")
    a(csr(3,0)); a(csr(3,1))
    def corr_s(ksl, nt):
        return [f"v_fmac_f32 v{acc(t,mat,nt)+r}, v{FA(0,t,mat)+r}, v{NM+nt}" for t in (2*ksl, 2*ksl+1) for mat in range(2) for r in range(4)]
    def corr(ksl, nt):
        if not O.epk: return corr_s(ksl, nt)
        o = []
        for t in (2*ksl, 2*ksl+1):
            for mat in range(2):
                for hf in range(2):
                    c = acc(t,mat,nt)+2*hf; cs = FA(0,t,mat)+2*hf; nm = NM + (nt & ~1); sel = nt & 1
                    o.append(f"v_pk_fma_f32 {pr(c)}, {pr(cs)}, {pr(nm)}, {pr(c)} op_sel:[0,{sel},0] op_sel_hi:[1,{sel},1]")
        return o
    def fin(ksl, nt):
        o = []
        for t in (2*ksl, 2*ksl+1):
            for hf in range(2):
                g = acc(t,0,nt)+2*hf; u = acc(t,1,nt)+2*hf
                if O.epk: o.append(f"v_pk_mul_f32 {pr(g)}, {pr(g)}, {pr(u)}")
                else: o += [f"v_mul_f32 v{g}, v{g}, v{u}", f"v_mul_f32 v{g+1}, v{g+1}, v{u+1}"]
        d = acc(2*ksl,1,nt); k = 0
        for t in (2*ksl, 2*ksl+1):
            for hf in range(2):
                g = acc(t,0,nt)+2*hf
                o.append(f"v_cvt_pk_bf16_f32 v{d+k}, v{g}, v{g+1}"); k += 1
        o.append(f"buffer_store_dwordx4 {vr(d)}, v16, {sr(S_WS)}, s{50+ksl} offen offset:{nt*1024} sc1")
        return o
    groups = [(ksl, nt) for ksl in range(2) for nt in range(4)]
    pre = set()
    for gi, (ksl, nt) in enumerate(groups):
        fill = []
        if gi == 1: a("s_waitcnt lgkmcnt(0)")
        if O.shadow == 4:
            if 1 <= gi <= 6: fill = corr_s(*groups[gi+1]); pre.add(gi+1)
            if gi == 7: fill = corr_s(*groups[0]); pre.add(0)
        elif O.shadow == 2:
            tgt = {1:3, 2:3, 3:5, 4:5, 5:7, 6:7}
            if gi in tgt:
                c = corr_s(*groups[tgt[gi]]); fill = c[:8] if gi % 2 else c[8:]; pre.add(tgt[gi])
        n = len(fill)//4
        for k, m in enumerate([mfma(1, t, mat, nt) for t in (2*ksl, 2*ksl+1) for mat in range(2)]):
            a(m)
            for x in fill[n*k:n*k+n]: a(x)
    for gi in range(8):
        if gi not in pre:
            for x in corr(*groups[gi]): a(x)
        for x in fin(*groups[gi]): a(x)
    stamp(a, "c_end")

LA = LC
VX, VO = 9, 10
XF = 24; RS = 28
def tail_setup(a, vm):
    a(f"""
    v_lshrrev_b32 v2, 3, v0
    v_lshlrev_b32 v{VX}, 10, v2
    v_and_b32 v3, 7, v0
    v_lshl_add_u32 v{VX}, v3, 4, v{VX}
    s_lshl_b32 s55, s53, 16
    s_lshl_b32 s50, s54, 7
    s_add_u32 s55, s55, s50
    v_mul_u32_u24 v{VO}, {PP}, v2
    v_lshl_add_u32 v{VO}, v3, 5, v{VO}
    v_add_u32 v{VO}, {LA}, v{VO}
    v_and_b32 v4, 15, v2
    v_lshlrev_b32 v3, 1, v3
    v_xor_b32 v3, v3, v4
    v_lshlrev_b32 v3, 4, v3
    v_lshl_add_u32 v3, v4, 8, v3
    v_lshrrev_b32 v4, 4, v2
    v_lshl_add_u32 v14, v4, 14, v3
    v_xor_b32 v15, 16, v14
    v_lshlrev_b32 v2, 3, v2
    s_lshl_b32 s50, s53, 9
    s_add_u32 s50, s50, {ST_G}
    """)
    for t, tag in ((f"buffer_load_dwordx4 {vr(XF)}, v{VX}, {sr(S_X)}, s55 offen", "x"), (f"buffer_load_dwordx2 {pr(RS)}, v2, {sr(S_WS)}, s50 offen sc1", "rs")):
        if vm: vm.issue(t, tag)
        else: a(t)

def prod_tail(a):
    a(f"""
    F_ptail:
    s_mov_b64 exec, 1
    ds_add_u32 v{VCN}, v{VONE} offset:{C_PS}
    s_mov_b64 exec, -1
    v_lshlrev_b32 v12, 4, v1
    v_lshlrev_b32 v13, 2, v1
    s_lshl_b32 s42, s53, 3
    s_add_u32 s42, s42, s54
    s_mul_i32 s42, s42, {ATP}
    s_lshl_b32 s41, s56, 11
    s_add_u32 s42, s42, s41
    s_add_u32 s42, s42, {AT_OFF}
    s_lshr_b32 s46, s53, 4
    s_lshl_b32 s46, s46, 3
    s_add_u32 s46, s46, s54
    s_lshl_b32 s46, s46, 2
    s_add_u32 s46, s46, s56
    s_mul_i32 s46, s46, {AFS}
    s_add_u32 s46, s46, {AF_OFF}
    v_and_b32 v16, 7, v1
    v_mul_u32_u24 v18, {2*PP}, v16
    v_lshrrev_b32 v16, 3, v1
    v_lshl_add_u32 v18, v16, 2, v18
    s_lshl_b32 s49, s56, 6
    s_add_u32 s49, s49, {LA}
    v_add_u32 v18, s49, v18
    v_mov_b32 v5, s{S_TAG}
    v_mov_b32 v4, 0
    s_waitcnt vmcnt(0)
    s_mov_b64 exec, 1
    buffer_store_dword v5, v4, {sr(S_WS)}, s{S_FO} offen sc1
    s_mov_b64 exec, -1
    """)
    stamp(a, 'a_st0')
    AG = 96; AU = 112
    lds_wait(a, VCN, C_PS, 8, 3)
    lds_wait(a, VCN, 52, 4, 3, sleep=4)
    tail_setup(a, None)
    poll(a, 5, 13, S_WS, "s46", 0xffff, f"s{S_TAG}", sleep=O.asleep)
    stamp(a, "hflag")
    for k in range(2): a(f"buffer_load_dwordx4 {vr(AG+4*k)}, v12, {sr(S_WS)}, s42 offen offset:{1024*k} sc1")
    for k in range(2):
        a(f"s_waitcnt vmcnt({1-k})")
        for j in range(4):
            a(f"v_lshlrev_b32 v{AU+8*k+2*j}, 16, v{AG+4*k+j}\nv_and_b32 v{AU+8*k+2*j+1}, 0xffff0000, v{AG+4*k+j}")
        for e in range(8): a(f"ds_write_b32 v18, v{AU+8*k+e} offset:{(16*(e&3) + (e>>2))*PP + 32*k}")
    lr = a.label("rsr"); lo = a.label("rso")
    a(f"""
    v_readlane_b32 s41, v{VT}, s53
    s_mov_b32 s58, {POLL_MAX}
    {lr}:
    s_waitcnt vmcnt(0)
    v_cmp_ne_u32 vcc, s41, v{RS+1}
    s_cbranch_vccz {lo}
    buffer_load_dwordx2 {pr(RS)}, v2, {sr(S_WS)}, s50 offen sc1
    s_sub_u32 s58, s58, 1
    s_cmp_lg_u32 s58, 0
    s_cbranch_scc1 {lr}
    {lo}:
    """)
    stamp(a, "g2_end")
    a("s_branch F_fin")

def gemm2(a):
    VA, VP, V3 = 16, 20, 12
    V3 = 28
    VH, VQ, VW2 = 8, 13, 12
    AC = 144
    R = NRG
    a(f"""
    F_g2:
    s_setprio 3
    v_mov_b32 v{VCN}, {CNT}
    v_lshrrev_b32 v4, 4, v1                     ; g
    v_bfe_u32 v2, v1, 3, 1
    v_and_b32 v3, 1, v4
    v_lshl_or_b32 v3, v3, 1, v2
    v_lshlrev_b32 v3, 5, v3
    v_and_b32 v4, 3, v1
    v_lshl_add_u32 v3, v4, 3, v3
    v_lshrrev_b32 v4, 2, v1
    v_lshl_add_u32 v3, v4, 7, v3
    s_lshl_b32 s52, s{S_WAVE}, 12
    v_add_u32 v{VA}, s52, v3
    v_xor_b32 v{VA+1}, 32, v{VA}
    v_xor_b32 v{VA+2}, 64, v{VA}
    v_xor_b32 v{VA+3}, 96, v{VA}
    """)
    for t in range(4): a(f"v_add_u32 v{VP+t}, 0x18000, v{VA+t}\nv_add_u32 v{V3+t}, 0x8000, v{VA+t}")
    wd_voff(a)
    lf = a.label("nofl")
    a(f"""
    s_lshl_b32 s41, s{S_WAVE}, 2
    v_add_u32 v7, s41, v{VCN}
    s_mul_i32 s86, s{S_WAVE}, {14*32*1024}
    s_lshl_b32 s41, s54, 7
    s_add_u32 s86, s86, s41
    s_add_u32 s87, s86, {14*32768}
    {rotc(44)}
    s_add_u32 s51, s44, {R-1}
    s_cmp_ge_u32 s51, 14
    s_cselect_b32 s41, 14, 0
    s_sub_u32 s51, s51, s41
    s_lshl_b32 s51, s51, 15
    s_add_u32 s51, s51, s86
    v_add_u32 v{VW2}, {8192-1024}, v{VWD}
    v_lshlrev_b32 v{VH}, 4, v1
    v_lshlrev_b32 v{VQ}, 2, v1
    s_lshl_b32 s47, s53, 2
    s_add_u32 s47, s47, s{S_WAVE}
    s_mul_i32 s47, s47, {HFS}
    s_add_u32 s47, s47, {HF_OFF}
    s_mul_i32 s45, s53, 56
    s_mul_i32 s48, s{S_WAVE}, 14
    s_add_u32 s45, s45, s48
    s_lshl_b32 s88, s45, 12
    s_add_u32 s89, s88, {14*4096}
    s_lshl_b32 s45, s44, 12
    s_add_u32 s45, s45, s88
    s_cmp_lg_u64 s[{S_FM}:{S_FM+1}], 0
    s_cbranch_scc1 {lf}
    """)
    lds_wait(a, 7, C_PAIR, 1, 2)
    a(f"{lf}:")
    stamp(a, "g2a")
    def wread(reg, slot):
        base = WSLOT[slot]; o = []
        for t in range(4):
            for rho in range(2):
                off = base + rho*2048
                if off >= XR: v, off = VP+t, off - 0x18000
                elif off >= 65536 - 4096: v, off = V3+t, off - 0x8000
                else: v = VA+t
                o.append(f"ds_read_b64_tr_b16 v[{reg+4*t+2*rho}:{reg+4*t+2*rho+1}], v{v} offset:{off}")
        return o
    vm = VM(a)
    def wdma(step):
        k = step % 7
        if O.nob: return
        for hh in range(2):
            a((WADV if hh == 0 else "") + f"s_add_u32 m0, s52, {WSLOT[k] + hh*2048}\ns_add_u32 s49, s51, {hh*16384}")
            vm.issue(f"buffer_load_dwordx4 v{VWD}, {sr(S_WD)}, s49 offen lds", ("w", step))
            vm.issue(f"buffer_load_dwordx4 v{VW2}, {sr(S_WD)}, s49 offen offset:1024 lds", ("w", step))
    blocks = [32+16*i for i in range(7)] + [208, 224, 240]
    wreg = {s: blocks[s] for s in range(R)}
    free = blocks[R:]
    a(f"ds_read_b32 v5, v{VCN} offset:{C_TAG}")
    for s in range(R):
        for x in wread(wreg[s], s): a(x)
    a(f"s_waitcnt lgkmcnt(0)\nv_readfirstlane_b32 s{S_TAG}, v5")
    lf2 = a.label("nofl2")
    stamp(a, 'g2r')
    a(f"""
    s_cmp_eq_u64 s[{S_FM}:{S_FM+1}], 0
    s_cbranch_scc1 {lf2}
    s_waitcnt vmcnt({len(vm.ops)})
    s_mov_b64 exec, 1
    buffer_store_dword v5, v{VFL}, {sr(S_WS)}, s{S_FO} offen sc1
    s_mov_b64 exec, -1
    {lf2}:
    """)
    stamp(a, "flag")
    for s in range(R, R+O.wb1): wdma(s)
    a("s_mov_b64 exec, 0x7f")
    vm.issue(f"buffer_load_dword v2, v{VQ}, {sr(S_WS)}, s47 offen sc1", "hp")
    a("s_mov_b64 exec, -1")
    for s in range(R+O.wb1, 7+R): wdma(s)
    stamp(a, 'g2e')
    vm.wait("hp")
    lo = a.label("hok")
    a(f"s_mov_b64 exec, 0x7f\nv_cmp_ne_u32 vcc, s{S_TAG}, v2\ns_mov_b64 exec, -1\ns_cbranch_vccz {lo}")
    poll(a, 2, VQ, S_WS, "s47", 0x7f, f"s{S_TAG}")
    a(f"{lo}:")
    stamp(a, "hflag")
    hreg = {}; hn = [0]; pend = []
    def hqueue(keep=0):
        while hn[0] < 14 and len(free) > keep:
            step = hn[0]; hreg[step] = free.pop(0); hn[0] += 1
            for j in range(4):
                pre = "s_add_u32 s45, s45, 4096\ns_cmp_eq_u32 s45, s89\ns_cselect_b32 s45, s88, s45" if (step and j == 0) else ""
                pend.append((pre, f"buffer_load_dwordx4 {vr(hreg[step]+4*j)}, v{VH}, {sr(S_WS)}, s45 offen offset:{j*1024} {O.hpol}", ("h", step)))
    def pop():
        if pend:
            p = pend.pop(0); a(p[0]); vm.issue(p[1], p[2])
    hqueue()
    while pend: pop()
    a(f"s_setprio {O.g2prio}")
    for s in range(14):
        nxt = []
        if R <= s+1 <= 13:
            wreg[s+1] = free.pop(0)
            while any(p[2] == ("w", s+1) for p in pend): pop()
            if ("w", s+1) in vm.ops: vm.wait(("w", s+1))
            nxt = wread(wreg[s+1], (s+1) % 7)
        while any(p[2] == ("h", s) for p in pend): pop()
        vm.wait(("h", s), "lgkmcnt(0)" if s >= R else "")
        if s == 0: stamp(a, "h0")
        stamp(a, f"hs{s}")
        if R <= s and s+7 <= 13:
            k_ = (s+7) % 7; q_ = []
            for hh in range(2):
                q_.append(((WADV if hh == 0 else "") + f"s_add_u32 m0, s52, {WSLOT[k_] + hh*2048}\ns_add_u32 s49, s51, {hh*16384}", f"buffer_load_dwordx4 v{VWD}, {sr(S_WD)}, s49 offen lds", ("w", s+7)))
                q_.append(("", f"buffer_load_dwordx4 v{VW2}, {sr(S_WD)}, s49 offen offset:1024 lds", ("w", s+7)))
            pend += q_
        if s == 12:
            nxt += [f"v_and_b32 v2, 15, v1\nv_lshrrev_b32 v3, 4, v1", f"v_xor_b32 v3, v3, v2\nv_lshlrev_b32 v3, 4, v3", f"v_lshl_add_u32 v3, v2, 8, v3\nv_add_u32 v{VA}, s52, v3",
                    f"v_xor_b32 v{VA+1}, 64, v{VA}\nv_xor_b32 v{VA+2}, 128, v{VA}", f"v_xor_b32 v{VA+3}, 192, v{VA}"]
        if s == 13:
            wr_ = [f"ds_write_b128 v{VA+t}, {vr(AC+16*t+4*j)} offset:{j*SLOT}" for t in range(4) for j in range(4)]
            nxt = ["s_nop 0"]*5 + wr_[:11]
        k = 0
        for t in range(4):
            for j in range(4):
                c = AC + 16*t + 4*j
                a(f"v_mfma_f32_16x16x32_bf16 {vr(c)}, {vr(wreg[s]+4*t)}, {vr(hreg[s]+4*j)}, {0 if s == 0 else vr(c)}")
                if nxt: a(nxt.pop(0))
                if k % O.hgap == 0: pop()
                k += 1
        free.append(wreg[s]); free.append(hreg[s])
        hqueue(1 if R <= s+2 <= 13 else 0)
        if s == 10: tail_setup(a, vm)
        if s == O.go_at: a(f"v_mov_b32 v7, 1"); lds_signal(a, VCN, 52, 7)
    stamp(a, "g2_end")
    a(wr_[11]); a("s_nop 0"); a(wr_[12]); a("s_nop 0"); a(wr_[13]); a("s_nop 0"); a(wr_[14]); a("s_nop 0"); a(wr_[15])
    HF = 32
    a(f"""
    F_fin:
    s_waitcnt vmcnt(0)
    v_and_b32 v{RS}, 0xffff0000, v{RS}
    v_rcp_f32 v{RS+1}, v{RS}
    s_nop 0
    v_fma_f32 v{RS+2}, -v{RS}, v{RS+1}, 1.0
    v_fma_f32 v{RS+1}, v{RS+2}, v{RS+1}, v{RS+1}
    v_mul_f32 v{RS}, v{RS+1}, v{RS+1}
    """)
    for k in range(4): a(f"v_lshlrev_b32 v{HF+40+2*k}, 16, v{XF+k}\nv_and_b32 v{HF+40+2*k+1}, 0xffff0000, v{XF+k}")
    a("s_waitcnt lgkmcnt(0)\ns_barrier")
    for q in range(4):
        for hf in range(2): a(f"ds_read_b128 {vr(HF+8*q+4*hf)}, v{14+hf} offset:{q*4096}")
    for hf in range(2): a(f"ds_read_b128 {vr(HF+32+4*hf)}, v{VO} offset:{16*hf}")
    for q in range(1, 4):
        a(f"s_waitcnt lgkmcnt({8-2*q})")
        for k in range(4): a(f"v_pk_add_f32 {pr(HF+2*k)}, {pr(HF+2*k)}, {pr(HF+8*q+2*k)}")
    for k in range(4): a(f"v_pk_fma_f32 {pr(HF+2*k)}, {pr(HF+2*k)}, {pr(RS)}, {pr(HF+40+2*k)} op_sel_hi:[1,0,1]")
    a("s_waitcnt lgkmcnt(0)")
    for k in range(4): a(f"v_pk_add_f32 {pr(HF+2*k)}, {pr(HF+2*k)}, {pr(HF+32+2*k)}")
    for k in range(4): a(f"v_cvt_pk_bf16_f32 v{XF+k}, v{HF+2*k}, v{HF+2*k+1}")
    a(f"buffer_store_dwordx4 {vr(XF)}, v{VX}, {sr(S_OUT)}, s55 offen")
    stamp(a, "end")

def treduce16(a, R, T):
    for i in range(8): a(f"v_permlane32_swap_b32 v{R[i]}, v{R[i+8]}")
    for i in range(8): a(f"v_add_f32 v{R[i]}, v{R[i]}, v{R[i+8]}")
    for i in range(4): a(f"v_permlane16_swap_b32 v{R[i]}, v{R[i+4]}")
    for i in range(4): a(f"v_add_f32 v{R[i]}, v{R[i]}, v{R[i+4]}")
    a("s_nop 0")
    for i in range(2): a(f"v_add_f32_dpp v{T+i}, v{R[i]}, v{R[i]} row_ror:8 row_mask:0xf bank_mask:0x3")
    for i in range(2): a(f"v_add_f32_dpp v{T+i}, v{R[i+2]}, v{R[i+2]} row_ror:8 row_mask:0xf bank_mask:0xc")
    a("s_nop 0")
    a(f"v_add_f32_dpp v{R[0]}, v{T}, v{T} row_half_mirror row_mask:0xf bank_mask:0x5")
    a(f"v_add_f32_dpp v{R[0]}, v{T+1}, v{T+1} row_half_mirror row_mask:0xf bank_mask:0xa")
    a("s_nop 1")
    a(f"v_add_f32_dpp v{R[0]}, v{R[0]}, v{R[0]} quad_perm:[1,0,3,2] row_mask:0xf bank_mask:0xf")
    a("s_nop 1")
    a(f"v_add_f32_dpp v{R[0]}, v{R[0]}, v{R[0]} quad_perm:[2,3,0,1] row_mask:0xf bank_mask:0xf")
    return lambda row: 4*row

def treduce8(a, R, T):
    for i in range(4): a(f"v_permlane32_swap_b32 v{R[i]}, v{R[i+4]}")
    for i in range(4): a(f"v_add_f32 v{R[i]}, v{R[i]}, v{R[i+4]}")
    a("s_nop 0")
    for i in range(2): a(f"v_permlane16_swap_b32 v{R[i]}, v{R[i+2]}")
    for i in range(2): a(f"v_add_f32 v{R[i]}, v{R[i]}, v{R[i+2]}")
    a("s_nop 0")
    a(f"v_add_f32_dpp v{T}, v{R[0]}, v{R[0]} row_ror:8 row_mask:0xf bank_mask:0x3")
    a(f"v_add_f32_dpp v{T}, v{R[1]}, v{R[1]} row_ror:8 row_mask:0xf bank_mask:0xc")
    a("s_nop 1")
    a(f"v_add_f32_dpp v{R[0]}, v{T}, v{T} row_half_mirror row_mask:0xf bank_mask:0xf")
    a("s_nop 1")
    a(f"v_add_f32_dpp v{R[0]}, v{R[0]}, v{R[0]} quad_perm:[1,0,3,2] row_mask:0xf bank_mask:0xf")
    a("s_nop 1")
    a(f"v_add_f32_dpp v{R[0]}, v{R[0]}, v{R[0]} quad_perm:[2,3,0,1] row_mask:0xf bank_mask:0xf")
    return lambda row: 8*row

def aux_role(a):
    S_OT = 61; GR = 12
    a(f"""
    s_memrealtime s[40:41]
    v_mov_b32 v{VCN}, {CNT}
    v_mov_b32 v{VONE}, 1
    v_mov_b32 v15, 0
    s_setprio 0
    s_cmp_ge_u32 s{S_WAVE}, 4
    s_cbranch_scc1 F_aux2
    s_setprio 2
    """)
    X = 16; F = 80; SUM = 208; T = 224
    a(f"""
    v_lshlrev_b32 v2, 4, v1
    s_lshl_b32 s44, s2, 6
    s_lshl_b32 s45, s{S_WAVE}, 4
    s_add_u32 s44, s44, s45
    s_lshl_b32 s42, s44, 10
    s_waitcnt lgkmcnt(0)
    """)
    for i in range(16):
        a(f"buffer_load_dwordx4 {vr(X+4*i)}, v2, {sr(S_X)}, s42 offen offset:{(i%4)*1024}")
        if i % 4 == 3 and i < 15: a("s_add_u32 s42, s42, 4096")
    late_loads(a)
    a(f"""
    s_lshl_b32 s46, s{S_WAVE}, 14
    v_add_u32 v9, s46, v2
    s_barrier
    ds_read_b32 v{GR+1}, v{VCN} offset:256
    """)
    for i in range(16):
        a(f"s_waitcnt vmcnt({15-i})")
        if i == 0: stamp(a, "a_x")
        for j in range(4):
            a(f"v_lshlrev_b32 v{F+8*i+2*j}, 16, v{X+4*i+j}\nv_and_b32 v{F+8*i+2*j+1}, 0xffff0000, v{X+4*i+j}")
        a(f"v_pk_add_f32 {pr(T)}, {pr(F+8*i)}, {pr(F+8*i+2)}")
        a(f"v_pk_add_f32 {pr(T+2)}, {pr(F+8*i+4)}, {pr(F+8*i+6)}")
        a(f"v_pk_add_f32 {pr(T)}, {pr(T)}, {pr(T+2)}")
        a(f"v_add_f32 v{SUM+i}, v{T}, v{T+1}")
    R = [SUM+i for i in range(16)]
    ln = treduce16(a, R, T)
    a(f"""
    v_mul_f32 v{T}, 0x3b000000, v{SUM}
    v_cvt_pk_bf16_f32 v{T+4}, v{T}, v{T}
    v_and_b32 v{T+4}, 0xffff0000, v{T+4}
    v_sub_f32 v{T+5}, v{T}, v{T+4}
    """)
    for i in range(16): a(f"v_readlane_b32 s{76+i}, v{T+4}, {ln(i)}")
    def sb(i): return f"s[{76+(i&~1)}:{77+(i&~1)}] op_sel:[0,{i&1}] op_sel_hi:[1,{i&1}]"
    for i in range(16):
        for j in range(0, 8, 2): a(f"v_pk_add_f32 {pr(F+8*i+j)}, {pr(F+8*i+j)}, {sb(i)} neg_lo:[0,1] neg_hi:[0,1]")
        a(f"v_pk_mul_f32 {pr(T)}, {pr(F+8*i)}, {pr(F+8*i)}")
        for j in (2,4,6): a(f"v_pk_fma_f32 {pr(T)}, {pr(F+8*i+j)}, {pr(F+8*i+j)}, {pr(T)}")
        a(f"v_add_f32 v{SUM+i}, v{T}, v{T+1}")
    treduce16(a, R, T)
    a(f"""
    v_mul_f32 v{T+6}, 0x3b000000, v{SUM}
    v_fma_f32 v{T+6}, -v{T+5}, v{T+5}, v{T+6}
    v_max_f32 v{T+6}, 0, v{T+6}
    v_cvt_pk_bf16_f32 v{T+6}, v{T+6}, v{T+6}
    v_and_b32 v{T+6}, 0xffff0000, v{T+6}
    v_add_f32 v{T+6}, 0x3727c5ac, v{T+6}
    v_cvt_pk_bf16_f32 v{T+6}, v{T+6}, v{T+6}
    v_and_b32 v{T+6}, 0xffff0000, v{T+6}
    v_sqrt_f32 v{T+6}, v{T+6}
    v_lshlrev_b32 v5, 1, v1
    v_cvt_pk_bf16_f32 v{GR}, v{T+4}, v{T+6}
    s_lshl_b32 s46, s44, 3
    s_add_u32 s46, s46, {ST_G}
    s_mov_b32 exec_lo, 0x11111111
    s_mov_b32 exec_hi, 0x11111111
    s_waitcnt lgkmcnt(0)
    buffer_store_dwordx2 {pr(GR)}, v5, {sr(S_WS)}, s46 offen sc1
    s_mov_b64 exec, -1
    v_and_b32 v{T+6}, 0xffff0000, v{GR}
    v_rcp_f32 v{T+7}, v{T+6}
    s_nop 0
    v_fma_f32 v{T+5}, -v{T+6}, v{T+7}, 1.0
    v_fma_f32 v{T+7}, v{T+5}, v{T+7}, v{T+7}
    s_nop 0
    """)
    stamp(a, "a_st")
    for i in range(16): a(f"v_readlane_b32 s{76+i}, v{T+7}, {ln(i)}")
    for i in range(16):
        for j in range(0, 8, 2): a(f"v_pk_mul_f32 {pr(F+8*i+j)}, {pr(F+8*i+j)}, {sb(i)}")
        for j in range(4): a(f"v_cvt_pk_bf16_f32 v{X+4*i+j}, v{F+8*i+2*j}, v{F+8*i+2*j+1}")
        a(f"v_xor_b32 v{T+(i&1)}, {((i&3)<<5) | (((i>>3)&1)<<7)}, v9")
        a(f"ds_write_b128 v{T+(i&1)}, {vr(X+4*i)} offset:{i*1024}")
    lds_signal(a, VCN, C_LN, VONE)
    TT = 232; FF = 128
    a(f"""
    s_mov_b64 s[{S_FM}:{S_FM+1}], 0
    v_lshrrev_b32 v3, 4, v1
    v_bfe_u32 v4, v1, 2, 2
    v_and_b32 v5, 3, v1
    v_and_b32 v2, 1, v3
    v_lshl_or_b32 v2, v2, 2, v4
    v_lshlrev_b32 v2, 5, v2
    v_lshl_add_u32 v2, v5, 3, v2
    v_lshl_add_u32 v2, v4, 10, v2
    v_lshl_add_u32 v2, v3, 13, v2
    s_lshl_b32 s46, s{S_WAVE}, 8
    v_add_u32 v2, s46, v2
    v_and_b32 v4, 15, v1
    v_lshlrev_b32 v4, 4, v4
    v_mul_u32_u24 v5, {XP}, v3
    v_add_u32 v4, v4, v5
    s_lshl_b32 s46, s{S_WAVE}, 11
    s_mul_i32 s47, s2, {8*XP}
    s_add_u32 s46, s46, s47
    s_add_u32 s46, s46, {XNT_OFF}
    s_add_u32 s47, s46, {4*XP}
    """)
    for tt in range(8): a(f"v_xor_b32 v{TT+tt}, {tt<<5}, v2")
    lds_wait(a, VCN, C_LN, 4, 3)
    stamp(a, "a_bar")
    for oh in range(2):
        for tt in range(8):
            for rho in range(2):
                d = FF + (oh*8+tt)*4 + rho*2
                a(f"ds_read_b64_tr_b16 v[{d}:{d+1}], v{TT+tt} offset:{oh*32768+rho*4096}")
    a("s_waitcnt lgkmcnt(0)")
    lds_signal(a, VCN, C_A, VONE)
    for oh in range(2):
        for tt in range(8):
            a(f"buffer_store_dwordx4 {vr(FF+(oh*8+tt)*4)}, v4, {sr(S_WS)}, s{46+oh} offen offset:{tt*256} sc1")
    a(f"""
    s_lshl_b32 s46, s{S_WAVE}, 7
    s_lshl_b32 s47, s2, 2
    s_add_u32 s46, s46, s47
    s_add_u32 s46, s46, {XF_OFF}
    s_waitcnt vmcnt(0)
    s_mov_b64 exec, 1
    buffer_store_dword v{GR+1}, v15, {sr(S_WS)}, s46 offen sc1
    s_mov_b64 exec, -1
    """)
    stamp(a, "a_end")
    a("s_branch F_g2")
    WR = list(range(192, 256, 4)); SEL = 8; CS = 188
    lt = a.label("atag")
    a(f"""
    F_aux2:
    s_lshr_b32 s46, s2, 1
    s_cmp_ge_u32 s46, 7
    s_cselect_b32 s47, 7, 0
    s_cselect_b32 s{S_WG}, s{S_WU}, s{S_WG}
    s_cselect_b32 s{S_WG+1}, s{S_WU+1}, s{S_WG+1}
    s_cselect_b32 s6, 1, 0
    s_sub_u32 s46, s46, s47
    s_and_b32 s48, s2, 1
    s_mul_i32 s48, s48, 7
    s_add_u32 s7, s46, s48
    s_lshl_b32 s45, s7, 8
    s_mul_i32 s46, s56, {128*3584}
    s_add_u32 s45, s45, s46
    s_cmp_ge_u32 s2, 28
    s_cselect_b32 s{S_WG+2}, 0, s{S_WG+2}
    v_lshrrev_b32 v3, 4, v1
    v_mul_u32_u24 v3, 3584, v3
    v_and_b32 v4, 15, v1
    v_lshl_add_u32 v8, v4, 4, v3
    s_waitcnt lgkmcnt(0)
    s_or_b32 s{S_OT}, s40, 1
    """)
    late_loads(a)
    a(f"""
    s_cmp_lg_u32 s56, 0
    s_cbranch_scc1 {lt}
    v_mov_b32 v5, s{S_OT}
    ds_write_b32 v{VCN}, v5 offset:256
    s_lshl_b32 s40, s2, 2
    s_mov_b64 exec, 1
    buffer_store_dword v5, v15, {sr(S_DBG)}, s40 offen sc1
    s_mov_b64 exec, -1
    """)
    cnt_init(a)
    a(f"{lt}:\ns_waitcnt lgkmcnt(0)\ns_barrier\nds_read_b32 v{GR+1}, v{VCN} offset:256")
    vm = VM(a); vm.ops = ["par"]*4
    WR = list(range(128, 256, 4)); SEL = KW+64; CS = KW+68
    for i in range(32):
        vm.issue(f"buffer_load_dwordx4 {vr(WR[i])}, v8, {sr(S_WG)}, s45 offen", ("w", i))
        if i < 31: a(f"s_add_u32 s45, s45, {4*3584}")
    a(f"""
    v_and_b32 v3, 1, v1
    v_lshlrev_b32 v3, 4, v3
    v_mov_b32 v4, 0x3f80
    v_lshlrev_b32 v3, v3, v4
    v_bfe_u32 v4, v1, 1, 3
    """)
    for k in range(4): a(f"v_cmp_eq_u32 s[{78+2*k}:{79+2*k}], {k}, v4")
    for k in range(4): a(f"v_cndmask_b32 v{SEL+k}, 0, v3, s[{78+2*k}:{79+2*k}]")
    a(f"""
    v_and_b32 v4, 15, v1
    v_lshlrev_b32 v4, 5, v4
    v_bfe_u32 v5, v1, 4, 1
    v_lshl_add_u32 v4, v5, 4, v4
    s_lshl_b32 s46, s56, 9
    s_add_u32 s46, s46, {LU}
    v_add_u32 v10, s46, v4
    """)
    for i in range(32):
        vm.wait(("w", i))
        a(f"v_mfma_f32_16x16x32_bf16 {vr(CS)}, {vr(SEL)}, {vr(WR[i])}, {vr(CS) if i else 0}")
    a(f"s_mov_b32 exec_hi, 0\ns_nop 6\nds_write_b128 v10, {vr(CS)}\ns_mov_b64 exec, -1")
    lds_signal(a, VCN, C_ST, VONE)
    l4 = a.label("nocs")
    a(f"s_cmp_ge_u32 s2, 28\ns_cbranch_scc1 {l4}\ns_cmp_ge_u32 s56, 2\ns_cbranch_scc1 {l4}")
    lds_wait(a, VCN, C_ST, 4, 2)
    a(f"""
    v_and_b32 v3, 127, v0
    v_lshlrev_b32 v5, 2, v3
    v_add_u32 v5, {LU}, v5
    ds_read2st64_b32 v[192:193], v5 offset0:0 offset1:2
    ds_read2st64_b32 v[194:195], v5 offset0:4 offset1:6
    v_lshlrev_b32 v3, 3, v3
    s_mul_i32 s47, s6, 14
    s_add_u32 s47, s47, s7
    s_lshl_b32 s47, s47, 10
    s_add_u32 s47, s47, {CS_G}
    s_waitcnt lgkmcnt(0)
    v_pk_add_f32 v[192:193], v[192:193], v[194:195]
    v_add_f32 v{GR}, v192, v193
    buffer_store_dwordx2 {pr(GR)}, v3, {sr(S_WS)}, s47 offen sc1
    {l4}:
    """)
    stamp(a, "a_cs")
    kaddr_setup(a)
    prod_setup(a)
    a(f"buffer_load_dword v{VT}, v14, {sr(S_DBG)}, 0 offen sc1\ns_waitcnt lgkmcnt(0)")
    kgen_valu(a, scalar=False, stream=True)
    stamp(a, "a_kg")
    kgen_exchange(a, kacc=AKACC, ef=AEF)
    lds_signal(a, VCN, C_KX, VONE)
    lds_wait(a, VCN, C_KX, 4, 2)
    expand_gather(a)
    tails_prep(a)
    a.lines += expand_writes()
    lds_signal(a, VCN, C_A, VONE)
    a("s_waitcnt vmcnt(0)")
    tags_check(a)
    stamp(a, "a_ex")
    lds_wait(a, VCN, C_A, 8, 2)
    for k in range(NRG):
        for u in wdA_units(k): a(u[0]); a(u[1])
    xf_addr(a, 41)
    poll(a, XFL, 14, S_WS, "s41", -1, f"v{VT}")
    u_loads(a, None)
    conv_setup(a)
    a(f"s_lshl_b32 s41, s56, 2\nv_add_u32 v3, s41, v{VCN}\ns_waitcnt vmcnt(0)\nds_write_b32 v3, v{VONE} offset:{C_PAIR}")
    a("s_mov_b32 s55, 2\ns_branch F_pp")

def k_fused():
    a = Asm("F")
    a(f"""
    s_cmp_ge_u32 s2, 256
    s_cbranch_scc1 F_end
    s_load_dwordx2 s[{S_X}:{S_X+1}], s[0:1], 0
    s_load_dwordx2 s[{S_WG}:{S_WG+1}], s[0:1], 64
    s_load_dwordx2 s[{S_WU}:{S_WU+1}], s[0:1], 72
    s_load_dwordx8 s[64:71], s[0:1], 8
    s_load_dwordx4 s[72:75], s[0:1], 40
    """)
    if O.stamps: a(f"{O.stamps} s[92:93]")
    a(f"v_lshrrev_b32 v2, 6, v0\nv_and_b32 v1, 63, v0\nv_readfirstlane_b32 s{S_WAVE}, v2")
    srd_tail(a, S_X, 2048*512*2); srd_tail(a, S_WG, 512*1792*2); srd_tail(a, S_WU, 512*1792*2+1024)
    a(f"s_and_b32 s56, s{S_WAVE}, 3\ns_lshr_b32 s40, s{S_WAVE}, 2\ns_cmp_lt_u32 s2, 32\ns_cselect_b32 s41, 1, 0\ns_cmp_lg_u32 s40, s41\ns_cbranch_scc1 F_nopar\ns_waitcnt lgkmcnt(0)")
    a(f"s_lshl_b32 s40, s2, 2\ns_load_dword s{S_LDT}, s[72:73], s40")
    kgen_param_loads(a, VM(a))
    a(f"""
    F_nopar:
    s_cmp_lt_u32 s2, 32
    s_cbranch_scc1 F_aux
    s_and_b32 s60, s2, 7
    s_bfe_u32 s6, s2, 0x20001
    s_lshl_b32 s6, s6, 2
    s_bfe_u32 s40, s2, 0x20003
    s_add_u32 s6, s6, s40
    s_and_b32 s7, s2, 1
    s_mul_i32 s7, s7, 7
    s_lshr_b32 s40, s2, 5
    s_add_u32 s7, s7, s40
    s_sub_u32 s7, s7, 1
    s_cmp_lt_u32 s{S_WAVE}, 4
    s_cbranch_scc1 F_cons
    """)
    g1_producer(a)
    a("F_cons:")
    g1_consumer(a)
    gemm2(a)
    stamp_flush(a)
    a("F_end:\ns_endpgm\nF_aux:")
    aux_role(a)
    a("F_last:\ns_endpgm")
    return dict(name=NAME, body=a.text(), grid=256, block=512, lds=163840, vgpr=256, sgpr=102)

def single_file(k):
    return make_file([k]).replace("; @launch kernel=%s " % k["name"], "; @launch ")
SETS = {"G": dict(c_par=1, c_k1=2, c_kv=3, c_kg=4, c_b0=5, pb1=1, pb7=2, pb10=3, pb12=4, pb14=5, pb15=6, pb16=7),
        "E": dict(pb16=1, ps2=2, cv_m=3, cv_x=4, conv_end=5, a_st0=6, hflag=7, c_end=1, g2a=2, g2r=3, g2d=4, flag=5, g2e=6),
        "Z": dict(c_s15=1, c_end=2, end=7),
        "A": dict(c_b0=1, c_s15=2, c_end=3, flag=4, g2a=5, hflag=6, end=7,   p_par=1, p_kg=2, p_b16=3, ps2=5,  a_x=1, a_bar=2, a_end=3, a_cs=1, a_kg=2, a_ex=3),
        "B": dict(c_par=3, c_kg=4, p_start=1, h0=2, g2_end=6, end=7, pb3=2, pb10=3, ps1=4, conv_end=5, a_st=3),
        "D": dict(hflag=1, hs0=2, hs3=3, hs4=4, hs7=5, hs10=6, hs13=7),
        "C": dict(pb10=1, pb12=2, pb13=3, pb14=4, pb15=5, pb16=6, p_b16=7)}
if __name__ == "__main__":
    sfx = ""
    for kv in sys.argv[1:]:
        k, v = kv.split("=")
        if k == "sfx": sfx = v
        else: setattr(O, k, eval(v))
    open(f"../f3{sfx}.s","w").write(single_file(k_fused()))
    O.stamps = "s_memrealtime"
    for k, v in SETS.items():
        O.stamp_sel = v
        open(f"../f3{sfx}_{k}.s","w").write(single_file(k_fused()))
```

```python
from common import Asm, vr, sr, make_file
from util import *
import struct, sys
def f2u(x): return struct.unpack("<I", struct.pack("<f", x))[0]
LOG2E = f2u(1.4426950408889634); INV2PI = f2u(0.15915494309189535)
pr = lambda r: f"v[{r}:{r+1}]"
NAME = "parallel_sum__ssm_conv_s4d__glu_gated_bilinear__prompt_kernel"

WS_SIZE = 0x10000000
ST_G = 0x700000; CS_G = 0x704000; HF_OFF = 0x990000; HFS = 3328; XF_OFF = 0x70D000; AF_OFF = 0x720000
XNT_OFF = 0x780000; XP = 8448; AT_OFF = 0xA00000; ATP = 8192+256; AFS = 1280; TS_OFF = 0xE00000
S_WAVE = 4
S_WS, S_X, S_WG, S_WU, S_WD, S_OUT, S_DBG = 8, 12, 16, 20, 24, 28, 32
S_TAG = 62; S_DD = 63; S_LDT = 59; S_FM = 76; S_FO = 57
VFL = 15
SLOT = 16384; NW = 6
XR = 6*SLOT; HS = 8192
LC = XR + 2*HS; LU = LC + 8*4160; PXB = XR + 7*HS; KT = PXB; KTP = 3072; AUXL = PXB + 6144; CNT = AUXL + 1536
SCR = 5*SLOT
UP = 4608; PC = 4160; PP = 272
assert LU + 2*UP <= AUXL and CNT + 512 == 163840
C_PS, C_A, C_TAG, C_ST, C_KF, C_LN, C_KX, C_PAIR = 0, 4, 8, 12, 16, 24, 28, 32
WSLOT = [4*SLOT, 5*SLOT, 0, SLOT, 2*SLOT, 3*SLOT, XR]
WAVAIL = [11, 12, 13, 14, 15, 16, 16]
NRG = 4
POLL_MAX = 1 << 16

class Opt: pass
O = Opt()
O.stamps = None; O.stamp_sel = {}
O.upfront = 20; O.quota = [8,8,8,8,8,8,8,8,8,8,8,8,8,8,8,8]
O.rate = [0,16,28,28,28,28,28,28,28,28,28,28,28,28,10,0]
O.psleep = 3; O.up2 = 6; O.kpre = 40; O.xfc = 15; O.asleep = 8; O.a0sleep = 16; O.wreg = 6; O.g2prio = 0; O.auxw0 = 2; O.pre0 = 85; O.hlead = 5; O.cprio = 3; O.shadow = 4

def stamp(a, name):
    if O.stamps and name in O.stamp_sel:
        i = O.stamp_sel[name]; a(f"{O.stamps} s[100:101]\ns_waitcnt lgkmcnt(0)\ns_mov_b32 s{92+i}, s100")
def stamp_flush(a):
    if not O.stamps: return
    for i in range(8): a(f"v_mov_b32 v{2+i}, s{92+i}")
    a(f"""
    v_mov_b32 v10, 0
    s_lshl_b32 s92, s2, 3
    s_add_u32 s92, s92, s{S_WAVE}
    s_lshl_b32 s92, s92, 5
    s_add_u32 s92, s92, {TS_OFF}
    s_mov_b64 exec, 1
    buffer_store_dwordx4 v[2:5], v10, {sr(S_WS)}, s92 offen
    buffer_store_dwordx4 v[6:9], v10, {sr(S_WS)}, s92 offen offset:16
    s_mov_b64 exec, -1
    """)
def srd_tail(a, s, size): a(f"s_mov_b32 s{s+2}, {hex(size)}\ns_mov_b32 s{s+3}, 0x20000")
MAPA = """    s_bfe_u32 s53, s2, 0x20001
    s_lshl_b32 s53, s53, 3
    s_lshr_b32 s40, s2, 5
    s_add_u32 s53, s53, s40                 ; R64
    s_and_b32 s54, s2, 1
    s_lshl_b32 s54, s54, 2
    s_bfe_u32 s40, s2, 0x20003
    s_add_u32 s54, s54, s40                 ; C64"""
MAPB = """    s_and_b32 s53, s2, 7
    s_lshl_b32 s53, s53, 2
    s_lshr_b32 s40, s2, 6
    s_add_u32 s53, s53, s40
    s_bfe_u32 s54, s2, 0x30003"""
def rotc(r):
    if O.map2: return f"s_mul_i32 s{r}, s54, {O.rotm}\ns_lshr_b32 s{r}, s{r}, 2"
    return f"s_and_b32 s{r}, s54, 3\ns_mul_i32 s{r}, s{r}, {O.rotm}\ns_add_u32 s{r}, s{r}, 1\ns_lshr_b32 s{r}, s{r}, 1"
def late_loads(a):
    a(f"""
    s_load_dwordx2 s[{S_WS}:{S_WS+1}], s[0:1], 104
    s_load_dwordx2 s[{S_DBG}:{S_DBG+1}], s[0:1], 96
    s_load_dwordx2 s[{S_WD}:{S_WD+1}], s[0:1], 80
    s_load_dwordx2 s[{S_OUT}:{S_OUT+1}], s[0:1], 88
    """)
    srd_tail(a, S_WS, WS_SIZE); srd_tail(a, S_DBG, 256); srd_tail(a, S_WD, 512*1792*2); srd_tail(a, S_OUT, 2048*512*2)
    a(f"""
    {MAPB if O.map2 else MAPA}
    s_lshl_b32 s40, s2, 2
    s_waitcnt lgkmcnt(0)
    s_load_dword s{S_DD}, s[74:75], s40
    """)
def poll(a, vdst, vaddr, srdreg, soff, mask, cmp_src, op="ne", sleep=None):
    l = a.label("poll"); d = a.label("polld")
    a(f"s_mov_b64 exec, {mask}\ns_mov_b32 s58, {POLL_MAX}\n{l}:")
    a(f"""
    buffer_load_dword v{vdst}, v{vaddr}, {sr(srdreg)}, {soff} offen sc1
    s_waitcnt vmcnt(0)
    v_cmp_{op}_u32 vcc, {cmp_src}, v{vdst}
    s_cbranch_vccz {d}
    s_sleep {sleep or O.psleep}
    s_sub_u32 s58, s58, 1
    s_cmp_lg_u32 s58, 0
    s_cbranch_scc1 {l}
    {d}:
    s_mov_b64 exec, -1
    """)
def lds_signal(a, vaddr, off, vone):
    a(f"s_mov_b64 exec, 1\nds_add_u32 v{vaddr}, v{vone} offset:{off}\ns_mov_b64 exec, -1")
def lds_wait(a, vaddr, off, target, vt, sleep=1):
    l = a.label("lw"); d = a.label("lwd")
    a(f"""
    s_mov_b32 s58, {POLL_MAX}
    {l}:
    ds_read_b32 v{vt}, v{vaddr} offset:{off}
    s_waitcnt lgkmcnt(0)
    v_readfirstlane_b32 s40, v{vt}
    s_cmp_ge_u32 s40, {target}
    s_cbranch_scc1 {d}
    s_sleep {sleep}
    s_sub_u32 s58, s58, 1
    s_cmp_lg_u32 s58, 0
    s_cbranch_scc1 {l}
    {d}:
    """)

VWD = 11; VCN = 6; VONE = 7
PV = 16; AD = 20; RA = 28; KA0, KA1a, KA1b, KA2 = 32, 33, 34, 35
VT = 36; XFL = 37; GA = 38; CA, CB, CU, CS_ = 49, 50, 51, 52; UA = 53; UV = 54; UG = 55
KW = 56; PKR = 128; UF = 188; GF = 196; EF = 200; KACC = 212

def kgen_param_loads(a, vm):
    a(f"v_lshlrev_b32 v{KW}, 1, v1\ns_lshl_b32 s40, s2, 9\ns_lshl_b32 s41, s56, 7\ns_add_u32 s40, s40, s41")
    a(f"s_mov_b32 s38, {512*128*2}\ns_mov_b32 s39, 0x20000")
    for i in range(4):
        a(f"s_mov_b32 s36, s{64+2*i}\ns_mov_b32 s37, s{65+2*i}")
        vm.issue(f"buffer_load_ushort v{PV+i}, v{KW}, s[36:39], s40 offen", "par")

def rot_calc(a, sd):
    a(f"s_and_b32 s{sd}, s54, 3\ns_mul_i32 s{sd}, s{sd}, 7\ns_add_u32 s{sd}, s{sd}, 1\ns_lshr_b32 s{sd}, s{sd}, 1")
def wd_voff(a):
    a(f"""
    v_lshrrev_b32 v2, 4, v1
    v_bfe_u32 v3, v1, 1, 2
    v_xor_b32 v3, v3, v2
    v_and_b32 v4, 1, v1
    v_lshl_or_b32 v3, v3, 1, v4
    v_lshrrev_b32 v4, 3, v1
    v_lshlrev_b32 v4, 10, v4
    v_lshl_add_u32 v{VWD}, v3, 4, v4
    """)
def kaddr_setup(a):
    T = KW+2
    a(f"""
    v_mov_b32 v{VCN}, {CNT}
    v_mov_b32 v{VONE}, 1
    s_lshl_b32 s40, s56, 12
    s_add_u32 s40, s40, {SCR}
    v_lshl_add_u32 v{AD}, v1, 2, s40
    """)
    for r in range(1, 8): a(f"v_xor_b32 v{AD+r}, {r<<4}, v{AD}")
    a(f"""
    v_and_b32 v{T}, 15, v1                  ; m / b / n
    v_lshrrev_b32 v{T+1}, 4, v1             ; g
    v_lshrrev_b32 v{T+2}, 1, v{T}
    v_xor_b32 v{T+2}, v{T+2}, v{T+1}
    v_lshlrev_b32 v{T+2}, 4, v{T+2}
    v_lshl_add_u32 v{T+2}, v{T}, 8, v{T+2}
    v_add_u32 v{RA}, s40, v{T+2}
    v_xor_b32 v{RA+1}, 64, v{RA}
    v_xor_b32 v{RA+2}, 128, v{RA}
    v_xor_b32 v{RA+3}, 192, v{RA}
    s_lshr_b32 s5, s56, 1                   ; ch
    s_mul_i32 s41, s5, {KTP}
    s_add_u32 s41, s41, {KT}
    v_lshrrev_b32 v{T+2}, 1, v{T+1}
    v_lshlrev_b32 v{T+2}, 8, v{T+2}
    v_and_b32 v{T+3}, 1, v{T+1}
    v_lshl_add_u32 v{T+2}, v{T+3}, 3, v{T+2}
    v_lshl_add_u32 v{T+2}, v{T}, 4, v{T+2}
    v_add_u32 v{KA0}, s41, v{T+2}
    v_cmp_gt_u32 vcc, 2, v{T+1}
    v_lshlrev_b32 v{T+2}, 7, v{T+1}
    v_lshlrev_b32 v{T+3}, 2, v{T}
    v_lshlrev_b32 v{T+4}, 3, v{T}
    v_cndmask_b32 v{T+3}, v{T+3}, v{T+4}, vcc
    v_add3_u32 v{KA1a}, v{T+2}, v{T+3}, s41
    v_mov_b32 v{T+3}, 64
    v_cndmask_b32 v{T+3}, v{T+3}, 4, vcc
    v_add_u32 v{KA1b}, v{KA1a}, v{T+3}
    v_lshl_add_u32 v{T+2}, v{T}, 1, v{T+2}
    v_add_u32 v{KA2}, s41, v{T+2}
    """)

def prod_setup(a):
    T = KW+2
    wd_voff(a)
    a(f"""
    s_mul_i32 s86, s56, {14*32*1024}
    s_lshl_b32 s40, s54, 7
    s_add_u32 s86, s86, s40
    s_add_u32 s87, s86, {14*32768}
    {rotc(51)}
    s_lshl_b32 s51, s51, 15
    s_add_u32 s51, s51, s86
    s_lshl_b32 s52, s56, 12
    v_mov_b32 v{VCN}, {CNT}
    v_mov_b32 v{VONE}, 1
    v_and_b32 v14, 31, v1
    v_lshlrev_b32 v14, 2, v14
    s_lshr_b32 s5, s56, 1                   ; ch
    v_and_b32 v{T}, 15, v1
    v_lshrrev_b32 v{T+1}, 4, v1
    v_and_b32 v{T+2}, 3, v1
    v_mul_u32_u24 v{CA}, {PC}, v{T+2}
    v_lshl_add_u32 v{CA}, v{T+1}, 4, v{CA}
    v_and_b32 v{T+2}, 12, v1
    v_lshlrev_b32 v{T+2}, 1, v{T+2}
    v_sub_u32 v{CA}, v{CA}, v{T+2}
    s_mul_i32 s40, s5, {4*PC}
    s_and_b32 s39, s56, 1
    s_lshl_b32 s39, s39, 8
    s_sub_u32 s40, s40, s39
    s_add_u32 s40, s40, {LC + 2*(2048-16-1792) - 192}
    v_add_u32 v{CA}, s40, v{CA}
    v_lshlrev_b32 v{CU}, 5, v{T}
    v_lshl_add_u32 v{CB}, v{T+1}, 4, v{CU}
    v_lshl_add_u32 v{CS_}, v{T+1}, 3, v{CU}
    s_mul_i32 s40, s5, {UP}
    s_add_u32 s41, s40, {LU + 480}
    v_add_u32 v{CU}, s41, v{CS_}
    v_mul_u32_u24 v{CS_}, {8*ATP}, v{T+1}
    v_lshl_add_u32 v{CS_}, v{T}, 3, v{CS_}
    s_sub_u32 s40, s40, s39
    s_add_u32 s40, s40, {LU + 480 - 32 - 192}
    v_add_u32 v{CB}, s40, v{CB}
    v_and_b32 v{UV}, 255, v0
    v_lshlrev_b32 v{T}, 3, v{UV}
    v_lshlrev_b32 v{UV}, 4, v{UV}
    v_bfe_u32 v{T+1}, v0, 1, 7
    v_and_b32 v{UG}, 16, v{UV}
    v_mul_u32_u24 v{UA}, {XP}, v{T+1}
    v_add_u32 v{UG}, v{UG}, v{UA}
    v_and_b32 v{UA}, 1, v0
    v_mul_u32_u24 v{UA}, {UP}, v{UA}
    v_lshl_add_u32 v{UA}, v{T+1}, 4, v{UA}
    v_add_u32 v{UA}, {LU+480}, v{UA}
    v_sub_u32 v{T}, 2051, v{T}
    s_movk_i32 s41, 128
    s_mov_b32 s40, {KT}
    """)
    for e in range(11):
        a(f"""
        v_subrev_u32 v{T+1}, {e}, v{T}
        v_cvt_f32_u32 v{T+2}, v{T+1}
        v_cvt_pk_bf16_f32 v{T+2}, v{T+2}, v{T+2}
        v_lshrrev_b32 v{T+2}, 16, v{T+2}
        v_subrev_u32 v{T+2}, 0x4280, v{T+2}
        v_med3_i32 v{T+2}, v{T+2}, v{T+1}, s41
        v_lshl_add_u32 v{GA+e}, v{T+2}, 1, s40
        """)

SFR = 192
def kgen_valu(a, scalar=True, stream=False):
    W = KW
    AR, PH, T, DT = W, W+1, W+2, W+5
    C2, W8, Y = W+6, W+8, W+10
    Fk = lambda k: W+20+2*k
    Ca = lambda k: W+34+2*k
    V = PV
    a(f"""
    s_lshl_b32 s3, s5, 4
    s_lshr_b32 s3, s{S_LDT}, s3
    s_lshl_b32 s3, s3, 16
    v_mov_b32 v{DT}, {hex(LOG2E)}
    v_mul_f32 v{DT}, s3, v{DT}
    v_lshlrev_b32 v{V}, 16, v{V}
    v_lshlrev_b32 v{V+1}, 16, v{V+1}
    v_lshlrev_b32 v{V+2}, 16, v{V+2}
    v_lshlrev_b32 v{V+3}, 16, v{V+3}
    v_mul_f32 v{V}, {hex(LOG2E)}, v{V}
    v_exp_f32 v{V}, v{V}
    v_exp_f32 v{DT}, v{DT}
    s_nop 0
    v_cvt_pk_bf16_f32 v{T}, v{DT}, v{V}
    v_lshlrev_b32 v{DT}, 16, v{T}
    v_and_b32 v{V}, 0xffff0000, v{T}
    v_mul_f32 v{AR}, v{V}, v{DT}
    v_mul_f32 v{PH}, v{V+1}, v{DT}
    v_mul_f32 v{AR}, {hex(LOG2E ^ 0x80000000)}, v{AR}
    v_mul_f32 v{PH}, {hex(INV2PI)}, v{PH}
    v_mul_f32 v{C2}, v{V+2}, v{DT}
    v_mul_f32 v{C2+1}, v{V+3}, v{DT}
    v_add_f32 v{C2}, v{C2}, v{C2}
    v_add_f32 v{C2+1}, v{C2+1}, v{C2+1}
    """)
    have = set(); wr = [0, 0]
    NR = (16, 16, 16, 9)
    def drain():
        while wr[0] < 4:
            t, r = wr
            if r >= NR[t]:
                for ks in range(4): a(f"ds_read_b128 {vr(SFR+16*t+4*ks)}, v{RA+ks}")
                wr[0] += 1; wr[1] = 0; continue
            if (t, r) in have and (r+1 >= NR[t] or (t, r+1) in have):
                if r+1 < NR[t]: a(f"ds_write2st64_b32 v{AD+r//2}, v{PKR+16*t+r}, v{PKR+16*t+r+1} offset0:{r} offset1:{r+1}")
                else: a(f"ds_write_b32 v{AD+r//2}, v{PKR+16*t+r} offset:{r*256}")
                wr[1] += 2
            return
    def put(tile, row, x, neg=False):
        r = PKR + 16*tile + row
        if stream: drain()
        if x is None: a(f"v_mov_b32 v{r}, 0x3f80")
        else: a(f"v_cvt_pk_bf16_f32 v{r}, v{x}, {'-' if neg else ''}v{x+1}")
        have.add((tile, row))
    def cm_multi(ops):
        if scalar:
            for (o,x,w,t) in ops: a(f"v_mul_f32 v{t}, v{x}, v{w}\nv_mul_f32 v{t+1}, v{x}, v{w+1}")
            for (o,x,w,t) in ops: a(f"v_fma_f32 v{o}, -v{x+1}, v{w+1}, v{t}\nv_fma_f32 v{o+1}, v{x+1}, v{w}, v{t+1}")
        else:
            for (o,x,w,t) in ops: a(f"v_pk_mul_f32 {pr(t)}, {pr(x)}, {pr(w)} op_sel_hi:[1,0]")
            for (o,x,w,t) in ops: a(f"v_pk_fma_f32 {pr(o)}, {pr(x)}, {pr(w)}, {pr(t)} op_sel:[1,1,0] op_sel_hi:[0,1,1] neg_lo:[1,0,0]")
    W16 = W+50; C3 = W+52; TT = W+54
    anc = [(W8, 8), (W16, 16), (Fk(1), 1), (Ca(1), 128), (Y, 1024)]
    for i, (o, p) in enumerate(anc): a(f"v_mul_f32 v{TT+2*i}, {hex(f2u(float(p)))}, v{AR}\nv_mul_f32 v{TT+2*i+1}, {hex(f2u(float(p)))}, v{PH}")
    for i, (o, p) in enumerate(anc): a(f"v_fract_f32 v{TT+2*i+1}, v{TT+2*i+1}\nv_exp_f32 v{TT+2*i}, v{TT+2*i}")
    for i, (o, p) in enumerate(anc): a(f"v_cos_f32 v{o}, v{TT+2*i+1}\nv_sin_f32 v{o+1}, v{TT+2*i+1}")
    for i, (o, p) in enumerate(anc): a(f"v_mul_f32 v{o}, v{o}, v{TT+2*i}\nv_mul_f32 v{o+1}, v{o+1}, v{TT+2*i}")
    cm_multi([(C3, C2, W8, TT)])
    for b in range(0, 16, 2):
        put(0, b, C2, True); put(0, b+1, C3, True)
        k = b//2 + 2
        ops = []
        if b < 14: ops += [(C2, C2, W16, TT), (C3, C3, W16, TT+2)]
        if k <= 7: ops += [(Fk(k), Fk(k-1), Fk(1), TT+4), (Ca(k), Ca(k-1), Ca(1), TT+6)]
        cm_multi(ops)
    O4 = [W+64+2*i for i in range(4)]
    put(1, 0, None)
    for k in range(1, 8): put(1, k, Fk(k))
    put(1, 8, Ca(1)); put(2, 0, Ca(2)); put(2, 4, Ca(3)); put(3, 0, Y)
    for c in (4,5,6,7): put(2, 8+2*(c-4), Ca(c))
    prods = [(1, 8+k, Ca(1), Fk(k)) for k in range(1,8)] + [(2, i, Ca(2), Fk(2*i)) for i in (1,2,3)] + [(2, 4+i, Ca(3), Fk(2*i)) for i in (1,2,3)] \
          + [(2, 9+2*(c-4), Ca(c), Fk(4)) for c in (4,5,6,7)] + [(3, c, Y, Ca(c)) for c in range(1,8)] + [(3, 8, Y, Y)]
    for i in range(0, len(prods), 4):
        grp = prods[i:i+4]
        cm_multi([(O4[k], x, w, TT+2*k) for k, (t, r, x, w) in enumerate(grp)])
        for k, (t, r, x, w) in enumerate(grp): put(t, r, O4[k])
    if stream:
        stamp(a, "c_k1")
        while wr[0] < 4: drain()
        a("s_waitcnt lgkmcnt(0)")
        for ks in range(4):
            for t in range(3):
                a(f"v_mfma_f32_16x16x32_bf16 {vr(AKACC+4*t)}, {vr(SFR+16*(t+1)+4*ks)}, {vr(SFR+4*ks)}, {vr(AKACC+4*t) if ks else 0}")

AKACC = 128; AEF = 140
def kgen_ds(a, kacc=None):
    KACC = kacc or globals()['KACC']
    FRG = KW
    for t in range(4):
        n = 16 if t < 3 else 9
        for r in range(0, n, 2):
            if r+1 < n: a(f"ds_write2st64_b32 v{AD+r//2}, v{PKR+16*t+r}, v{PKR+16*t+r+1} offset0:{r} offset1:{r+1}")
            else: a(f"ds_write_b32 v{AD+r//2}, v{PKR+16*t+r} offset:{r*256}")
        for ks in range(4): a(f"ds_read_b128 {vr(FRG+16*t+4*ks)}, v{RA+ks}")
    a("s_waitcnt lgkmcnt(0)")
    for ks in range(4):
        for t in range(3):
            a(f"v_mfma_f32_16x16x32_bf16 {vr(KACC+4*t)}, {vr(FRG+16*(t+1)+4*ks)}, {vr(FRG+4*ks)}, {vr(KACC+4*t) if ks else 0}")

def cnt_init(a):
    a(f"v_lshl_add_u32 v2, v1, 2, v{VCN}\nv_mov_b32 v3, 0\nds_write_b32 v2, v3")

def kgen_exchange(a, kacc=None, ef=None, bar=False):
    KACC = kacc or globals()['KACC']; EF = ef or globals()['EF']
    l = a.label("kr"); d = a.label("kd")
    a(f"""
    s_mul_i32 s40, s5, {KTP}
    s_add_u32 s40, s40, {PXB}
    v_lshl_add_u32 v2, v1, 4, s40
    s_lshl_b32 s41, s5, 2
    v_add_u32 v3, s41, v{VCN}
    s_bitcmp1_b32 s56, 0
    s_cbranch_scc0 {l}
    s_nop 1
    """)
    for t in range(3): a(f"ds_write_b128 v2, {vr(KACC+4*t)} offset:{1024*t}")
    if bar: a("s_waitcnt lgkmcnt(0)\ns_barrier")
    a(f"ds_write_b32 v3, v{VONE} offset:{C_KF}\ns_branch {d}\n{l}:")
    if bar: a("s_barrier")
    else: lds_wait(a, 3, C_KF, 1, 4)
    for t in range(3): a(f"ds_read_b128 {vr(EF+4*t)}, v2 offset:{1024*t}")
    a("s_waitcnt lgkmcnt(0)")
    for k in range(12): a(f"v_add_f32 v{KACC+k}, v{KACC+k}, v{EF+k}")
    for k in range(6): a(f"v_cvt_pk_bf16_f32 v{EF+k}, v{KACC+2*k}, v{KACC+2*k+1}")
    a(f"""
    ds_write_b64 v{KA0}, v[{EF}:{EF+1}]
    ds_write_b32 v{KA1a}, v{EF+2} offset:512
    ds_write_b32 v{KA1b}, v{EF+3} offset:512
    ds_write_b16 v{KA2}, v{EF+4} offset:1024
    ds_write_b16_d16_hi v{KA2}, v{EF+4} offset:1056
    ds_write_b16 v{KA2}, v{EF+5} offset:1088
    ds_write_b16_d16_hi v{KA2}, v{EF+5} offset:1120
    {d}:
    """)

EXO = 128
TLV, TLA = 160, 161
def expand_gather(a, step=None):
    P = KW
    for ch in range(2):
        for e in range(11): a(f"ds_read_u16 v{P+11*ch+e}, v{GA+e} offset:{KTP*ch}")
    a("s_waitcnt lgkmcnt(0)")
    for ch in range(2):
        for s_ in range(4):
            for k in range(4):
                e = 11*ch + 3 - s_ + 2*k
                a(f"v_lshl_or_b32 v{EXO+16*ch+4*s_+k}, v{P+e+1}, 16, v{P+e}")
    a(f"v_add_u32 v{KW+22}, {LC}, v{UV}")
def expand_writes():
    return [f"    ds_write_b128 v{KW+22}, {vr(EXO+16*ch+4*s_)} offset:{4*PC*ch + s_*PC}" for ch in range(2) for s_ in range(4)]

def tails_prep(a):
    T = KW+24
    a(f"""
    v_lshrrev_b32 v{T}, 3, v1
    v_and_b32 v{T+1}, 3, v{T}
    v_and_b32 v{T+2}, 7, v1
    v_lshlrev_b32 v{T+2}, 1, v{T+2}
    v_sub_u32 v{T+3}, v{T+1}, v{T+2}
    v_lshrrev_b32 v{T+4}, 5, v1
    v_mul_u32_u24 v{T+4}, {KTP}, v{T+4}
    v_max_i32 v{T+5}, 1, v{T+3}
    v_lshl_add_u32 v{T+4}, v{T+5}, 1, v{T+4}
    v_add_u32 v{T+4}, {KT-2}, v{T+4}
    ds_read_u16 v{T+6}, v{T+4} offset:2
    ds_read_u16 v{T+7}, v{T+4}
    v_mul_u32_u24 v{T}, {PC}, v{T}
    v_lshl_add_u32 v{T}, v{T+2}, 1, v{T}
    v_add_u32 v{TLA}, {LC+4096}, v{T}
    v_cmp_eq_u32 vcc, 0, v{T+3}
    v_cmp_lt_i32 s[40:41], 0, v{T+3}
    s_waitcnt lgkmcnt(0)
    v_lshl_or_b32 v{T+6}, v{T+7}, 16, v{T+6}
    v_cndmask_b32 v{T+7}, 0, v{T+7}, vcc
    v_cndmask_b32 v{TLV}, v{T+7}, v{T+6}, s[40:41]
    v_mov_b64 v[164:165], 0
    v_mov_b64 v[166:167], 0
    v_lshrrev_b32 v{T+4}, 5, v1
    v_mul_u32_u24 v{T+4}, {UP}, v{T+4}
    v_and_b32 v{T+5}, 31, v1
    v_min_u32 v{T+5}, 29, v{T+5}
    v_lshl_add_u32 v{T+4}, v{T+5}, 4, v{T+4}
    v_add_u32 v162, {LU}, v{T+4}
    """)
def tails(a):
    l = a.label("t1")
    a(f"s_cmp_lg_u32 s56, 0\ns_cbranch_scc1 {l}\nds_write_b32 v{TLA}, v{TLV}\nds_write_b128 v162, v[164:167]\n{l}:")

def xf_addr(a, s):
    a(f"s_lshr_b32 s{s}, s2, 6\ns_lshl_b32 s{s}, s{s}, 7\ns_add_u32 s{s}, s{s}, {XF_OFF}")
def u_loads(a, vm):
    a(f"s_lshl_b32 s36, s2, 5\ns_add_u32 s36, s36, {XNT_OFF}\ns_add_u32 s37, s36, {128*XP}")
    for k in range(2):
        t = f"buffer_load_dwordx4 {vr(UF+4*k)}, v{UG}, {sr(S_WS)}, s{36+k} offen sc1"
        if vm: vm.issue(t, "u")
        else: a(t)

def tags_check(a):
    lt = a.label("tagok")
    a(f"v_cmp_eq_u32 vcc, 0, v{VT}\ns_cbranch_vccz {lt}")
    poll(a, VT, 14, S_DBG, "0", -1, "0", "eq")
    a(f"{lt}:\nv_readfirstlane_b32 s{S_TAG}, v{VT}\ns_nop 1\nv_mov_b32 v2, s{S_TAG}\nds_write_b32 v{VCN}, v2 offset:{C_TAG}")

def granule_issue(a, vm):
    a(f"""
    v_lshlrev_b32 v13, 4, v1
    s_lshl_b32 s36, s7, 10
    s_mul_i32 s37, s56, {1792*8}
    s_add_u32 s36, s36, s37
    s_add_u32 s36, s36, {CS_G}
    s_lshl_b32 s37, s6, 10
    s_add_u32 s37, s37, {ST_G}
    s_cmp_lt_u32 s56, 2
    s_cselect_b32 s61, s36, s37
    """)
    vm.issue(f"buffer_load_dwordx4 {vr(GF)}, v13, {sr(S_WS)}, s61 offen sc1", "gr")
def csq(a, sd, smat, sj):
    a(f"""
    s_cmp_ge_u32 s{sj}, 7
    s_cselect_b32 s37, 13, 0
    s_mul_i32 s{sd}, s{smat}, 7
    s_add_u32 s{sd}, s{sd}, s{sj}
    s_lshl_b32 s{sd}, s{sd}, 1
    s_sub_u32 s{sd}, s{sd}, s37
    """)
def granule_check(a, vm):
    lr = a.label("grre"); lo = a.label("grok"); l2 = a.label("gst"); l3 = a.label("gdn")
    csq(a, 36, 56, 7)
    a(f"""
    s_lshl_b32 s37, s6, 1
    s_cmp_lt_u32 s56, 2
    s_cselect_b32 s36, s36, s37
    s_cselect_b32 s37, 0, 1
    s_add_u32 s37, s37, s36
    v_readlane_b32 s36, v{VT}, s36
    v_readlane_b32 s37, v{VT}, s37
    v_cmp_gt_u32 vcc, 32, v1
    v_mov_b32 v5, s36
    v_mov_b32 v4, s37
    v_cndmask_b32 v4, v4, v5, vcc
    s_mov_b32 s58, {POLL_MAX}
    """)
    vm.wait("gr")
    a(f"""
    {lr}:
    v_cmp_ne_u32 vcc, v4, v{GF+1}
    v_cmp_ne_u32 s[36:37], v4, v{GF+3}
    s_or_b64 vcc, vcc, s[36:37]
    s_cbranch_scc0 {lo}
    buffer_load_dwordx4 {vr(GF)}, v13, {sr(S_WS)}, s61 offen sc1
    s_waitcnt vmcnt(0)
    s_sub_u32 s58, s58, 1
    s_cmp_lg_u32 s58, 0
    s_cbranch_scc1 {lr}
    {lo}:
    s_cmp_lt_u32 s56, 2
    s_cbranch_scc0 {l2}
    s_lshl_b32 s36, s56, 9
    s_add_u32 s36, s36, {AUXL}
    v_lshl_add_u32 v4, v1, 3, s36
    ds_write2_b32 v4, v{GF}, v{GF+2} offset0:0 offset1:1
    s_branch {l3}
    {l2}:
    v_lshlrev_b32 v{GF}, 16, v{GF}
    v_lshlrev_b32 v{GF+2}, 16, v{GF+2}
    v_xor_b32 v{GF}, 0x80000000, v{GF}
    v_xor_b32 v{GF+2}, 0x80000000, v{GF+2}
    v_and_b32 v4, 7, v1
    v_lshlrev_b32 v4, 5, v4
    v_bfe_u32 v5, v1, 3, 2
    v_lshl_add_u32 v4, v5, 2, v4
    v_lshrrev_b32 v5, 5, v1
    v_lshl_add_u32 v4, v5, 8, v4
    v_add_u32 v4, {AUXL+1024}, v4
    ds_write2_b32 v4, v{GF}, v{GF+2} offset0:0 offset1:4
    {l3}:
    """)

WADV = "s_add_u32 s51, s51, 0x8000\ns_cmp_eq_u32 s51, s87\ns_cselect_b32 s51, s86, s51\n"
def wdA_units(k):
    return [((WADV if (k and e == 0) else "") + f"s_add_u32 m0, s52, {WSLOT[k] + e*1024}\ns_add_u32 s49, s51, {e*8192}", f"buffer_load_dwordx4 v{VWD}, {sr(S_WD)}, s49 offen lds", "wd") for e in range(4)]

DF = 16
GROUPS = ((7,4,3,0),(6,5,2,1))
def conv_setup(a):
    a(f"""
    s_lshr_b32 s91, s2, 5
    s_mul_i32 s91, s91, {ATP}
    s_and_b32 s41, s2, 31
    s_lshl_b32 s41, s41, 1
    s_add_u32 s41, s41, s5
    s_lshl_b32 s41, s41, 7
    s_add_u32 s91, s91, s41
    s_add_u32 s91, s91, {AT_OFF}
    s_lshl_b32 s41, s5, 4
    s_lshr_b32 s38, s{S_DD}, s41
    s_and_b32 s38, s38, 0xffff
    s_and_b32 s41, s56, 1
    s_sub_u32 s41, s41, 1
    s_and_b32 s38, s38, s41
    v_and_b32 v2, 15, v1
    v_lshrrev_b32 v3, 4, v1
    v_lshlrev_b32 v3, 3, v3
    v_sub_u32 v2, v2, v3
    v_add_u32 v2, 16, v2                        ; i = m+16-8g
    v_ashrrev_i32 v2, 1, v2
    v_and_b32 v3, 1, v1
    v_lshlrev_b32 v3, 4, v3
    v_lshlrev_b32 v3, v3, s38
    v_cmp_eq_i32 s[78:79], 0, v2
    v_cmp_eq_i32 s[80:81], 1, v2
    v_cmp_eq_i32 s[82:83], 2, v2
    v_cmp_eq_i32 s[84:85], 3, v2
    v_cndmask_b32 v{DF}, 0, v3, s[78:79]
    v_cndmask_b32 v{DF+1}, 0, v3, s[80:81]
    v_cndmask_b32 v{DF+2}, 0, v3, s[82:83]
    v_cndmask_b32 v{DF+3}, 0, v3, s[84:85]
    s_and_b32 s41, s56, 1
    s_lshl_b32 s41, s41, 5
    s_lshr_b32 s{S_FO}, s2, 3
    s_add_u32 s{S_FO}, s{S_FO}, s41
    s_mul_i32 s{S_FO}, s{S_FO}, {AFS}
    s_and_b32 s41, s2, 7
    s_lshl_b32 s41, s41, 1
    s_add_u32 s41, s41, s5
    s_lshl_b32 s41, s41, 2
    s_add_u32 s{S_FO}, s{S_FO}, s41
    s_add_u32 s{S_FO}, s{S_FO}, {AF_OFF}
    """)

def post_b16(a):
    lu = a.label("uok")
    a("F_pp:")
    tails(a)
    l2 = a.label("uj")
    a(f"s_waitcnt vmcnt(28)\ns_cmp_eq_u32 s55, 2\ns_cbranch_scc1 {l2}\ns_cmp_eq_u32 s55, 1\ns_cbranch_scc1 {lu}")
    xf_addr(a, 41)
    poll(a, XFL, 14, S_WS, "s41", -1, f"v{VT}")
    u_loads(a, None)
    a(f"{lu}:\ns_waitcnt vmcnt(0)\n{l2}:")
    stamp(a, "ps1")
    a(f"""
    ds_write_b128 v{UA}, {vr(UF)}
    ds_write_b128 v{UA}, {vr(UF+4)} offset:2048
    s_mov_b64 exec, 1
    ds_add_u32 v{VCN}, v{VONE} offset:{C_PS}
    s_mov_b64 exec, -1
    """)
    lds_wait(a, VCN, C_PS, 4, 2)
    stamp(a, "ps2")
    a(f"s_setprio {O.cvprio}")
    CAC = KW; POOL = list(range(KW+32, 256, 4))
    mf = []; loads = {}
    for cls in range(4):
        for k in range(8):
            loads[("A",cls,k)] = (lambda r, cls=cls, k=k: [f"ds_read_b64 v[{r}:{r+1}], v{CA} offset:{512*(7-k)+192-64*cls}", f"ds_read_b64 v[{r+2}:{r+3}], v{CA} offset:{512*(7-k)+192-64*cls+8}"])
            loads[("B",cls,k)] = (lambda r, cls=cls, k=k: [f"ds_read_b128 {vr(r)}, v{CB} offset:{512*k+192-64*cls}"])
        for k in range(8):
            for tau in range(k, 8):
                first = (cls == 0 and k == 0)
                mf.append((f"v_mfma_f32_16x16x32_bf16 {vr(CAC+4*tau)}, {{1}}, {{0}}, {0 if first else vr(CAC+4*tau)}", [("A",cls,k), ("B",cls,tau-k)]))
        if cls == 0:
            for tau in range(8):
                mf.insert(8+tau, (f"v_mfma_f32_16x16x32_bf16 {vr(CAC+4*tau)}, {{0}}, {vr(DF)}, {vr(CAC+4*tau)}", [("B",0,tau)]))
    pipeline(a, mf, loads, POOL[:O.cpool], per_gap=O.cgap, lead=14)
    stamp(a, 'cv_m')
    FR = KW+32
    a(f"""
    s_lshl_b32 s41, s5, 2
    v_add_u32 v3, s41, v{VCN}
    s_mov_b64 exec, 1
    ds_add_u32 v3, v{VONE} offset:{C_KF}
    s_mov_b64 exec, -1
    s_mul_i32 s41, s5, {4*PC}
    s_and_b32 s40, s56, 1
    s_lshl_b32 s44, s40, 12
    s_add_u32 s41, s41, {LC}
    s_add_u32 s45, s41, s44
    v_lshl_add_u32 v4, v1, 4, s45
    s_xor_b32 s44, s44, 0x1000
    s_add_u32 s45, s41, s44
    v_lshl_add_u32 v13, v1, 4, s45
    s_mul_i32 s44, s40, {128*ATP}
    s_add_u32 s42, s91, s44
    """)
    lds_wait(a, 3, C_KF, 3, 2)
    h1 = a.label("h1"); hj = a.label("hj")
    a(f"s_bitcmp1_b32 s56, 0\ns_cbranch_scc1 {h1}")
    for k in range(4): a(f"ds_write_b128 v13, {vr(CAC+16+4*k)} offset:{1024*k}")
    a(f"s_branch {hj}\n{h1}:")
    for k in range(4): a(f"ds_write_b128 v13, {vr(CAC+4*k)} offset:{1024*k}")
    for k in range(8): a(f"v_mov_b64 {pr(CAC+2*k)}, {pr(CAC+16+2*k)}")
    a(f"{hj}:\ns_mov_b64 exec, 1\nds_add_u32 v3, v{VONE} offset:{C_KF}\ns_mov_b64 exec, -1")
    lds_wait(a, 3, C_KF, 5, 2)
    stamp(a, 'cv_x')
    for k in range(4): a(f"ds_read_b128 {vr(FR+4*k)}, v4 offset:{1024*k}")
    for k in range(4):
        U = FR+16+4*k
        a(f"s_waitcnt lgkmcnt({3-k})")
        for r in range(4): a(f"v_add_f32 v{CAC+4*k+r}, v{CAC+4*k+r}, v{FR+4*k+r}")
        a(f"v_cvt_pk_bf16_f32 v{U}, v{CAC+4*k}, v{CAC+4*k+1}\nv_cvt_pk_bf16_f32 v{U+1}, v{CAC+4*k+2}, v{CAC+4*k+3}")
        a(f"s_add_u32 s44, s42, {k*32*ATP}\nbuffer_store_dwordx2 {pr(U)}, v{CS_}, {sr(S_WS)}, s44 offen sc1")
    stamp(a, "conv_end")
    prod_tail(a)
O.cpool = 32; O.l2pf = 1; O.kstream = 1; O.wpn = 1; O.hyb = 3; O.k8 = 0; O.phi = 's_mov_b32 s60, 0'; O.opol = ''; O.cpf = 1; O.tch = 0; O.wb1 = 4; O.map2 = 1; O.go_at = 7; O.epk = 0; O.lalign = None; O.cvprio = 1; O.noa = 0; O.nob = 0; O.noconv = 0; O.hpol = 'sc1'; O.rotm = 7; O.hgap = 3; O.wpf = 9; O.pprio = 0; O.dsn = 5; O.pair_at = 36; O.cgap = 2


E1B = 3*SLOT; E2B = XR + 4*HS
def k8_pre(a):
    a(f"""
    s_lshr_b32 s5, s56, 1
    s_and_b32 s40, s56, 1
    s_lshl_b32 s40, s40, 8
    s_mul_i32 s41, s5, {48*512}
    s_add_u32 s41, s41, s40
    s_add_u32 s41, s41, {E1B}
    v_lshl_add_u32 v200, v1, 2, s41
    """)
    for r in range(1, 8): a(f"v_xor_b32 v{200+r}, {r<<4}, v200")
def k8_head(a, W):
    AR, PH, T, DT, C2 = W, W+1, W+2, W+5, W+6
    V = PV
    a(f"""
    s_lshl_b32 s3, s5, 4
    s_lshr_b32 s3, s{S_LDT}, s3
    s_lshl_b32 s3, s3, 16
    v_mov_b32 v{DT}, {hex(LOG2E)}
    v_mul_f32 v{DT}, s3, v{DT}
    v_lshlrev_b32 v{V}, 16, v{V}
    v_lshlrev_b32 v{V+1}, 16, v{V+1}
    v_mul_f32 v{V}, {hex(LOG2E)}, v{V}
    v_exp_f32 v{V}, v{V}
    v_exp_f32 v{DT}, v{DT}
    v_lshlrev_b32 v{V+2}, 16, v{V+2}
    v_cvt_pk_bf16_f32 v{T}, v{DT}, v{V}
    v_lshlrev_b32 v{DT}, 16, v{T}
    v_and_b32 v{V}, 0xffff0000, v{T}
    v_mul_f32 v{AR}, v{V}, v{DT}
    v_mul_f32 v{PH}, v{V+1}, v{DT}
    v_mul_f32 v{AR}, {hex(LOG2E ^ 0x80000000)}, v{AR}
    v_mul_f32 v{PH}, {hex(INV2PI)}, v{PH}
    """)
def k8_cm(a, ops):
    for (o,x,w,t) in ops: a(f"v_pk_mul_f32 {pr(t)}, {pr(x)}, {pr(w)} op_sel_hi:[1,0]")
    for (o,x,w,t) in ops: a(f"v_pk_fma_f32 {pr(o)}, {pr(x)}, {pr(w)}, {pr(t)} op_sel:[1,1,0] op_sel_hi:[0,1,1] neg_lo:[1,0,0]")
def k8_anchors(a, anc, AR, PH, TT):
    for i, (o, p) in enumerate(anc): a(f"v_mul_f32 v{TT+2*i}, {hex(f2u(float(p)))}, v{AR}\nv_mul_f32 v{TT+2*i+1}, {hex(f2u(float(p)))}, v{PH}")
    for i, (o, p) in enumerate(anc): a(f"v_fract_f32 v{TT+2*i+1}, v{TT+2*i+1}\nv_exp_f32 v{TT+2*i}, v{TT+2*i}")
    for i, (o, p) in enumerate(anc): a(f"v_cos_f32 v{o}, v{TT+2*i+1}\nv_sin_f32 v{o+1}, v{TT+2*i+1}")
    a("s_nop 0")
    for i, (o, p) in enumerate(anc): a(f"v_pk_mul_f32 {pr(o)}, {pr(o)}, {pr(TT+2*i)} op_sel_hi:[1,0]")
def k8_part0(a):
    W = KW; AR, PH, DT, C2 = W, W+1, W+5, W+6
    W8, W16, C3, Y, Y2, W128, W256, TT, PK = W+8, W+10, W+12, W+14, W+16, W+18, W+20, W+24, W+40
    k8_head(a, W)
    a(f"""
    v_lshlrev_b32 v{PV+3}, 16, v{PV+3}
    v_add_f32 v{DT}, v{DT}, v{DT}
    v_mul_f32 v{C2}, v{PV+2}, v{DT}
    v_mul_f32 v{C2+1}, v{PV+3}, v{DT}
    """)
    k8_anchors(a, [(W8, 8), (W16, 16), (Y, 1024), (Y2, 1152), (W256, 256)], AR, PH, TT)
    k8_cm(a, [(C3, C2, W8, TT)])
    for i in range(8):
        pk = PK + 4*(i % 2)
        a(f"v_cvt_pk_bf16_f32 v{pk}, v{C2}, -v{C2+1}\nv_cvt_pk_bf16_f32 v{pk+1}, v{C3}, -v{C3+1}")
        if i < 5: a(f"v_cvt_pk_bf16_f32 v{pk+2}, v{Y}, v{Y+1}")
        if i < 4: a(f"v_cvt_pk_bf16_f32 v{pk+3}, v{Y2}, v{Y2+1}")
        ops = []
        if i < 7: ops += [(C2, C2, W16, TT), (C3, C3, W16, TT+2)]
        if i < 4: ops += [(Y, Y, W256, TT+4)]
        if i < 3: ops += [(Y2, Y2, W256, TT+6)]
        k8_cm(a, ops)
        a(f"ds_write2st64_b32 v{208+i}, v{pk}, v{pk+1} offset0:{4*i} offset1:{4*i+2}")
        if i < 4: a(f"ds_write2st64_b32 v{200+i}, v{pk+2}, v{pk+3} offset0:{64+4*i} offset1:{64+4*i+2}")
        if i == 4: a(f"ds_write_b32 v{204}, v{pk+2} offset:{40*512}")
def k8_part1(a):
    W = KW; AR, PH = W, W+1
    Fk = lambda k: W+6+2*k; Ca = lambda k: W+20+2*k
    TT = W+36; O4 = [W+48+2*i for i in range(4)]; PK = 128
    k8_head(a, W)
    k8_anchors(a, [(Fk(1), 1), (Fk(2), 2), (Ca(1), 128), (Ca(2), 256)], AR, PH, TT)
    have = set()
    def put(row, x):
        if x is None: a(f"v_mov_b32 v{PK+row}, 0x3f80")
        else: a(f"v_cvt_pk_bf16_f32 v{PK+row}, v{x}, v{x+1}")
        have.add(row)
    done = set()
    def flush():
        for r in range(0, 32, 2):
            if r not in done and r in have and r+1 in have:
                a(f"ds_write2st64_b32 v{200+(r//2)%8}, v{PK+r}, v{PK+r+1} offset0:{2*r} offset1:{2*r+2}"); done.add(r)
    crow = {1:8, 2:16, 3:20, 4:24, 5:26, 6:28, 7:30}
    put(0, None); put(1, Fk(1)); put(2, Fk(2)); put(8, Ca(1)); put(16, Ca(2))
    for k in (3, 5, 7):
        ops = [(Fk(k), Fk(k-2), Fk(2), TT), (Ca(k), Ca(k-2), Ca(2), TT+2)]
        if k < 7: ops += [(Fk(k+1), Fk(k-1), Fk(2), TT+4), (Ca(k+1), Ca(k-1), Ca(2), TT+6)]
        k8_cm(a, ops); flush()
        put(k, Fk(k)); put(crow[k], Ca(k))
        if k < 7: put(k+1, Fk(k+1)); put(crow[k+1], Ca(k+1))
    prods = [(8+k, Ca(1), Fk(k)) for k in range(1,8)] + [(16+i, Ca(2), Fk(2*i)) for i in (1,2,3)] + [(20+i, Ca(3), Fk(2*i)) for i in (1,2,3)] + [(crow[c]+1, Ca(c), Fk(4)) for c in (4,5,6,7)]
    for i in range(0, len(prods), 4):
        grp = prods[i:i+4]
        k8_cm(a, [(O4[k], x, w, TT+2*k) for k, (r, x, w) in enumerate(grp)]); flush()
        for k, (r, x, w) in enumerate(grp): put(r, O4[k])
    flush(); assert len(done) == 16
def k8_mfma_pre(a, tile_s, ch_s):
    a(f"""
    v_and_b32 v2, 15, v1
    v_lshrrev_b32 v3, 4, v1
    v_lshrrev_b32 v4, 1, v2
    v_xor_b32 v4, v4, v3
    v_lshlrev_b32 v4, 4, v4
    v_lshl_add_u32 v4, v2, 9, v4
    s_mul_i32 s40, s{ch_s}, 3
    s_add_u32 s40, s40, s{tile_s}
    s_lshl_b32 s40, s40, 13
    s_add_u32 s40, s40, {E1B}
    v_add_u32 v214, s40, v4
    v_xor_b32 v215, 64, v214
    s_lshl_b32 s40, s{ch_s}, 13
    s_add_u32 s40, s40, {E2B}
    v_add_u32 v216, s40, v4
    v_xor_b32 v217, 64, v216
    """)
def k8_mfma(a):
    FR = 128; AK = 220
    for ks in range(8):
        a(f"ds_read_b128 {vr(FR+8*ks)}, v{214+(ks&1)} offset:{(ks>>1)*128}")
        a(f"ds_read_b128 {vr(FR+8*ks+4)}, v{216+(ks&1)} offset:{(ks>>1)*128}")
    for ks in range(8):
        a(f"s_waitcnt lgkmcnt({14-2*ks})")
        a(f"v_mfma_f32_16x16x32_bf16 {vr(AK+4*(ks&1))}, {vr(FR+8*ks)}, {vr(FR+8*ks+4)}, {vr(AK+4*(ks&1)) if ks > 1 else 0}")
    a("s_nop 7")
    a(f"v_pk_add_f32 {pr(AK)}, {pr(AK)}, {pr(AK+4)}\nv_pk_add_f32 {pr(AK+2)}, {pr(AK+2)}, {pr(AK+6)}")
    a(f"v_cvt_pk_bf16_f32 v{AK}, v{AK}, v{AK+1}\nv_cvt_pk_bf16_f32 v{AK+1}, v{AK+2}, v{AK+3}")

def dma_setup(a, sp):
    a(f"""
    v_lshrrev_b32 v2, 4, v1
    v_bfe_u32 v3, v1, 1, 3
    s_and_b32 s41, s{sp}, 1
    s_lshl_b32 s41, s41, 2
    v_xor_b32 v3, v3, v2
    v_xor_b32 v3, s41, v3
    v_and_b32 v4, 1, v1
    v_lshl_or_b32 v3, v3, 1, v4
    v_mul_u32_u24 v4, 3584, v2
    v_lshl_add_u32 v8, v3, 4, v4
    v_and_b32 v3, 7, v1
    v_xor_b32 v3, v3, v2
    v_lshrrev_b32 v4, 3, v1
    v_lshlrev_b32 v4, 10, v4
    v_lshl_add_u32 v9, v3, 4, v4
    v_xor_b32 v10, 64, v9
    v_add_u32 v10, 0x1c00, v10
    v_add_u32 v12, {4*3584-2048}, v8
    s_mul_i32 s42, s{sp}, {8*3584}
    s_lshl_b32 s43, s7, 8
    s_add_u32 s42, s42, s43
    s_add_u32 s50, s42, {512*3584}
    s_mov_b32 s47, s42
    s_lshl_b32 s43, s6, 17
    s_lshl_b32 s44, s{sp}, 14
    s_add_u32 s43, s43, s44
    s_mov_b32 s46, 0
    s_lshl_b32 s44, s{sp}, 12
    s_lshl_b32 s45, s{sp}, 11
    s_add_u32 s45, s45, {XR}
    """)
def wu_fix(a): a(f"s_sub_u32 s{S_WU}, s{S_WU}, 1024\ns_subb_u32 s{S_WU+1}, s{S_WU+1}, 0")
def xhalf(h, tag):
    sig, hh = h >> 1, h & 1
    pre = f"s_add_u32 m0, s45, {(h % 7)*HS}\n"
    if hh == 0: pre += "s_add_u32 s48, s46, s43"
    else:
        pre += "s_add_u32 s48, s48, 0x10000\ns_add_u32 s46, s46, 128"
        if O.hyb and sig == O.hyb-1: pre += "\ns_lshl_b32 s3, s60, 7\ns_add_u32 s46, s46, s3"
        elif O.hyb and sig >= O.hyb: pre += f"\ns_cmp_eq_u32 s46, 0x400\ns_cselect_b32 s46, {O.hyb*128}, s46"
    return [(pre, f"buffer_load_dwordx4 v9, {sr(S_X)}, s48 offen lds", tag), ("", f"buffer_load_dwordx4 v10, {sr(S_X)}, s48 offen offset:1024 lds", tag)]
ADV = f"s_add_u32 s47, s47, {32*3584}\ns_cmp_eq_u32 s47, s50\ns_cselect_b32 s47, s42, s47"
def group(g):
    b = (g % NW)*SLOT
    adv = f"s_add_u32 s47, s47, {32*3584}" if g else "s_nop 0"
    if O.hyb and g == 2*O.hyb: adv += f"\ns_mov_b32 s42, s47\ns_mul_i32 s3, s60, {64*3584}\ns_add_u32 s47, s47, s3"
    elif O.hyb and g > 2*O.hyb and g % 2 == 0: adv += "\ns_cmp_eq_u32 s47, s50\ns_cselect_b32 s47, s42, s47"
    o = [(f"s_add_u32 m0, s44, {b}\n{adv}", f"buffer_load_dwordx4 v8, {sr(S_WG)}, s47 offen lds", g),
         ("", f"buffer_load_dwordx4 v8, {sr(S_WU)}, s47 offen offset:1024 lds", g),
         ("", f"buffer_load_dwordx4 v12, {sr(S_WG)}, s47 offen offset:2048 lds", g),
         ("", f"buffer_load_dwordx4 v12, {sr(S_WU)}, s47 offen offset:3072 lds", g)]
    if g < 15: o += xhalf(g+1, g)
    return o
NCG = 0

def prefetches(a):
    if O.cpf: a(f"""
    s_getpc_b64 s[36:37]
    F_pc:
    s_sub_u32 s36, s36, F_pc-{NAME}
    s_subb_u32 s37, s37, 0
    s_bfe_u32 s38, s2, 0x30003
    s_lshl_b32 s38, s38, 2
    s_add_u32 s38, s38, s56
    s_lshl_b32 s38, s38, 10
    s_min_u32 s38, s38, F_last-{NAME}-1024
    v_lshlrev_b32 v2, 4, v1
    v_add_u32 v2, s38, v2
    global_load_dwordx4 v[240:243], v2, s[36:37]
    """)
    if O.tch: a(f"""
    v_lshlrev_b32 v2, 21, v1
    s_mov_b64 exec, 0x7f
    buffer_load_dword v244, v2, {sr(S_WS)}, 0 offen
    s_mov_b64 exec, 1
    buffer_load_dword v245, v2, {sr(S_OUT)}, 0 offen
    buffer_load_dword v246, v2, {sr(S_WD)}, 0 offen
    s_mov_b64 exec, -1
    """)

def g1_producer(a):
    vm = VM(a)
    dma_setup(a, 56); a('s_waitcnt lgkmcnt(0)'); wu_fix(a)
    stamp(a, "p_start")
    units = [(u, -1) for u in xhalf(0, 0)]
    for g in range(NCG, 16):
        for k, u in enumerate(group(g)):
            h = g+1
            if k < 4: mb = g-5 if g > 5 else -1
            else: mb = -1 if h < 7 else 2*((h-7) >> 1) + 2
            units.append((u, mb))
    for k in range(NRG): units += [(u, WAVAIL[k]) for u in wdA_units(k)]
    def take(s, n):
        o = []
        while units and len(o) < n and units[0][1] <= s: o.append(units.pop(0)[0])
        return o
    def emit(dmas, lines):
        n = len(dmas); cuts = [i*len(lines)//n for i in range(n)] if n else []
        k = 0
        for i in range(len(lines)+1):
            while k < n and cuts[k] == i:
                a(dmas[k][0]); vm.issue(dmas[k][1], dmas[k][2]); k += 1
            if i < len(lines): a.lines.append(lines[i])
    def L(fn, *args, **kw):
        b = Asm("B"); fn(b, *args, **kw); return b.lines
    if O.k8:
        vm.ops = ["par"]*4
        k8_pre(a); kaddr_setup(a)
        a("s_and_b32 s38, s56, 1"); k8_mfma_pre(a, 38, 5)
        emit(take(-1, 20), [])
        vm.wait("par", "lgkmcnt(0)")
        stamp(a, "p_par")
        k8_part1(a)
        a("s_waitcnt lgkmcnt(0)\ns_barrier")
        k8_mfma(a)
        l1 = a.label("kt1"); l2 = a.label("ktd")
        a(f"""
        s_lshl_b32 s41, s5, 2
        v_add_u32 v3, s41, v{VCN}
        ds_write_b32 v3, v{VONE} offset:{C_KF}
        s_bitcmp1_b32 s56, 0
        s_cbranch_scc1 {l1}
        ds_write_b64 v{KA0}, v[220:221]
        s_branch {l2}
        {l1}:
        ds_write_b32 v{KA1a}, v220 offset:512
        ds_write_b32 v{KA1b}, v221 offset:512
        {l2}:
        s_waitcnt lgkmcnt(0)
        """)
        stamp(a, "p_kg")
        rest = L(late_loads) + L(prod_setup) + ["    s_waitcnt lgkmcnt(0)"] + L(conv_setup)
        per = (len(rest) + 9)//10
        bg = {1+i: rest[i*per:(i+1)*per] for i in range(10)}
    else:
        emit(take(-1, 20), [])
        late_loads(a)
        prefetches(a); vm.ops += ["pf"]*(O.cpf + 3*O.tch)
        emit(take(-1, 12), L(prod_setup))
        stamp(a, "p_kg")
        a("s_waitcnt lgkmcnt(0)")
        conv_setup(a)
        if O.l2pf:
            a("s_bfe_u32 s88, s2, 0x20003")
            for m in range(O.l2pf):
                a(f"""
                s_add_u32 s89, s88, {4*m}
                s_min_u32 s89, s89, 9
                s_lshl_b32 s90, s60, 1
                s_add_u32 s89, s89, s90
                s_cmp_ge_u32 s89, {16-2*O.hyb}
                s_cselect_b32 s90, {16-2*O.hyb}, 0
                s_sub_u32 s89, s89, s90
                s_add_u32 s89, s89, {2*O.hyb}
                s_mul_i32 s89, s89, {32*3584}
                s_add_u32 s89, s89, s42
                """)
                for k_, (v_, srd_, off_) in enumerate(((8, S_WG, 0), (8, S_WU, 1024), (12, S_WG, 2048), (12, S_WU, 3072))):
                    vm.issue(f"buffer_load_dwordx4 {vr(224+4*k_)}, v{v_}, {sr(srd_)}, s89 offen offset:{off_}", "l2pf")
        a("s_barrier")
        bg = {}
    for s in range(17):
        if s <= 15:
            assert any(t == s for t in vm.ops) and not any(u[0][2] == s for u in units), s
            vm.wait(s)
        if s == 16: a("s_waitcnt lgkmcnt(0)")
        a("s_barrier")
        stamp(a, f"pb{s}")
        if s == 11:
            vm.wait("tag")
            tags_check(a)
        if s == O.xfc:
            vm.wait("xf")
            a(f"v_cmp_ne_u32 vcc, v{VT}, v{XFL}\ns_cmp_eq_u64 vcc, 0\ns_cselect_b32 s55, 2, 0")
            u_loads(a, vm)
        emit(take(s, O.quota[s] if s < 16 else 99), bg.get(s, []))
        if O.wpf and s == O.wpf-1:
            a(f"""
            s_lshr_b32 s88, s2, 3
            s_sub_u32 s88, s88, 4
            s_lshl_b32 s88, s88, 2
            s_add_u32 s88, s88, s56
            s_lshl_b32 s88, s88, 14
            s_and_b32 s89, s2, 1
            s_lshl_b32 s89, s89, 9
            s_add_u32 s88, s88, s89
            s_and_b32 s89, s2, 6
            s_lshl_b32 s89, s89, 11
            v_lshrrev_b32 v229, 5, v1
            v_lshlrev_b32 v229, 10, v229
            v_and_b32 v228, 31, v1
            v_lshl_add_u32 v228, v228, 4, v229
            """)
        for _ in range(O.wpn if (O.wpf and O.wpf <= s < O.wpf + 8//O.wpn) else 0):
            a("s_add_u32 s90, s88, s89")
            vm.issue(f"buffer_load_dwordx4 v[224:227], v228, {sr(S_WD)}, s90 offen", "wpf")
            if O.map2 == 2:
                a("s_xor_b32 s90, s90, 0x2200")
                vm.issue(f"buffer_load_dwordx4 v[232:235], v228, {sr(S_WD)}, s90 offen", "wpf")
            a("s_add_u32 s89, s89, 0x800\ns_and_b32 s89, s89, 0x3fff")
        if s == 4: vm.issue(f"buffer_load_dword v{VT}, v14, {sr(S_DBG)}, 0 offen sc1", "tag")
        if s == O.xfc-2:
            xf_addr(a, 36)
            vm.issue(f"buffer_load_dword v{XFL}, v14, {sr(S_WS)}, s36 offen sc1", "xf")
        if s == 12: granule_issue(a, vm)
        if s == 15: granule_check(a, vm)
    assert not units
    stamp(a, "p_b16")
    expand_gather(a)
    a(f"s_lshl_b32 s41, s56, 2\nv_add_u32 v3, s41, v{VCN}")
    vm.wait("wd")
    a(f"s_mov_b64 exec, 1\nds_write_b32 v3, v{VONE} offset:{C_PAIR}\ns_mov_b64 exec, -1")
    tails_prep(a)
    lds_signal(a, VCN, C_KX, VONE)
    a.lines += expand_writes()
    lds_wait(a, VCN, C_KX, 4, 2)
    n = vm.count_after("u"); assert n <= 28
    a(f"s_waitcnt vmcnt({n})")
    post_b16(a)

ACC = 128
def acc(t, mat, nt): return ACC + ((nt*4+t)*2+mat)*4
def FA(b, t, mat): return 32 + 48*b + (t*2+mat)*4
def FB(b, nt): return 32 + 48*b + 32 + 4*nt
def g1_consumer(a):
    VA, VB = 8, 12
    a(f"""
    s_setprio {O.cprio}
    v_mov_b32 v{VCN}, {CNT}
    v_lshl_add_u32 v2, v1, 2, v{VCN}
    v_mov_b32 v3, 0
    ds_write_b32 v2, v3
    """)
    late_loads(a)
    a(f"""
    """)
    a(f"""
    s_and_b32 s40, s{S_WAVE}, 1
    s_lshr_b32 s41, s{S_WAVE}, 1
    v_lshrrev_b32 v2, 4, v1
    v_bfe_u32 v3, v1, 2, 2
    v_and_b32 v4, 3, v1
    v_and_b32 v5, 1, v2
    v_lshl_or_b32 v5, v5, 2, v3
    s_lshl_b32 s42, s40, 2
    v_xor_b32 v5, s42, v5
    v_lshlrev_b32 v5, 5, v5
    v_lshl_add_u32 v5, v4, 3, v5
    v_lshl_add_u32 v5, v3, 8, v5
    v_lshl_add_u32 v{VA}, v2, 12, v5
    v_xor_b32 v{VA+1}, 32, v{VA}
    v_xor_b32 v{VA+2}, 64, v{VA}
    v_xor_b32 v{VA+3}, 96, v{VA}
    v_and_b32 v6, 15, v1
    v_lshrrev_b32 v7, 1, v6
    v_xor_b32 v7, v7, v2
    v_lshlrev_b32 v7, 4, v7
    v_lshl_add_u32 v7, v6, 7, v7
    s_lshl_b32 s42, s41, 13
    s_add_u32 s42, s42, {XR}
    v_add_u32 v{VB}, s42, v7
    v_xor_b32 v{VB+1}, 64, v{VB}
    s_lshl_b32 s42, s40, 8
    s_add_u32 s42, s42, {AUXL}
    v_lshl_add_u32 v14, v2, 4, s42
    s_lshl_b32 s42, s41, 8
    s_add_u32 s42, s42, {AUXL+1024}
    v_lshl_add_u32 v44, v6, 4, s42
    v_mov_b32 v{VFL}, 0
    s_lshl_b32 s42, s6, 1
    s_add_u32 s42, s42, s41
    s_lshl_b32 s{S_FO}, s42, 2
    s_mul_i32 s42, s42, 28
    s_lshl_b32 s43, s7, 1
    s_add_u32 s43, s43, s40
    s_add_u32 s42, s42, s43
    s_lshl_b32 s50, s42, 13
    s_add_u32 s51, s50, 4096
    s_mul_i32 s42, s43, 37
    s_lshr_b32 s42, s42, 8
    s_add_u32 s{S_FO}, s{S_FO}, s42
    s_mul_i32 s{S_FO}, s{S_FO}, {HFS}
    s_mul_i32 s42, s42, 7
    s_sub_u32 s43, s43, s42
    s_lshl_b32 s43, s43, 2
    s_add_u32 s{S_FO}, s{S_FO}, s43
    s_add_u32 s{S_FO}, s{S_FO}, {HF_OFF}
    s_mov_b64 s[{S_FM}:{S_FM+1}], 1
    s_mov_b32 s44, 0
    s_mov_b32 s45, s41
    s_mov_b32 s52, {SLOT}
    """)
    if O.k8:
        k8_pre(a)
        a(f"s_mul_i32 s40, s5, {8192 - 48*512}\ns_add_u32 s40, s40, {E2B - E1B}")
        for r in range(8): a(f"v_add_u32 v{208+r}, s40, v{200+r}")
        a(f"""
        v_and_b32 v2, 15, v1
        v_lshrrev_b32 v3, 4, v1
        v_lshlrev_b32 v3, 7, v3
        v_lshl_add_u32 v3, v2, 1, v3
        s_mul_i32 s40, s5, {KTP}
        s_add_u32 s40, s40, {KT+1024}
        v_add_u32 v218, s40, v3
        s_waitcnt vmcnt(0) lgkmcnt(0)
        """)
        stamp(a, "c_par")
        k8_part0(a)
        a("s_mov_b32 s38, 2")
        k8_mfma_pre(a, 38, 5)
        stamp(a, "c_kv")
        lk = a.label("nok")
        a(f"s_waitcnt lgkmcnt(0)\ns_barrier\ns_bitcmp1_b32 s56, 0\ns_cbranch_scc1 {lk}")
        k8_mfma(a)
        a(f"""
        ds_write_b16 v218, v220
        ds_write_b16_d16_hi v218, v220 offset:32
        ds_write_b16 v218, v221 offset:64
        ds_write_b16_d16_hi v218, v221 offset:96
        {lk}:
        """)
        stamp(a, "c_kg")
    else:
        kaddr_setup(a)
        a("s_waitcnt vmcnt(0) lgkmcnt(0)")
        stamp(a, "c_par")
        if O.kstream: kgen_valu(a, scalar=False, stream=True)
        else:
            kgen_valu(a, scalar=False); stamp(a, "c_k1"); kgen_ds(a, kacc=AKACC)
        stamp(a, "c_kv")
        kgen_exchange(a, kacc=AKACC, ef=AEF, bar=True)
        stamp(a, "c_kg")
    a("v_lshlrev_b32 v16, 4, v1\nv_mov_b32 v17, v44")
    def reads(b, sp):
        out = [f"ds_read_b128 {vr(FB(b,nt))}, v{VB+sp} offset:{nt*2048}" for nt in range(4)]
        for t in range(4):
            for mat in range(2):
                for rho in range(2):
                    d = FA(b,t,mat)+2*rho
                    out.append(f"ds_read_b64_tr_b16 v[{d}:{d+1}], v{VA+t} offset:{rho*2048+mat*1024}")
        return out
    def advW():
        return [f"s_add_u32 s44, s44, 1", f"s_cmp_eq_u32 s44, {NW}", f"s_cselect_b32 s46, {-(NW-1)*SLOT & 0xffffffff}, s52", f"s_cselect_b32 s44, 0, s44"] + \
               [f"v_add_u32 v{VA+t}, s46, v{VA+t}" for t in range(4)]
    def advX():
        return [f"s_add_u32 s45, s45, 2", f"s_cmp_ge_u32 s45, 7", f"s_cselect_b32 s47, {-5*HS & 0xffffffff}, s52", f"s_cselect_b32 s49, 7, 0", "s_sub_u32 s45, s45, s49"] + \
               [f"v_add_u32 v{VB+k}, s47, v{VB+k}" for k in range(2)]
    def mfma(b, t, mat, nt, first=False):
        c = acc(t,mat,nt)
        return f"v_mfma_f32_16x16x32_bf16 {vr(c)}, {vr(FA(b,t,mat))}, {vr(FB(b,nt))}, {0 if first else vr(c)}"
    def stage(b, rd, late, post=(), first=False):
        ms = [mfma(b,t,mat,nt,first) for t in range(4) for mat in range(2) for nt in range(4)]
        late = list(late); post = list(post)
        for i, m in enumerate(ms):
            a(m)
            if i < len(rd): a(rd[i])
            elif i < 27 and late:
                for _ in range(3 if len(late) > 2*(27-i) else 2):
                    if late: a(late.pop(0))
            if i == 27: a("s_waitcnt lgkmcnt(0)\ns_barrier")
            if i >= 27:
                for _ in range(2):
                    if post: a(post.pop(0))
        assert not late and not post
    a("s_waitcnt vmcnt(0) lgkmcnt(0)\ns_barrier")
    stamp(a, "c_b0")
    for r in reads(0, 0): a(r)
    for x in advW(): a(x)
    a("s_waitcnt lgkmcnt(0)\ns_barrier")
    a("s_mov_b32 s48, 7")
    lp = a.label("g1loop"); lm = a.label("g1mid")
    stage(0, reads(1, 1), advW() + advX(), first=True)
    a(f"s_branch {lm}\n{lp}:")
    stage(0, reads(1, 1), advW() + advX())
    a(f"{lm}:")
    stage(1, reads(0, 0), advW())
    a(f"s_sub_u32 s48, s48, 1\ns_cmp_lg_u32 s48, 0\ns_cbranch_scc1 {lp}")
    NM = 20
    csr = lambda t, mat: f"ds_read_b128 {vr(FA(0,t,mat))}, v14 offset:{mat*512+t*64}"
    post = [f"ds_read_b128 {vr(NM)}, v17"] + [csr(t, mat) for t in range(3) for mat in range(2)]
    stage(0, reads(1, 1), [], post)
    stamp(a, "c_s15")
    a(csr(3,0)); a(csr(3,1))
    def corr_s(ksl, nt):
        return [f"v_fmac_f32 v{acc(t,mat,nt)+r}, v{FA(0,t,mat)+r}, v{NM+nt}" for t in (2*ksl, 2*ksl+1) for mat in range(2) for r in range(4)]
    def corr(ksl, nt):
        if not O.epk: return corr_s(ksl, nt)
        o = []
        for t in (2*ksl, 2*ksl+1):
            for mat in range(2):
                for hf in range(2):
                    c = acc(t,mat,nt)+2*hf; cs = FA(0,t,mat)+2*hf; nm = NM + (nt & ~1); sel = nt & 1
                    o.append(f"v_pk_fma_f32 {pr(c)}, {pr(cs)}, {pr(nm)}, {pr(c)} op_sel:[0,{sel},0] op_sel_hi:[1,{sel},1]")
        return o
    def fin(ksl, nt):
        o = []
        for t in (2*ksl, 2*ksl+1):
            for hf in range(2):
                g = acc(t,0,nt)+2*hf; u = acc(t,1,nt)+2*hf
                if O.epk: o.append(f"v_pk_mul_f32 {pr(g)}, {pr(g)}, {pr(u)}")
                else: o += [f"v_mul_f32 v{g}, v{g}, v{u}", f"v_mul_f32 v{g+1}, v{g+1}, v{u+1}"]
        d = acc(2*ksl,1,nt); k = 0
        for t in (2*ksl, 2*ksl+1):
            for hf in range(2):
                g = acc(t,0,nt)+2*hf
                o.append(f"v_cvt_pk_bf16_f32 v{d+k}, v{g}, v{g+1}"); k += 1
        o.append(f"buffer_store_dwordx4 {vr(d)}, v16, {sr(S_WS)}, s{50+ksl} offen offset:{nt*1024} sc1")
        return o
    groups = [(ksl, nt) for ksl in range(2) for nt in range(4)]
    pre = set()
    for gi, (ksl, nt) in enumerate(groups):
        fill = []
        if gi == 1: a("s_waitcnt lgkmcnt(0)")
        if O.shadow == 4:
            if 1 <= gi <= 6: fill = corr_s(*groups[gi+1]); pre.add(gi+1)
            if gi == 7: fill = corr_s(*groups[0]); pre.add(0)
        elif O.shadow == 2:
            tgt = {1:3, 2:3, 3:5, 4:5, 5:7, 6:7}
            if gi in tgt:
                c = corr_s(*groups[tgt[gi]]); fill = c[:8] if gi % 2 else c[8:]; pre.add(tgt[gi])
        n = len(fill)//4
        for k, m in enumerate([mfma(1, t, mat, nt) for t in (2*ksl, 2*ksl+1) for mat in range(2)]):
            a(m)
            for x in fill[n*k:n*k+n]: a(x)
    for gi in range(8):
        if gi not in pre:
            for x in corr(*groups[gi]): a(x)
        for x in fin(*groups[gi]): a(x)
    stamp(a, "c_end")

LA = LC
VX, VO = 9, 10
XF = 24; RS = 28
def tail_setup(a, vm):
    a(f"""
    v_lshrrev_b32 v2, 3, v0
    v_lshlrev_b32 v{VX}, 10, v2
    v_and_b32 v3, 7, v0
    v_lshl_add_u32 v{VX}, v3, 4, v{VX}
    s_lshl_b32 s55, s53, 16
    s_lshl_b32 s50, s54, 7
    s_add_u32 s55, s55, s50
    v_mul_u32_u24 v{VO}, {PP}, v2
    v_lshl_add_u32 v{VO}, v3, 5, v{VO}
    v_add_u32 v{VO}, {LA}, v{VO}
    v_and_b32 v4, 15, v2
    v_lshlrev_b32 v3, 1, v3
    v_xor_b32 v3, v3, v4
    v_lshlrev_b32 v3, 4, v3
    v_lshl_add_u32 v3, v4, 8, v3
    v_lshrrev_b32 v4, 4, v2
    v_lshl_add_u32 v14, v4, 14, v3
    v_xor_b32 v15, 16, v14
    v_lshlrev_b32 v2, 3, v2
    s_lshl_b32 s50, s53, 9
    s_add_u32 s50, s50, {ST_G}
    """)
    for t, tag in ((f"buffer_load_dwordx4 {vr(XF)}, v{VX}, {sr(S_X)}, s55 offen", "x"), (f"buffer_load_dwordx2 {pr(RS)}, v2, {sr(S_WS)}, s50 offen sc1", "rs")):
        if vm: vm.issue(t, tag)
        else: a(t)

def prod_tail(a):
    a(f"""
    F_ptail:
    s_mov_b64 exec, 1
    ds_add_u32 v{VCN}, v{VONE} offset:{C_PS}
    s_mov_b64 exec, -1
    v_lshlrev_b32 v12, 4, v1
    v_lshlrev_b32 v13, 2, v1
    s_lshl_b32 s42, s53, 3
    s_add_u32 s42, s42, s54
    s_mul_i32 s42, s42, {ATP}
    s_lshl_b32 s41, s56, 11
    s_add_u32 s42, s42, s41
    s_add_u32 s42, s42, {AT_OFF}
    s_lshr_b32 s46, s53, 4
    s_lshl_b32 s46, s46, 3
    s_add_u32 s46, s46, s54
    s_lshl_b32 s46, s46, 2
    s_add_u32 s46, s46, s56
    s_mul_i32 s46, s46, {AFS}
    s_add_u32 s46, s46, {AF_OFF}
    v_and_b32 v16, 7, v1
    v_mul_u32_u24 v18, {2*PP}, v16
    v_lshrrev_b32 v16, 3, v1
    v_lshl_add_u32 v18, v16, 2, v18
    s_lshl_b32 s49, s56, 6
    s_add_u32 s49, s49, {LA}
    v_add_u32 v18, s49, v18
    v_mov_b32 v5, s{S_TAG}
    v_mov_b32 v4, 0
    s_waitcnt vmcnt(0)
    s_mov_b64 exec, 1
    buffer_store_dword v5, v4, {sr(S_WS)}, s{S_FO} offen sc1
    s_mov_b64 exec, -1
    """)
    stamp(a, 'a_st0')
    AG = 96; AU = 112
    lds_wait(a, VCN, C_PS, 8, 3)
    lds_wait(a, VCN, 52, 4, 3, sleep=4)
    tail_setup(a, None)
    poll(a, 5, 13, S_WS, "s46", 0xffff, f"s{S_TAG}", sleep=O.asleep)
    stamp(a, "hflag")
    for k in range(2): a(f"buffer_load_dwordx4 {vr(AG+4*k)}, v12, {sr(S_WS)}, s42 offen offset:{1024*k} sc1")
    for k in range(2):
        a(f"s_waitcnt vmcnt({1-k})")
        for j in range(4):
            a(f"v_lshlrev_b32 v{AU+8*k+2*j}, 16, v{AG+4*k+j}\nv_and_b32 v{AU+8*k+2*j+1}, 0xffff0000, v{AG+4*k+j}")
        for e in range(8): a(f"ds_write_b32 v18, v{AU+8*k+e} offset:{(16*(e&3) + (e>>2))*PP + 32*k}")
    lr = a.label("rsr"); lo = a.label("rso")
    a(f"""
    v_readlane_b32 s41, v{VT}, s53
    s_mov_b32 s58, {POLL_MAX}
    {lr}:
    s_waitcnt vmcnt(0)
    v_cmp_ne_u32 vcc, s41, v{RS+1}
    s_cbranch_vccz {lo}
    buffer_load_dwordx2 {pr(RS)}, v2, {sr(S_WS)}, s50 offen sc1
    s_sub_u32 s58, s58, 1
    s_cmp_lg_u32 s58, 0
    s_cbranch_scc1 {lr}
    {lo}:
    """)
    stamp(a, "g2_end")
    a("s_branch F_fin")

def gemm2(a):
    VA, VP, V3 = 16, 20, 12
    V3 = 28
    VH, VQ, VW2 = 8, 13, 12
    AC = 144
    R = NRG
    a(f"""
    F_g2:
    s_setprio 3
    v_mov_b32 v{VCN}, {CNT}
    v_lshrrev_b32 v4, 4, v1                     ; g
    v_bfe_u32 v2, v1, 3, 1
    v_and_b32 v3, 1, v4
    v_lshl_or_b32 v3, v3, 1, v2
    v_lshlrev_b32 v3, 5, v3
    v_and_b32 v4, 3, v1
    v_lshl_add_u32 v3, v4, 3, v3
    v_lshrrev_b32 v4, 2, v1
    v_lshl_add_u32 v3, v4, 7, v3
    s_lshl_b32 s52, s{S_WAVE}, 12
    v_add_u32 v{VA}, s52, v3
    v_xor_b32 v{VA+1}, 32, v{VA}
    v_xor_b32 v{VA+2}, 64, v{VA}
    v_xor_b32 v{VA+3}, 96, v{VA}
    """)
    for t in range(4): a(f"v_add_u32 v{VP+t}, 0x18000, v{VA+t}\nv_add_u32 v{V3+t}, 0x8000, v{VA+t}")
    wd_voff(a)
    lf = a.label("nofl")
    a(f"""
    s_lshl_b32 s41, s{S_WAVE}, 2
    v_add_u32 v7, s41, v{VCN}
    s_mul_i32 s86, s{S_WAVE}, {14*32*1024}
    s_lshl_b32 s41, s54, 7
    s_add_u32 s86, s86, s41
    s_add_u32 s87, s86, {14*32768}
    {rotc(44)}
    s_add_u32 s51, s44, {R-1}
    s_cmp_ge_u32 s51, 14
    s_cselect_b32 s41, 14, 0
    s_sub_u32 s51, s51, s41
    s_lshl_b32 s51, s51, 15
    s_add_u32 s51, s51, s86
    v_add_u32 v{VW2}, {8192-1024}, v{VWD}
    v_lshlrev_b32 v{VH}, 4, v1
    v_lshlrev_b32 v{VQ}, 2, v1
    s_lshl_b32 s47, s53, 2
    s_add_u32 s47, s47, s{S_WAVE}
    s_mul_i32 s47, s47, {HFS}
    s_add_u32 s47, s47, {HF_OFF}
    s_mul_i32 s45, s53, 56
    s_mul_i32 s48, s{S_WAVE}, 14
    s_add_u32 s45, s45, s48
    s_lshl_b32 s88, s45, 12
    s_add_u32 s89, s88, {14*4096}
    s_lshl_b32 s45, s44, 12
    s_add_u32 s45, s45, s88
    """)
    lds_wait(a, 7, C_PAIR, 1, 2)
    stamp(a, "g2a")
    def wread(reg, slot):
        base = WSLOT[slot]; o = []
        for t in range(4):
            for rho in range(2):
                off = base + rho*2048
                if off >= XR: v, off = VP+t, off - 0x18000
                elif off >= 65536 - 4096: v, off = V3+t, off - 0x8000
                else: v = VA+t
                o.append(f"ds_read_b64_tr_b16 v[{reg+4*t+2*rho}:{reg+4*t+2*rho+1}], v{v} offset:{off}")
        return o
    vm = VM(a)
    def wdma(step):
        k = step % 7
        if O.nob: return
        for hh in range(2):
            a((WADV if hh == 0 else "") + f"s_add_u32 m0, s52, {WSLOT[k] + hh*2048}\ns_add_u32 s49, s51, {hh*16384}")
            vm.issue(f"buffer_load_dwordx4 v{VWD}, {sr(S_WD)}, s49 offen lds", ("w", step))
            vm.issue(f"buffer_load_dwordx4 v{VW2}, {sr(S_WD)}, s49 offen offset:1024 lds", ("w", step))
    blocks = [32+16*i for i in range(7)] + [208, 224, 240]
    wreg = {s: blocks[s] for s in range(R)}
    free = blocks[R:]
    a(f"ds_read_b32 v5, v{VCN} offset:{C_TAG}")
    for s in range(R):
        for x in wread(wreg[s], s): a(x)
    a(f"s_waitcnt lgkmcnt(0)\nv_readfirstlane_b32 s{S_TAG}, v5")
    lf2 = a.label("nofl2")
    stamp(a, 'g2r')
    a(f"""
    s_cmp_eq_u64 s[{S_FM}:{S_FM+1}], 0
    s_cbranch_scc1 {lf2}
    s_waitcnt vmcnt({len(vm.ops)})
    s_mov_b64 exec, 1
    buffer_store_dword v5, v{VFL}, {sr(S_WS)}, s{S_FO} offen sc1
    s_mov_b64 exec, -1
    {lf2}:
    """)
    stamp(a, "flag")
    for s in range(R, R+O.wb1): wdma(s)
    a("s_mov_b64 exec, 0x7f")
    vm.issue(f"buffer_load_dword v2, v{VQ}, {sr(S_WS)}, s47 offen sc1", "hp")
    a("s_mov_b64 exec, -1")
    for s in range(R+O.wb1, 7+R): wdma(s)
    stamp(a, 'g2e')
    vm.wait("hp")
    lo = a.label("hok")
    a(f"s_mov_b64 exec, 0x7f\nv_cmp_ne_u32 vcc, s{S_TAG}, v2\ns_mov_b64 exec, -1\ns_cbranch_vccz {lo}")
    poll(a, 2, VQ, S_WS, "s47", 0x7f, f"s{S_TAG}")
    a(f"{lo}:")
    stamp(a, "hflag")
    hreg = {}; hn = [0]; pend = []
    def hqueue(keep=0):
        while hn[0] < 14 and len(free) > keep:
            step = hn[0]; hreg[step] = free.pop(0); hn[0] += 1
            for j in range(4):
                pre = "s_add_u32 s45, s45, 4096\ns_cmp_eq_u32 s45, s89\ns_cselect_b32 s45, s88, s45" if (step and j == 0) else ""
                pend.append((pre, f"buffer_load_dwordx4 {vr(hreg[step]+4*j)}, v{VH}, {sr(S_WS)}, s45 offen offset:{j*1024} {O.hpol}", ("h", step)))
    def pop():
        if pend:
            p = pend.pop(0); a(p[0]); vm.issue(p[1], p[2])
    hqueue()
    while pend: pop()
    a(f"s_setprio {O.g2prio}")
    for s in range(14):
        nxt = []
        if R <= s+1 <= 13:
            wreg[s+1] = free.pop(0)
            while any(p[2] == ("w", s+1) for p in pend): pop()
            if ("w", s+1) in vm.ops: vm.wait(("w", s+1))
            nxt = wread(wreg[s+1], (s+1) % 7)
        while any(p[2] == ("h", s) for p in pend): pop()
        vm.wait(("h", s), "lgkmcnt(0)" if s >= R else "")
        if s == 0: stamp(a, "h0")
        stamp(a, f"hs{s}")
        if R <= s and s+7 <= 13:
            k_ = (s+7) % 7; q_ = []
            for hh in range(2):
                q_.append(((WADV if hh == 0 else "") + f"s_add_u32 m0, s52, {WSLOT[k_] + hh*2048}\ns_add_u32 s49, s51, {hh*16384}", f"buffer_load_dwordx4 v{VWD}, {sr(S_WD)}, s49 offen lds", ("w", s+7)))
                q_.append(("", f"buffer_load_dwordx4 v{VW2}, {sr(S_WD)}, s49 offen offset:1024 lds", ("w", s+7)))
            pend += q_
        if s == 12:
            nxt += [f"v_and_b32 v2, 15, v1\nv_lshrrev_b32 v3, 4, v1", f"v_xor_b32 v3, v3, v2\nv_lshlrev_b32 v3, 4, v3", f"v_lshl_add_u32 v3, v2, 8, v3\nv_add_u32 v{VA}, s52, v3",
                    f"v_xor_b32 v{VA+1}, 64, v{VA}\nv_xor_b32 v{VA+2}, 128, v{VA}", f"v_xor_b32 v{VA+3}, 192, v{VA}"]
        if s == 13:
            wr_ = [f"ds_write_b128 v{VA+t}, {vr(AC+16*t+4*j)} offset:{j*SLOT}" for t in range(4) for j in range(4)]
            nxt = ["s_nop 0"]*5 + wr_[:11]
        k = 0
        for t in range(4):
            for j in range(4):
                c = AC + 16*t + 4*j
                a(f"v_mfma_f32_16x16x32_bf16 {vr(c)}, {vr(wreg[s]+4*t)}, {vr(hreg[s]+4*j)}, {0 if s == 0 else vr(c)}")
                if nxt: a(nxt.pop(0))
                if k % O.hgap == 0: pop()
                k += 1
        free.append(wreg[s]); free.append(hreg[s])
        hqueue(1 if R <= s+2 <= 13 else 0)
        if s == 10: tail_setup(a, vm)
        if s == O.go_at: a(f"v_mov_b32 v7, 1"); lds_signal(a, VCN, 52, 7)
    stamp(a, "g2_end")
    a(wr_[11]); a("s_nop 0"); a(wr_[12]); a("s_nop 0"); a(wr_[13]); a("s_nop 0"); a(wr_[14]); a("s_nop 0"); a(wr_[15])
    HF = 32
    a(f"""
    F_fin:
    s_waitcnt vmcnt(0)
    v_and_b32 v{RS}, 0xffff0000, v{RS}
    v_rcp_f32 v{RS+1}, v{RS}
    s_nop 0
    v_fma_f32 v{RS+2}, -v{RS}, v{RS+1}, 1.0
    v_fma_f32 v{RS+1}, v{RS+2}, v{RS+1}, v{RS+1}
    v_mul_f32 v{RS}, v{RS+1}, v{RS+1}
    """)
    for k in range(4): a(f"v_lshlrev_b32 v{HF+40+2*k}, 16, v{XF+k}\nv_and_b32 v{HF+40+2*k+1}, 0xffff0000, v{XF+k}")
    a("s_waitcnt lgkmcnt(0)")
    stamp(a, "t_pre")
    a("s_barrier")
    stamp(a, "t_bar")
    for q in range(4):
        for hf in range(2): a(f"ds_read_b128 {vr(HF+8*q+4*hf)}, v{14+hf} offset:{q*4096}")
    for hf in range(2): a(f"ds_read_b128 {vr(HF+32+4*hf)}, v{VO} offset:{16*hf}")
    for q in range(1, 4):
        a(f"s_waitcnt lgkmcnt({8-2*q})")
        for k in range(4): a(f"v_pk_add_f32 {pr(HF+2*k)}, {pr(HF+2*k)}, {pr(HF+8*q+2*k)}")
    for k in range(4): a(f"v_pk_fma_f32 {pr(HF+2*k)}, {pr(HF+2*k)}, {pr(RS)}, {pr(HF+40+2*k)} op_sel_hi:[1,0,1]")
    a("s_waitcnt lgkmcnt(0)")
    for k in range(4): a(f"v_pk_add_f32 {pr(HF+2*k)}, {pr(HF+2*k)}, {pr(HF+32+2*k)}")
    for k in range(4): a(f"v_cvt_pk_bf16_f32 v{XF+k}, v{HF+2*k}, v{HF+2*k+1}")
    a(f"buffer_store_dwordx4 {vr(XF)}, v{VX}, {sr(S_OUT)}, s55 offen {O.opol}")
    stamp(a, "end")

def treduce16(a, R, T):
    for i in range(8): a(f"v_permlane32_swap_b32 v{R[i]}, v{R[i+8]}")
    for i in range(8): a(f"v_add_f32 v{R[i]}, v{R[i]}, v{R[i+8]}")
    for i in range(4): a(f"v_permlane16_swap_b32 v{R[i]}, v{R[i+4]}")
    for i in range(4): a(f"v_add_f32 v{R[i]}, v{R[i]}, v{R[i+4]}")
    a("s_nop 0")
    for i in range(2): a(f"v_add_f32_dpp v{T+i}, v{R[i]}, v{R[i]} row_ror:8 row_mask:0xf bank_mask:0x3")
    a("s_nop 0")
    for i in range(2): a(f"v_add_f32_dpp v{T+i}, v{R[i+2]}, v{R[i+2]} row_ror:8 row_mask:0xf bank_mask:0xc")
    a("s_nop 0")
    a(f"v_add_f32_dpp v{R[0]}, v{T}, v{T} row_half_mirror row_mask:0xf bank_mask:0x5")
    a("s_nop 1")
    a(f"v_add_f32_dpp v{R[0]}, v{T+1}, v{T+1} row_half_mirror row_mask:0xf bank_mask:0xa")
    a("s_nop 1")
    a(f"v_add_f32_dpp v{R[0]}, v{R[0]}, v{R[0]} quad_perm:[1,0,3,2] row_mask:0xf bank_mask:0xf")
    a("s_nop 1")
    a(f"v_add_f32_dpp v{R[0]}, v{R[0]}, v{R[0]} quad_perm:[2,3,0,1] row_mask:0xf bank_mask:0xf")
    return lambda row: 4*row

def treduce8(a, R, T):
    for i in range(4): a(f"v_permlane32_swap_b32 v{R[i]}, v{R[i+4]}")
    for i in range(4): a(f"v_add_f32 v{R[i]}, v{R[i]}, v{R[i+4]}")
    a("s_nop 0")
    for i in range(2): a(f"v_permlane16_swap_b32 v{R[i]}, v{R[i+2]}")
    for i in range(2): a(f"v_add_f32 v{R[i]}, v{R[i]}, v{R[i+2]}")
    a("s_nop 0")
    a(f"v_add_f32_dpp v{T}, v{R[0]}, v{R[0]} row_ror:8 row_mask:0xf bank_mask:0x3")
    a(f"v_add_f32_dpp v{T}, v{R[1]}, v{R[1]} row_ror:8 row_mask:0xf bank_mask:0xc")
    a("s_nop 1")
    a(f"v_add_f32_dpp v{R[0]}, v{T}, v{T} row_half_mirror row_mask:0xf bank_mask:0xf")
    a("s_nop 1")
    a(f"v_add_f32_dpp v{R[0]}, v{R[0]}, v{R[0]} quad_perm:[1,0,3,2] row_mask:0xf bank_mask:0xf")
    a("s_nop 1")
    a(f"v_add_f32_dpp v{R[0]}, v{R[0]}, v{R[0]} quad_perm:[2,3,0,1] row_mask:0xf bank_mask:0xf")
    return lambda row: 8*row

def aux_role(a):
    S_OT = 61; GR = 12
    a(f"""
    s_memrealtime s[40:41]
    v_mov_b32 v{VCN}, {CNT}
    v_mov_b32 v{VONE}, 1
    v_mov_b32 v15, 0
    s_setprio 0
    s_cmp_ge_u32 s{S_WAVE}, 4
    s_cbranch_scc1 F_aux2
    s_setprio 2
    """)
    X = 16; F = 80; SUM = 208; T = 224
    a(f"""
    v_lshlrev_b32 v2, 4, v1
    s_lshl_b32 s44, s2, 6
    s_lshl_b32 s45, s{S_WAVE}, 4
    s_add_u32 s44, s44, s45
    s_lshl_b32 s42, s44, 10
    s_waitcnt lgkmcnt(0)
    """)
    for i in range(16):
        a(f"buffer_load_dwordx4 {vr(X+4*i)}, v2, {sr(S_X)}, s42 offen offset:{(i%4)*1024}")
        if i % 4 == 3 and i < 15: a("s_add_u32 s42, s42, 4096")
    late_loads(a)
    a(f"""
    s_lshl_b32 s46, s{S_WAVE}, 14
    v_add_u32 v9, s46, v2
    s_barrier
    ds_read_b32 v{GR+1}, v{VCN} offset:256
    """)
    for i in range(16):
        a(f"s_waitcnt vmcnt({15-i})")
        if i == 0: stamp(a, "a_x")
        for j in range(4):
            a(f"v_lshlrev_b32 v{F+8*i+2*j}, 16, v{X+4*i+j}\nv_and_b32 v{F+8*i+2*j+1}, 0xffff0000, v{X+4*i+j}")
        a(f"v_pk_add_f32 {pr(T)}, {pr(F+8*i)}, {pr(F+8*i+2)}")
        a(f"v_pk_add_f32 {pr(T+2)}, {pr(F+8*i+4)}, {pr(F+8*i+6)}")
        a(f"v_pk_add_f32 {pr(T)}, {pr(T)}, {pr(T+2)}")
        a(f"v_add_f32 v{SUM+i}, v{T}, v{T+1}")
    R = [SUM+i for i in range(16)]
    ln = treduce16(a, R, T)
    a(f"""
    v_mul_f32 v{T}, 0x3b000000, v{SUM}
    v_cvt_pk_bf16_f32 v{T+4}, v{T}, v{T}
    v_and_b32 v{T+4}, 0xffff0000, v{T+4}
    v_sub_f32 v{T+5}, v{T}, v{T+4}
    """)
    for i in range(16): a(f"v_readlane_b32 s{76+i}, v{T+4}, {ln(i)}")
    def sb(i): return f"s[{76+(i&~1)}:{77+(i&~1)}] op_sel:[0,{i&1}] op_sel_hi:[1,{i&1}]"
    for i in range(16):
        for j in range(0, 8, 2): a(f"v_pk_add_f32 {pr(F+8*i+j)}, {pr(F+8*i+j)}, {sb(i)} neg_lo:[0,1] neg_hi:[0,1]")
        a(f"v_pk_mul_f32 {pr(T)}, {pr(F+8*i)}, {pr(F+8*i)}")
        for j in (2,4,6): a(f"v_pk_fma_f32 {pr(T)}, {pr(F+8*i+j)}, {pr(F+8*i+j)}, {pr(T)}")
        a(f"v_add_f32 v{SUM+i}, v{T}, v{T+1}")
    treduce16(a, R, T)
    a(f"""
    v_mul_f32 v{T+6}, 0x3b000000, v{SUM}
    v_fma_f32 v{T+6}, -v{T+5}, v{T+5}, v{T+6}
    v_max_f32 v{T+6}, 0, v{T+6}
    v_cvt_pk_bf16_f32 v{T+6}, v{T+6}, v{T+6}
    v_and_b32 v{T+6}, 0xffff0000, v{T+6}
    v_add_f32 v{T+6}, 0x3727c5ac, v{T+6}
    v_cvt_pk_bf16_f32 v{T+6}, v{T+6}, v{T+6}
    v_and_b32 v{T+6}, 0xffff0000, v{T+6}
    v_sqrt_f32 v{T+6}, v{T+6}
    v_lshlrev_b32 v5, 1, v1
    v_cvt_pk_bf16_f32 v{GR}, v{T+4}, v{T+6}
    s_lshl_b32 s46, s44, 3
    s_add_u32 s46, s46, {ST_G}
    s_mov_b32 exec_lo, 0x11111111
    s_mov_b32 exec_hi, 0x11111111
    s_waitcnt lgkmcnt(0)
    buffer_store_dwordx2 {pr(GR)}, v5, {sr(S_WS)}, s46 offen sc1
    s_mov_b64 exec, -1
    v_and_b32 v{T+6}, 0xffff0000, v{GR}
    v_rcp_f32 v{T+7}, v{T+6}
    s_nop 0
    v_fma_f32 v{T+5}, -v{T+6}, v{T+7}, 1.0
    v_fma_f32 v{T+7}, v{T+5}, v{T+7}, v{T+7}
    s_nop 0
    """)
    stamp(a, "a_st")
    for i in range(16): a(f"v_readlane_b32 s{76+i}, v{T+7}, {ln(i)}")
    for i in range(16):
        for j in range(0, 8, 2): a(f"v_pk_mul_f32 {pr(F+8*i+j)}, {pr(F+8*i+j)}, {sb(i)}")
        for j in range(4): a(f"v_cvt_pk_bf16_f32 v{X+4*i+j}, v{F+8*i+2*j}, v{F+8*i+2*j+1}")
        a(f"v_xor_b32 v{T+(i&1)}, {((i&3)<<5) | (((i>>3)&1)<<7)}, v9")
        a(f"ds_write_b128 v{T+(i&1)}, {vr(X+4*i)} offset:{i*1024}")
    lds_signal(a, VCN, C_LN, VONE)
    TT = 232; FF = 128
    a(f"""
    s_mov_b64 s[{S_FM}:{S_FM+1}], 0
    v_lshrrev_b32 v3, 4, v1
    v_bfe_u32 v4, v1, 2, 2
    v_and_b32 v5, 3, v1
    v_and_b32 v2, 1, v3
    v_lshl_or_b32 v2, v2, 2, v4
    v_lshlrev_b32 v2, 5, v2
    v_lshl_add_u32 v2, v5, 3, v2
    v_lshl_add_u32 v2, v4, 10, v2
    v_lshl_add_u32 v2, v3, 13, v2
    s_lshl_b32 s46, s{S_WAVE}, 8
    v_add_u32 v2, s46, v2
    v_and_b32 v4, 15, v1
    v_lshlrev_b32 v4, 4, v4
    v_mul_u32_u24 v5, {XP}, v3
    v_add_u32 v4, v4, v5
    s_lshl_b32 s46, s{S_WAVE}, 11
    s_mul_i32 s47, s2, {8*XP}
    s_add_u32 s46, s46, s47
    s_add_u32 s46, s46, {XNT_OFF}
    s_add_u32 s47, s46, {4*XP}
    """)
    for tt in range(8): a(f"v_xor_b32 v{TT+tt}, {tt<<5}, v2")
    lds_wait(a, VCN, C_LN, 4, 3)
    stamp(a, "a_bar")
    for oh in range(2):
        for tt in range(8):
            for rho in range(2):
                d = FF + (oh*8+tt)*4 + rho*2
                a(f"ds_read_b64_tr_b16 v[{d}:{d+1}], v{TT+tt} offset:{oh*32768+rho*4096}")
    a("s_waitcnt lgkmcnt(0)")
    lds_signal(a, VCN, C_A, VONE)
    for oh in range(2):
        for tt in range(8):
            a(f"buffer_store_dwordx4 {vr(FF+(oh*8+tt)*4)}, v4, {sr(S_WS)}, s{46+oh} offen offset:{tt*256} sc1")
    a(f"""
    s_lshl_b32 s46, s{S_WAVE}, 7
    s_lshl_b32 s47, s2, 2
    s_add_u32 s46, s46, s47
    s_add_u32 s46, s46, {XF_OFF}
    s_waitcnt vmcnt(0)
    s_mov_b64 exec, 1
    buffer_store_dword v{GR+1}, v15, {sr(S_WS)}, s46 offen sc1
    s_mov_b64 exec, -1
    """)
    stamp(a, "a_end")
    a("s_branch F_g2")
    WR = list(range(192, 256, 4)); SEL = 8; CS = 188
    lt = a.label("atag")
    a(f"""
    F_aux2:
    s_lshr_b32 s46, s2, 1
    s_cmp_ge_u32 s46, 7
    s_cselect_b32 s47, 7, 0
    s_cselect_b32 s{S_WG}, s{S_WU}, s{S_WG}
    s_cselect_b32 s{S_WG+1}, s{S_WU+1}, s{S_WG+1}
    s_cselect_b32 s6, 1, 0
    s_sub_u32 s46, s46, s47
    s_and_b32 s48, s2, 1
    s_mul_i32 s48, s48, 7
    s_add_u32 s7, s46, s48
    s_lshl_b32 s45, s7, 8
    s_mul_i32 s46, s56, {128*3584}
    s_add_u32 s45, s45, s46
    s_cmp_ge_u32 s2, 28
    s_cselect_b32 s{S_WG+2}, 0, s{S_WG+2}
    v_lshrrev_b32 v3, 4, v1
    v_mul_u32_u24 v3, 3584, v3
    v_and_b32 v4, 15, v1
    v_lshl_add_u32 v8, v4, 4, v3
    s_waitcnt lgkmcnt(0)
    s_or_b32 s{S_OT}, s40, 1
    """)
    late_loads(a)
    a(f"""
    s_cmp_lg_u32 s56, 0
    s_cbranch_scc1 {lt}
    v_mov_b32 v5, s{S_OT}
    ds_write_b32 v{VCN}, v5 offset:256
    s_lshl_b32 s40, s2, 2
    s_mov_b64 exec, 1
    buffer_store_dword v5, v15, {sr(S_DBG)}, s40 offen sc1
    s_mov_b64 exec, -1
    """)
    cnt_init(a)
    a(f"{lt}:\ns_waitcnt lgkmcnt(0)\ns_barrier\nds_read_b32 v{GR+1}, v{VCN} offset:256")
    vm = VM(a); vm.ops = ["par"]*4
    WR = list(range(128, 256, 4)); SEL = KW+64; CS = KW+68
    for i in range(32):
        vm.issue(f"buffer_load_dwordx4 {vr(WR[i])}, v8, {sr(S_WG)}, s45 offen", ("w", i))
        if i < 31: a(f"s_add_u32 s45, s45, {4*3584}")
    a(f"""
    v_and_b32 v3, 1, v1
    v_lshlrev_b32 v3, 4, v3
    v_mov_b32 v4, 0x3f80
    v_lshlrev_b32 v3, v3, v4
    v_bfe_u32 v4, v1, 1, 3
    """)
    for k in range(4): a(f"v_cmp_eq_u32 s[{78+2*k}:{79+2*k}], {k}, v4")
    for k in range(4): a(f"v_cndmask_b32 v{SEL+k}, 0, v3, s[{78+2*k}:{79+2*k}]")
    a(f"""
    v_and_b32 v4, 15, v1
    v_lshlrev_b32 v4, 5, v4
    v_bfe_u32 v5, v1, 4, 1
    v_lshl_add_u32 v4, v5, 4, v4
    s_lshl_b32 s46, s56, 9
    s_add_u32 s46, s46, {LU}
    v_add_u32 v10, s46, v4
    """)
    for i in range(32):
        vm.wait(("w", i))
        a(f"v_mfma_f32_16x16x32_bf16 {vr(CS)}, {vr(SEL)}, {vr(WR[i])}, {vr(CS) if i else 0}")
    a(f"s_mov_b32 exec_hi, 0\ns_nop 6\nds_write_b128 v10, {vr(CS)}\ns_mov_b64 exec, -1")
    lds_signal(a, VCN, C_ST, VONE)
    l4 = a.label("nocs")
    a(f"s_cmp_ge_u32 s2, 28\ns_cbranch_scc1 {l4}\ns_cmp_ge_u32 s56, 2\ns_cbranch_scc1 {l4}")
    lds_wait(a, VCN, C_ST, 4, 2)
    a(f"""
    v_and_b32 v3, 127, v0
    v_lshlrev_b32 v5, 2, v3
    v_add_u32 v5, {LU}, v5
    ds_read2st64_b32 v[192:193], v5 offset0:0 offset1:2
    ds_read2st64_b32 v[194:195], v5 offset0:4 offset1:6
    v_lshlrev_b32 v3, 3, v3
    s_mul_i32 s47, s6, 14
    s_add_u32 s47, s47, s7
    s_lshl_b32 s47, s47, 10
    s_add_u32 s47, s47, {CS_G}
    s_waitcnt lgkmcnt(0)
    v_pk_add_f32 v[192:193], v[192:193], v[194:195]
    v_add_f32 v{GR}, v192, v193
    buffer_store_dwordx2 {pr(GR)}, v3, {sr(S_WS)}, s47 offen sc1
    {l4}:
    """)
    stamp(a, "a_cs")
    kaddr_setup(a)
    prod_setup(a)
    a(f"buffer_load_dword v{VT}, v14, {sr(S_DBG)}, 0 offen sc1\ns_waitcnt lgkmcnt(0)")
    kgen_valu(a, scalar=False, stream=True)
    stamp(a, "a_kg")
    kgen_exchange(a, kacc=AKACC, ef=AEF)
    lds_signal(a, VCN, C_KX, VONE)
    lds_wait(a, VCN, C_KX, 4, 2)
    expand_gather(a)
    tails_prep(a)
    a.lines += expand_writes()
    lds_signal(a, VCN, C_A, VONE)
    a("s_waitcnt vmcnt(0)")
    tags_check(a)
    stamp(a, "a_ex")
    lds_wait(a, VCN, C_A, 8, 2)
    for k in range(NRG):
        for u in wdA_units(k): a(u[0]); a(u[1])
    xf_addr(a, 41)
    poll(a, XFL, 14, S_WS, "s41", -1, f"v{VT}")
    u_loads(a, None)
    conv_setup(a)
    a(f"s_lshl_b32 s41, s56, 2\nv_add_u32 v3, s41, v{VCN}\ns_waitcnt vmcnt(0)\nds_write_b32 v3, v{VONE} offset:{C_PAIR}")
    a("s_mov_b32 s55, 2\ns_branch F_pp")

def k_fused():
    a = Asm("F")
    a(f"""
    s_cmp_ge_u32 s2, 256
    s_cbranch_scc1 F_end
    s_load_dwordx2 s[{S_X}:{S_X+1}], s[0:1], 0
    s_load_dwordx2 s[{S_WG}:{S_WG+1}], s[0:1], 64
    s_load_dwordx2 s[{S_WU}:{S_WU+1}], s[0:1], 72
    s_load_dwordx8 s[64:71], s[0:1], 8
    s_load_dwordx4 s[72:75], s[0:1], 40
    """)
    if O.stamps: a(f"{O.stamps} s[92:93]")
    a(f"v_lshrrev_b32 v2, 6, v0\nv_and_b32 v1, 63, v0\nv_readfirstlane_b32 s{S_WAVE}, v2")
    srd_tail(a, S_X, 2048*512*2); srd_tail(a, S_WG, 512*1792*2); srd_tail(a, S_WU, 512*1792*2+1024)
    if O.k8: a(f"s_and_b32 s56, s{S_WAVE}, 3\ns_waitcnt lgkmcnt(0)")
    else: a(f"s_and_b32 s56, s{S_WAVE}, 3\ns_lshr_b32 s40, s{S_WAVE}, 2\ns_cmp_lt_u32 s2, 32\ns_cselect_b32 s41, 1, 0\ns_cmp_lg_u32 s40, s41\ns_cbranch_scc1 F_nopar\ns_waitcnt lgkmcnt(0)")
    a(f"s_lshl_b32 s40, s2, 2\ns_load_dword s{S_LDT}, s[72:73], s40")
    kgen_param_loads(a, VM(a))
    a(f"""
    F_nopar:
    s_cmp_lt_u32 s2, 32
    s_cbranch_scc1 F_aux
    s_bfe_u32 s60, s2, 0x20001
    s_and_b32 s40, s2, 1
    s_lshl_b32 s40, s40, 1
    s_add_u32 s60, s60, s40
    s_cmp_ge_u32 s60, {8-O.hyb}
    s_cselect_b32 s40, {8-O.hyb}, 0
    s_sub_u32 s60, s60, s40
    s_bfe_u32 s6, s2, 0x20001
    s_lshl_b32 s6, s6, 2
    s_bfe_u32 s40, s2, 0x20003
    s_add_u32 s6, s6, s40
    s_and_b32 s7, s2, 1
    s_mul_i32 s7, s7, 7
    s_lshr_b32 s40, s2, 5
    s_add_u32 s7, s7, s40
    s_sub_u32 s7, s7, 1
    s_cmp_lt_u32 s{S_WAVE}, 4
    s_cbranch_scc1 F_cons
    """)
    g1_producer(a)
    a("F_cons:")
    g1_consumer(a)
    gemm2(a)
    stamp_flush(a)
    a("F_end:\ns_endpgm\nF_aux:")
    aux_role(a)
    a("F_last:\ns_endpgm")
    return dict(name=NAME, body=a.text(), grid=256, block=512, lds=163840, vgpr=256, sgpr=102)

def single_file(k):
    return make_file([k]).replace("; @launch kernel=%s " % k["name"], "; @launch ")
SETS = {"T": dict(hs12=1, hs13=2, g2_end=3, t_pre=4, t_bar=5, end=6, a_st0=1, hflag=7),
        "G": dict(c_par=1, c_k1=2, c_kv=3, c_kg=4, c_b0=5, pb1=1, pb7=2, pb10=3, pb12=4, pb14=5, pb15=6, pb16=7),
        "E": dict(pb16=1, ps2=2, cv_m=3, cv_x=4, conv_end=5, a_st0=6, hflag=7, c_end=1, g2a=2, g2r=3, g2d=4, flag=5, g2e=6),
        "Z": dict(c_s15=1, c_end=2, end=7),
        "A": dict(c_b0=1, c_s15=2, c_end=3, flag=4, g2a=5, hflag=6, end=7,   p_par=1, p_kg=2, p_b16=3, ps2=5,  a_x=1, a_bar=2, a_end=3, a_cs=1, a_kg=2, a_ex=3),
        "B": dict(c_par=3, c_kg=4, p_start=1, h0=2, g2_end=6, end=7, pb3=2, pb10=3, ps1=4, conv_end=5, a_st=3),
        "D": dict(hflag=1, hs0=2, hs3=3, hs4=4, hs7=5, hs10=6, hs13=7),
        "C": dict(pb10=1, pb12=2, pb13=3, pb14=4, pb15=5, pb16=6, p_b16=7)}
if __name__ == "__main__":
    sfx = ""
    for kv in sys.argv[1:]:
        k, v = kv.split("=")
        if k == "sfx": sfx = v
        else: setattr(O, k, eval(v))
    open(f"../f3{sfx}.s","w").write(single_file(k_fused()))
    O.stamps = "s_memrealtime"
    for k, v in SETS.items():
        O.stamp_sel = v
        open(f"../f3{sfx}_{k}.s","w").write(single_file(k_fused()))
```

```python
from common import Asm, vr, sr, make_file
from util import *
import struct, sys
def f2u(x): return struct.unpack("<I", struct.pack("<f", x))[0]
LOG2E = f2u(1.4426950408889634); INV2PI = f2u(0.15915494309189535)
pr = lambda r: f"v[{r}:{r+1}]"
NAME = "parallel_sum__ssm_conv_s4d__glu_gated_bilinear__prompt_kernel"

WS_SIZE = 0x10000000
ST_G = 0x700000; CS_G = 0x704000; HF_OFF = 0x990000; HFS = 3328; XF_OFF = 0x70D000; AF_OFF = 0x720000
XNT_OFF = 0x780000; XP = 8448; XQ = 65536+256; AT_OFF = 0xA00000; ATP = 8192+256; AFS = 1280; TS_OFF = 0xE00000
S_WAVE = 4
S_WS, S_X, S_WG, S_WU, S_WD, S_OUT, S_DBG = 8, 12, 16, 20, 24, 28, 32
S_TAG = 62; S_DD = 63; S_LDT = 59; S_FM = 76; S_FO = 57
VFL = 15
SLOT = 16384; NW = 6
XR = 6*SLOT; HS = 8192
LC = XR + 2*HS; LU = LC + 8*4160; PXB = XR + 7*HS; KT = PXB; KTP = 3072; AUXL = PXB + 6144; CNT = AUXL + 1536
SCR = 5*SLOT
UP = 4608; PC = 4160; PP = 272
assert LU + 2*UP <= AUXL and CNT + 512 == 163840
C_PS, C_A, C_TAG, C_ST, C_KF, C_LN, C_KX, C_PAIR = 0, 4, 8, 12, 16, 24, 28, 32
WSLOT = [4*SLOT, 5*SLOT, 0, SLOT, 2*SLOT, 3*SLOT, XR]
WAVAIL = [11, 12, 13, 14, 15, 16, 16]
NRG = 4
POLL_MAX = 1 << 16

class Opt: pass
O = Opt()
O.stamps = None; O.stamp_sel = {}
O.upfront = 20; O.quota = [8,8,8,8,8,8,8,8,8,8,8,8,8,8,8,8]
O.rate = [0,16,28,28,28,28,28,28,28,28,28,28,28,28,10,0]
O.psleep = 3; O.up2 = 6; O.kpre = 40; O.xfc = 16; O.asleep = 8; O.a0sleep = 16; O.wreg = 6; O.g2prio = 0; O.auxw0 = 2; O.pre0 = 85; O.hlead = 5; O.cprio = 3; O.shadow = 4

def stamp(a, name):
    if O.stamps and name in O.stamp_sel:
        i = O.stamp_sel[name]; a(f"{O.stamps} s[100:101]\ns_waitcnt lgkmcnt(0)\ns_mov_b32 s{92+i}, s100")
def stamp_flush(a):
    if not O.stamps: return
    for i in range(8): a(f"v_mov_b32 v{2+i}, s{92+i}")
    a(f"""
    v_mov_b32 v10, 0
    s_lshl_b32 s92, s2, 3
    s_add_u32 s92, s92, s{S_WAVE}
    s_lshl_b32 s92, s92, 5
    s_add_u32 s92, s92, {TS_OFF}
    s_mov_b64 exec, 1
    buffer_store_dwordx4 v[2:5], v10, {sr(S_WS)}, s92 offen
    buffer_store_dwordx4 v[6:9], v10, {sr(S_WS)}, s92 offen offset:16
    s_mov_b64 exec, -1
    """)
def srd_tail(a, s, size): a(f"s_mov_b32 s{s+2}, {hex(size)}\ns_mov_b32 s{s+3}, 0x20000")
MAPA = """    s_bfe_u32 s53, s2, 0x20001
    s_lshl_b32 s53, s53, 3
    s_lshr_b32 s40, s2, 5
    s_add_u32 s53, s53, s40                 ; R64
    s_and_b32 s54, s2, 1
    s_lshl_b32 s54, s54, 2
    s_bfe_u32 s40, s2, 0x20003
    s_add_u32 s54, s54, s40                 ; C64"""
MAPB = """    s_and_b32 s53, s2, 7
    s_lshl_b32 s53, s53, 2
    s_lshr_b32 s40, s2, 6
    s_add_u32 s53, s53, s40
    s_bfe_u32 s54, s2, 0x30003"""
def rotc(r):
    if O.map2: return f"s_mul_i32 s{r}, s54, {O.rotm}\ns_lshr_b32 s{r}, s{r}, 2"
    return f"s_and_b32 s{r}, s54, 3\ns_mul_i32 s{r}, s{r}, {O.rotm}\ns_add_u32 s{r}, s{r}, 1\ns_lshr_b32 s{r}, s{r}, 1"
def late_loads(a):
    a(f"""
    s_load_dwordx2 s[{S_WS}:{S_WS+1}], s[0:1], 104
    s_load_dwordx2 s[{S_DBG}:{S_DBG+1}], s[0:1], 96
    s_load_dwordx2 s[{S_WD}:{S_WD+1}], s[0:1], 80
    s_load_dwordx2 s[{S_OUT}:{S_OUT+1}], s[0:1], 88
    """)
    srd_tail(a, S_WS, WS_SIZE); srd_tail(a, S_DBG, 256); srd_tail(a, S_WD, 512*1792*2); srd_tail(a, S_OUT, 2048*512*2)
    a(f"""
    {MAPB if O.map2 else MAPA}
    s_lshl_b32 s40, s2, 2
    s_waitcnt lgkmcnt(0)
    s_load_dword s{S_DD}, s[74:75], s40
    """)
def poll(a, vdst, vaddr, srdreg, soff, mask, cmp_src, op="ne", sleep=None):
    l = a.label("poll"); d = a.label("polld")
    a(f"s_mov_b64 exec, {mask}\ns_mov_b32 s58, {POLL_MAX}\n{l}:")
    a(f"""
    buffer_load_dword v{vdst}, v{vaddr}, {sr(srdreg)}, {soff} offen sc1
    s_waitcnt vmcnt(0)
    v_cmp_{op}_u32 vcc, {cmp_src}, v{vdst}
    s_cbranch_vccz {d}
    s_sleep {sleep or O.psleep}
    s_sub_u32 s58, s58, 1
    s_cmp_lg_u32 s58, 0
    s_cbranch_scc1 {l}
    {d}:
    s_mov_b64 exec, -1
    """)
def lds_signal(a, vaddr, off, vone):
    a(f"s_mov_b64 exec, 1\nds_add_u32 v{vaddr}, v{vone} offset:{off}\ns_mov_b64 exec, -1")
def lds_wait(a, vaddr, off, target, vt, sleep=1):
    l = a.label("lw"); d = a.label("lwd")
    a(f"""
    s_mov_b32 s58, {POLL_MAX}
    {l}:
    ds_read_b32 v{vt}, v{vaddr} offset:{off}
    s_waitcnt lgkmcnt(0)
    v_readfirstlane_b32 s40, v{vt}
    s_cmp_ge_u32 s40, {target}
    s_cbranch_scc1 {d}
    s_sleep {sleep}
    s_sub_u32 s58, s58, 1
    s_cmp_lg_u32 s58, 0
    s_cbranch_scc1 {l}
    {d}:
    """)

VWD = 11; VCN = 6; VONE = 7
PV = 16; AD = 20; RA = 28; KA0, KA1a, KA1b, KA2 = 32, 33, 34, 35
VT = 36; XFL = 37; GA = 38; CA, CB, CU, CS_ = 49, 50, 51, 52; UA = 53; UV = 54; UG = 55
KW = 56; PKR = 128; UF = 188; GF = 196; EF = 200; KACC = 212

def kgen_param_loads(a, vm):
    a(f"v_lshlrev_b32 v{KW}, 1, v1\ns_lshl_b32 s40, s2, 9\ns_lshl_b32 s41, s56, 7\ns_add_u32 s40, s40, s41")
    a(f"s_mov_b32 s38, {512*128*2}\ns_mov_b32 s39, 0x20000")
    for i in range(4):
        a(f"s_mov_b32 s36, s{64+2*i}\ns_mov_b32 s37, s{65+2*i}")
        vm.issue(f"buffer_load_ushort v{PV+i}, v{KW}, s[36:39], s40 offen", "par")

def rot_calc(a, sd):
    a(f"s_and_b32 s{sd}, s54, 3\ns_mul_i32 s{sd}, s{sd}, 7\ns_add_u32 s{sd}, s{sd}, 1\ns_lshr_b32 s{sd}, s{sd}, 1")
def wd_voff(a):
    a(f"""
    v_lshrrev_b32 v2, 4, v1
    v_bfe_u32 v3, v1, 1, 2
    v_xor_b32 v3, v3, v2
    v_and_b32 v4, 1, v1
    v_lshl_or_b32 v3, v3, 1, v4
    v_lshrrev_b32 v4, 3, v1
    v_lshlrev_b32 v4, 10, v4
    v_lshl_add_u32 v{VWD}, v3, 4, v4
    """)
def kaddr_setup(a):
    T = KW+2
    a(f"""
    v_mov_b32 v{VCN}, {CNT}
    v_mov_b32 v{VONE}, 1
    s_lshl_b32 s40, s56, 12
    s_add_u32 s40, s40, {SCR}
    v_lshl_add_u32 v{AD}, v1, 2, s40
    """)
    for r in range(1, 8): a(f"v_xor_b32 v{AD+r}, {r<<4}, v{AD}")
    a(f"""
    v_and_b32 v{T}, 15, v1                  ; m / b / n
    v_lshrrev_b32 v{T+1}, 4, v1             ; g
    v_lshrrev_b32 v{T+2}, 1, v{T}
    v_xor_b32 v{T+2}, v{T+2}, v{T+1}
    v_lshlrev_b32 v{T+2}, 4, v{T+2}
    v_lshl_add_u32 v{T+2}, v{T}, 8, v{T+2}
    v_add_u32 v{RA}, s40, v{T+2}
    v_xor_b32 v{RA+1}, 64, v{RA}
    v_xor_b32 v{RA+2}, 128, v{RA}
    v_xor_b32 v{RA+3}, 192, v{RA}
    s_lshr_b32 s5, s56, 1                   ; ch
    s_mul_i32 s41, s5, {KTP}
    s_add_u32 s41, s41, {KT}
    v_lshrrev_b32 v{T+2}, 1, v{T+1}
    v_lshlrev_b32 v{T+2}, 8, v{T+2}
    v_and_b32 v{T+3}, 1, v{T+1}
    v_lshl_add_u32 v{T+2}, v{T+3}, 3, v{T+2}
    v_lshl_add_u32 v{T+2}, v{T}, 4, v{T+2}
    v_add_u32 v{KA0}, s41, v{T+2}
    v_cmp_gt_u32 vcc, 2, v{T+1}
    v_lshlrev_b32 v{T+2}, 7, v{T+1}
    v_lshlrev_b32 v{T+3}, 2, v{T}
    v_lshlrev_b32 v{T+4}, 3, v{T}
    v_cndmask_b32 v{T+3}, v{T+3}, v{T+4}, vcc
    v_add3_u32 v{KA1a}, v{T+2}, v{T+3}, s41
    v_mov_b32 v{T+3}, 64
    v_cndmask_b32 v{T+3}, v{T+3}, 4, vcc
    v_add_u32 v{KA1b}, v{KA1a}, v{T+3}
    v_lshl_add_u32 v{T+2}, v{T}, 1, v{T+2}
    v_add_u32 v{KA2}, s41, v{T+2}
    """)

def prod_setup(a):
    T = KW+2
    wd_voff(a)
    a(f"""
    s_mul_i32 s86, s56, {14*32*1024}
    s_lshl_b32 s40, s54, 7
    s_add_u32 s86, s86, s40
    s_add_u32 s87, s86, {14*32768}
    {rotc(51)}
    s_lshl_b32 s51, s51, 15
    s_add_u32 s51, s51, s86
    s_lshl_b32 s52, s56, 12
    v_mov_b32 v{VCN}, {CNT}
    v_mov_b32 v{VONE}, 1
    v_and_b32 v14, 31, v1
    v_lshlrev_b32 v14, 2, v14
    s_lshr_b32 s5, s56, 1                   ; ch
    v_and_b32 v{T}, 15, v1
    v_lshrrev_b32 v{T+1}, 4, v1
    v_and_b32 v{T+2}, 3, v1
    v_mul_u32_u24 v{CA}, {PC}, v{T+2}
    v_lshl_add_u32 v{CA}, v{T+1}, 4, v{CA}
    v_and_b32 v{T+2}, 12, v1
    v_lshlrev_b32 v{T+2}, 1, v{T+2}
    v_sub_u32 v{CA}, v{CA}, v{T+2}
    s_mul_i32 s40, s5, {4*PC}
    s_and_b32 s39, s56, 1
    s_lshl_b32 s39, s39, 8
    s_sub_u32 s40, s40, s39
    s_add_u32 s40, s40, {LC + 2*(2048-16-1792) - 192}
    v_add_u32 v{CA}, s40, v{CA}
    v_lshlrev_b32 v{CU}, 5, v{T}
    v_lshl_add_u32 v{CB}, v{T+1}, 4, v{CU}
    v_lshl_add_u32 v{CS_}, v{T+1}, 3, v{CU}
    s_mul_i32 s40, s5, {UP}
    s_add_u32 s41, s40, {LU + 480}
    v_add_u32 v{CU}, s41, v{CS_}
    v_mul_u32_u24 v{CS_}, {8*ATP}, v{T+1}
    v_lshl_add_u32 v{CS_}, v{T}, 3, v{CS_}
    s_sub_u32 s40, s40, s39
    s_add_u32 s40, s40, {LU + 480 - 32 - 192}
    v_add_u32 v{CB}, s40, v{CB}
    v_and_b32 v{UV}, 255, v0
    v_lshlrev_b32 v{T}, 3, v{UV}
    v_lshlrev_b32 v{UV}, 4, v{UV}
    v_bfe_u32 v{T+1}, v0, 4, 4
    v_and_b32 v{UG}, 0xf0, v{UV}
    v_mul_u32_u24 v{UA}, {XQ}, v{T+1}
    v_add_u32 v{UG}, v{UG}, v{UA}
    v_and_b32 v{UA}, 0x70, v{UV}
    v_lshl_add_u32 v{UA}, v{T+1}, 7, v{UA}
    v_bfe_u32 v{T+1}, v0, 3, 1
    v_mul_u32_u24 v{T+1}, {UP}, v{T+1}
    v_add_u32 v{UA}, v{UA}, v{T+1}
    v_add_u32 v{UA}, {LU+480}, v{UA}
    v_sub_u32 v{T}, 2051, v{T}
    s_movk_i32 s41, 128
    s_mov_b32 s40, {KT}
    """)
    for e in range(11):
        a(f"""
        v_subrev_u32 v{T+1}, {e}, v{T}
        v_cvt_f32_u32 v{T+2}, v{T+1}
        v_cvt_pk_bf16_f32 v{T+2}, v{T+2}, v{T+2}
        v_lshrrev_b32 v{T+2}, 16, v{T+2}
        v_subrev_u32 v{T+2}, 0x4280, v{T+2}
        v_med3_i32 v{T+2}, v{T+2}, v{T+1}, s41
        v_lshl_add_u32 v{GA+e}, v{T+2}, 1, s40
        """)

SFR = 192
def kgen_valu(a, scalar=True, stream=False):
    W = KW
    AR, PH, T, DT = W, W+1, W+2, W+5
    C2, W8, Y = W+6, W+8, W+10
    Fk = lambda k: W+20+2*k
    Ca = lambda k: W+34+2*k
    V = PV
    a(f"""
    s_lshl_b32 s3, s5, 4
    s_lshr_b32 s3, s{S_LDT}, s3
    s_lshl_b32 s3, s3, 16
    v_mov_b32 v{DT}, {hex(LOG2E)}
    v_mul_f32 v{DT}, s3, v{DT}
    v_lshlrev_b32 v{V}, 16, v{V}
    v_lshlrev_b32 v{V+1}, 16, v{V+1}
    v_lshlrev_b32 v{V+2}, 16, v{V+2}
    v_lshlrev_b32 v{V+3}, 16, v{V+3}
    v_mul_f32 v{V}, {hex(LOG2E)}, v{V}
    v_exp_f32 v{V}, v{V}
    v_exp_f32 v{DT}, v{DT}
    s_nop 0
    v_cvt_pk_bf16_f32 v{T}, v{DT}, v{V}
    v_lshlrev_b32 v{DT}, 16, v{T}
    v_and_b32 v{V}, 0xffff0000, v{T}
    v_mul_f32 v{AR}, v{V}, v{DT}
    v_mul_f32 v{PH}, v{V+1}, v{DT}
    v_mul_f32 v{AR}, {hex(LOG2E ^ 0x80000000)}, v{AR}
    v_mul_f32 v{PH}, {hex(INV2PI)}, v{PH}
    v_mul_f32 v{C2}, v{V+2}, v{DT}
    v_mul_f32 v{C2+1}, v{V+3}, v{DT}
    v_add_f32 v{C2}, v{C2}, v{C2}
    v_add_f32 v{C2+1}, v{C2+1}, v{C2+1}
    """)
    have = set(); wr = [0, 0]
    NR = (16, 16, 16, 9)
    def drain():
        while wr[0] < 4:
            t, r = wr
            if r >= NR[t]:
                for ks in range(4): a(f"ds_read_b128 {vr(SFR+16*t+4*ks)}, v{RA+ks}")
                wr[0] += 1; wr[1] = 0; continue
            if (t, r) in have and (r+1 >= NR[t] or (t, r+1) in have):
                if r+1 < NR[t]: a(f"ds_write2st64_b32 v{AD+r//2}, v{PKR+16*t+r}, v{PKR+16*t+r+1} offset0:{r} offset1:{r+1}")
                else: a(f"ds_write_b32 v{AD+r//2}, v{PKR+16*t+r} offset:{r*256}")
                wr[1] += 2
            return
    def put(tile, row, x, neg=False):
        r = PKR + 16*tile + row
        if stream: drain()
        if x is None: a(f"v_mov_b32 v{r}, 0x3f80")
        else: a(f"v_cvt_pk_bf16_f32 v{r}, v{x}, {'-' if neg else ''}v{x+1}")
        have.add((tile, row))
    def cm_multi(ops):
        if scalar:
            for (o,x,w,t) in ops: a(f"v_mul_f32 v{t}, v{x}, v{w}\nv_mul_f32 v{t+1}, v{x}, v{w+1}")
            for (o,x,w,t) in ops: a(f"v_fma_f32 v{o}, -v{x+1}, v{w+1}, v{t}\nv_fma_f32 v{o+1}, v{x+1}, v{w}, v{t+1}")
        else:
            for (o,x,w,t) in ops: a(f"v_pk_mul_f32 {pr(t)}, {pr(x)}, {pr(w)} op_sel_hi:[1,0]")
            for (o,x,w,t) in ops: a(f"v_pk_fma_f32 {pr(o)}, {pr(x)}, {pr(w)}, {pr(t)} op_sel:[1,1,0] op_sel_hi:[0,1,1] neg_lo:[1,0,0]")
    W16 = W+50; C3 = W+52; TT = W+54
    anc = [(W8, 8), (W16, 16), (Fk(1), 1), (Ca(1), 128), (Y, 1024)]
    for i, (o, p) in enumerate(anc): a(f"v_mul_f32 v{TT+2*i}, {hex(f2u(float(p)))}, v{AR}\nv_mul_f32 v{TT+2*i+1}, {hex(f2u(float(p)))}, v{PH}")
    for i, (o, p) in enumerate(anc): a(f"v_fract_f32 v{TT+2*i+1}, v{TT+2*i+1}\nv_exp_f32 v{TT+2*i}, v{TT+2*i}")
    for i, (o, p) in enumerate(anc): a(f"v_cos_f32 v{o}, v{TT+2*i+1}\nv_sin_f32 v{o+1}, v{TT+2*i+1}")
    for i, (o, p) in enumerate(anc): a(f"v_mul_f32 v{o}, v{o}, v{TT+2*i}\nv_mul_f32 v{o+1}, v{o+1}, v{TT+2*i}")
    cm_multi([(C3, C2, W8, TT)])
    for b in range(0, 16, 2):
        put(0, b, C2, True); put(0, b+1, C3, True)
        k = b//2 + 2
        ops = []
        if b < 14: ops += [(C2, C2, W16, TT), (C3, C3, W16, TT+2)]
        if k <= 7: ops += [(Fk(k), Fk(k-1), Fk(1), TT+4), (Ca(k), Ca(k-1), Ca(1), TT+6)]
        cm_multi(ops)
    O4 = [W+64+2*i for i in range(4)]
    put(1, 0, None)
    for k in range(1, 8): put(1, k, Fk(k))
    put(1, 8, Ca(1)); put(2, 0, Ca(2)); put(2, 4, Ca(3)); put(3, 0, Y)
    for c in (4,5,6,7): put(2, 8+2*(c-4), Ca(c))
    prods = [(1, 8+k, Ca(1), Fk(k)) for k in range(1,8)] + [(2, i, Ca(2), Fk(2*i)) for i in (1,2,3)] + [(2, 4+i, Ca(3), Fk(2*i)) for i in (1,2,3)] \
          + [(2, 9+2*(c-4), Ca(c), Fk(4)) for c in (4,5,6,7)] + [(3, c, Y, Ca(c)) for c in range(1,8)] + [(3, 8, Y, Y)]
    for i in range(0, len(prods), 4):
        grp = prods[i:i+4]
        cm_multi([(O4[k], x, w, TT+2*k) for k, (t, r, x, w) in enumerate(grp)])
        for k, (t, r, x, w) in enumerate(grp): put(t, r, O4[k])
    if stream:
        stamp(a, "c_k1")
        while wr[0] < 4: drain()
        a("s_waitcnt lgkmcnt(0)")
        for ks in range(4):
            for t in range(3):
                a(f"v_mfma_f32_16x16x32_bf16 {vr(AKACC+4*t)}, {vr(SFR+16*(t+1)+4*ks)}, {vr(SFR+4*ks)}, {vr(AKACC+4*t) if ks else 0}")

AKACC = 128; AEF = 140
def kgen_ds(a, kacc=None):
    KACC = kacc or globals()['KACC']
    FRG = KW
    for t in range(4):
        n = 16 if t < 3 else 9
        for r in range(0, n, 2):
            if r+1 < n: a(f"ds_write2st64_b32 v{AD+r//2}, v{PKR+16*t+r}, v{PKR+16*t+r+1} offset0:{r} offset1:{r+1}")
            else: a(f"ds_write_b32 v{AD+r//2}, v{PKR+16*t+r} offset:{r*256}")
        for ks in range(4): a(f"ds_read_b128 {vr(FRG+16*t+4*ks)}, v{RA+ks}")
    a("s_waitcnt lgkmcnt(0)")
    for ks in range(4):
        for t in range(3):
            a(f"v_mfma_f32_16x16x32_bf16 {vr(KACC+4*t)}, {vr(FRG+16*(t+1)+4*ks)}, {vr(FRG+4*ks)}, {vr(KACC+4*t) if ks else 0}")

def cnt_init(a):
    a(f"v_lshl_add_u32 v2, v1, 2, v{VCN}\nv_mov_b32 v3, 0\nds_write_b32 v2, v3")

def kgen_exchange(a, kacc=None, ef=None, bar=False):
    KACC = kacc or globals()['KACC']; EF = ef or globals()['EF']
    l = a.label("kr"); d = a.label("kd")
    a(f"""
    s_mul_i32 s40, s5, {KTP}
    s_add_u32 s40, s40, {PXB}
    v_lshl_add_u32 v2, v1, 4, s40
    s_lshl_b32 s41, s5, 2
    v_add_u32 v3, s41, v{VCN}
    s_bitcmp1_b32 s56, 0
    s_cbranch_scc0 {l}
    s_nop 1
    """)
    for t in range(3): a(f"ds_write_b128 v2, {vr(KACC+4*t)} offset:{1024*t}")
    if bar: a("s_waitcnt lgkmcnt(0)\ns_barrier")
    a(f"ds_write_b32 v3, v{VONE} offset:{C_KF}\ns_branch {d}\n{l}:")
    if bar: a("s_barrier")
    else: lds_wait(a, 3, C_KF, 1, 4)
    for t in range(3): a(f"ds_read_b128 {vr(EF+4*t)}, v2 offset:{1024*t}")
    a("s_waitcnt lgkmcnt(0)")
    for k in range(12): a(f"v_add_f32 v{KACC+k}, v{KACC+k}, v{EF+k}")
    for k in range(6): a(f"v_cvt_pk_bf16_f32 v{EF+k}, v{KACC+2*k}, v{KACC+2*k+1}")
    a(f"""
    ds_write_b64 v{KA0}, v[{EF}:{EF+1}]
    ds_write_b32 v{KA1a}, v{EF+2} offset:512
    ds_write_b32 v{KA1b}, v{EF+3} offset:512
    ds_write_b16 v{KA2}, v{EF+4} offset:1024
    ds_write_b16_d16_hi v{KA2}, v{EF+4} offset:1056
    ds_write_b16 v{KA2}, v{EF+5} offset:1088
    ds_write_b16_d16_hi v{KA2}, v{EF+5} offset:1120
    {d}:
    """)

EXO = 128
TLV, TLA = 160, 161
def expand_gather(a, step=None):
    P = KW
    for ch in range(2):
        for e in range(11): a(f"ds_read_u16 v{P+11*ch+e}, v{GA+e} offset:{KTP*ch}")
    a("s_waitcnt lgkmcnt(0)")
    for ch in range(2):
        for s_ in range(4):
            for k in range(4):
                e = 11*ch + 3 - s_ + 2*k
                a(f"v_lshl_or_b32 v{EXO+16*ch+4*s_+k}, v{P+e+1}, 16, v{P+e}")
    a(f"v_add_u32 v{KW+22}, {LC}, v{UV}")
def expand_writes():
    return [f"    ds_write_b128 v{KW+22}, {vr(EXO+16*ch+4*s_)} offset:{4*PC*ch + s_*PC}" for ch in range(2) for s_ in range(4)]

def tails_prep(a):
    T = KW+24
    a(f"""
    v_lshrrev_b32 v{T}, 3, v1
    v_and_b32 v{T+1}, 3, v{T}
    v_and_b32 v{T+2}, 7, v1
    v_lshlrev_b32 v{T+2}, 1, v{T+2}
    v_sub_u32 v{T+3}, v{T+1}, v{T+2}
    v_lshrrev_b32 v{T+4}, 5, v1
    v_mul_u32_u24 v{T+4}, {KTP}, v{T+4}
    v_max_i32 v{T+5}, 1, v{T+3}
    v_lshl_add_u32 v{T+4}, v{T+5}, 1, v{T+4}
    v_add_u32 v{T+4}, {KT-2}, v{T+4}
    ds_read_u16 v{T+6}, v{T+4} offset:2
    ds_read_u16 v{T+7}, v{T+4}
    v_mul_u32_u24 v{T}, {PC}, v{T}
    v_lshl_add_u32 v{T}, v{T+2}, 1, v{T}
    v_add_u32 v{TLA}, {LC+4096}, v{T}
    v_cmp_eq_u32 vcc, 0, v{T+3}
    v_cmp_lt_i32 s[40:41], 0, v{T+3}
    s_waitcnt lgkmcnt(0)
    v_lshl_or_b32 v{T+6}, v{T+7}, 16, v{T+6}
    v_cndmask_b32 v{T+7}, 0, v{T+7}, vcc
    v_cndmask_b32 v{TLV}, v{T+7}, v{T+6}, s[40:41]
    v_mov_b64 v[164:165], 0
    v_mov_b64 v[166:167], 0
    v_lshrrev_b32 v{T+4}, 5, v1
    v_mul_u32_u24 v{T+4}, {UP}, v{T+4}
    v_and_b32 v{T+5}, 31, v1
    v_min_u32 v{T+5}, 29, v{T+5}
    v_lshl_add_u32 v{T+4}, v{T+5}, 4, v{T+4}
    v_add_u32 v162, {LU}, v{T+4}
    """)
def tails(a):
    l = a.label("t1")
    a(f"s_cmp_lg_u32 s56, 0\ns_cbranch_scc1 {l}\nds_write_b32 v{TLA}, v{TLV}\nds_write_b128 v162, v[164:167]\n{l}:")

def xf_addr(a, s):
    a(f"s_lshr_b32 s{s}, s2, 6\ns_lshl_b32 s{s}, s{s}, 7\ns_add_u32 s{s}, s{s}, {XF_OFF}")
def u_loads(a, vm):
    a(f"s_lshl_b32 s36, s2, 8\ns_add_u32 s36, s36, {XNT_OFF}\ns_add_u32 s37, s36, {16*XQ}")
    for k in range(2):
        t = f"buffer_load_dwordx4 {vr(UF+4*k)}, v{UG}, {sr(S_WS)}, s{36+k} offen sc1"
        if vm: vm.issue(t, "u")
        else: a(t)

def tags_check(a):
    lt = a.label("tagok")
    a(f"v_cmp_eq_u32 vcc, 0, v{VT}\ns_cbranch_vccz {lt}")
    poll(a, VT, 14, S_DBG, "0", -1, "0", "eq")
    a(f"{lt}:\nv_readfirstlane_b32 s{S_TAG}, v{VT}\ns_nop 1\nv_mov_b32 v2, s{S_TAG}\nds_write_b32 v{VCN}, v2 offset:{C_TAG}")

def granule_issue(a, vm):
    a(f"""
    v_lshlrev_b32 v13, 4, v1
    s_lshl_b32 s36, s7, 10
    s_mul_i32 s37, s56, {1792*8}
    s_add_u32 s36, s36, s37
    s_add_u32 s36, s36, {CS_G}
    s_lshl_b32 s37, s6, 10
    s_add_u32 s37, s37, {ST_G}
    s_cmp_lt_u32 s56, 2
    s_cselect_b32 s61, s36, s37
    """)
    vm.issue(f"buffer_load_dwordx4 {vr(GF)}, v13, {sr(S_WS)}, s61 offen sc1", "gr")
def csq(a, sd, smat, sj):
    a(f"""
    s_cmp_ge_u32 s{sj}, 7
    s_cselect_b32 s37, 13, 0
    s_mul_i32 s{sd}, s{smat}, 7
    s_add_u32 s{sd}, s{sd}, s{sj}
    s_lshl_b32 s{sd}, s{sd}, 1
    s_sub_u32 s{sd}, s{sd}, s37
    """)
def granule_check(a, vm):
    lr = a.label("grre"); lo = a.label("grok"); l2 = a.label("gst"); l3 = a.label("gdn")
    csq(a, 36, 56, 7)
    a(f"""
    s_lshl_b32 s37, s6, 1
    s_cmp_lt_u32 s56, 2
    s_cselect_b32 s36, s36, s37
    s_cselect_b32 s37, 0, 1
    s_add_u32 s37, s37, s36
    v_readlane_b32 s36, v{VT}, s36
    v_readlane_b32 s37, v{VT}, s37
    v_cmp_gt_u32 vcc, 32, v1
    v_mov_b32 v5, s36
    v_mov_b32 v4, s37
    v_cndmask_b32 v4, v4, v5, vcc
    s_mov_b32 s58, {POLL_MAX}
    """)
    vm.wait("gr")
    a(f"""
    {lr}:
    v_cmp_ne_u32 vcc, v4, v{GF+1}
    v_cmp_ne_u32 s[36:37], v4, v{GF+3}
    s_or_b64 vcc, vcc, s[36:37]
    s_cbranch_scc0 {lo}
    buffer_load_dwordx4 {vr(GF)}, v13, {sr(S_WS)}, s61 offen sc1
    s_waitcnt vmcnt(0)
    s_sub_u32 s58, s58, 1
    s_cmp_lg_u32 s58, 0
    s_cbranch_scc1 {lr}
    {lo}:
    s_cmp_lt_u32 s56, 2
    s_cbranch_scc0 {l2}
    s_lshl_b32 s36, s56, 9
    s_add_u32 s36, s36, {AUXL}
    v_lshl_add_u32 v4, v1, 3, s36
    ds_write2_b32 v4, v{GF}, v{GF+2} offset0:0 offset1:1
    s_branch {l3}
    {l2}:
    v_lshlrev_b32 v{GF}, 16, v{GF}
    v_lshlrev_b32 v{GF+2}, 16, v{GF+2}
    v_xor_b32 v{GF}, 0x80000000, v{GF}
    v_xor_b32 v{GF+2}, 0x80000000, v{GF+2}
    v_and_b32 v4, 7, v1
    v_lshlrev_b32 v4, 5, v4
    v_bfe_u32 v5, v1, 3, 2
    v_lshl_add_u32 v4, v5, 2, v4
    v_lshrrev_b32 v5, 5, v1
    v_lshl_add_u32 v4, v5, 8, v4
    v_add_u32 v4, {AUXL+1024}, v4
    ds_write2_b32 v4, v{GF}, v{GF+2} offset0:0 offset1:4
    {l3}:
    """)

WADV = "s_add_u32 s51, s51, 0x8000\ns_cmp_eq_u32 s51, s87\ns_cselect_b32 s51, s86, s51\n"
def wdA_units(k):
    return [((WADV if (k and e == 0) else "") + f"s_add_u32 m0, s52, {WSLOT[k] + e*1024}\ns_add_u32 s49, s51, {e*8192}", f"buffer_load_dwordx4 v{VWD}, {sr(S_WD)}, s49 offen lds", "wd") for e in range(4)]

DF = 16
GROUPS = ((7,4,3,0),(6,5,2,1))
def conv_setup(a):
    a(f"""
    s_lshr_b32 s91, s2, 5
    s_mul_i32 s91, s91, {ATP}
    s_and_b32 s41, s2, 31
    s_lshl_b32 s41, s41, 1
    s_add_u32 s41, s41, s5
    s_lshl_b32 s41, s41, 7
    s_add_u32 s91, s91, s41
    s_add_u32 s91, s91, {AT_OFF}
    s_lshl_b32 s41, s5, 4
    s_lshr_b32 s38, s{S_DD}, s41
    s_and_b32 s38, s38, 0xffff
    s_and_b32 s41, s56, 1
    s_sub_u32 s41, s41, 1
    s_and_b32 s38, s38, s41
    v_and_b32 v2, 15, v1
    v_lshrrev_b32 v3, 4, v1
    v_lshlrev_b32 v3, 3, v3
    v_sub_u32 v2, v2, v3
    v_add_u32 v2, 16, v2                        ; i = m+16-8g
    v_ashrrev_i32 v2, 1, v2
    v_and_b32 v3, 1, v1
    v_lshlrev_b32 v3, 4, v3
    v_lshlrev_b32 v3, v3, s38
    v_cmp_eq_i32 s[78:79], 0, v2
    v_cmp_eq_i32 s[80:81], 1, v2
    v_cmp_eq_i32 s[82:83], 2, v2
    v_cmp_eq_i32 s[84:85], 3, v2
    v_cndmask_b32 v{DF}, 0, v3, s[78:79]
    v_cndmask_b32 v{DF+1}, 0, v3, s[80:81]
    v_cndmask_b32 v{DF+2}, 0, v3, s[82:83]
    v_cndmask_b32 v{DF+3}, 0, v3, s[84:85]
    s_and_b32 s41, s56, 1
    s_lshl_b32 s41, s41, 5
    s_lshr_b32 s{S_FO}, s2, 3
    s_add_u32 s{S_FO}, s{S_FO}, s41
    s_mul_i32 s{S_FO}, s{S_FO}, {AFS}
    s_and_b32 s41, s2, 7
    s_lshl_b32 s41, s41, 1
    s_add_u32 s41, s41, s5
    s_lshl_b32 s41, s41, 2
    s_add_u32 s{S_FO}, s{S_FO}, s41
    s_add_u32 s{S_FO}, s{S_FO}, {AF_OFF}
    """)

def post_b16(a):
    lu = a.label("uok")
    a("F_pp:")
    tails(a)
    l2 = a.label("uj")
    a(f"s_waitcnt vmcnt(28)\ns_cmp_eq_u32 s55, 2\ns_cbranch_scc1 {l2}\ns_cmp_eq_u32 s55, 1\ns_cbranch_scc1 {lu}")
    xf_addr(a, 41)
    poll(a, XFL, 14, S_WS, "s41", -1, f"v{VT}")
    u_loads(a, None)
    a(f"{lu}:\ns_waitcnt vmcnt(0)\n{l2}:")
    stamp(a, "ps1")
    a(f"""
    ds_write_b128 v{UA}, {vr(UF)}
    ds_write_b128 v{UA}, {vr(UF+4)} offset:2048
    s_mov_b64 exec, 1
    ds_add_u32 v{VCN}, v{VONE} offset:{C_PS}
    s_mov_b64 exec, -1
    """)
    lds_wait(a, VCN, C_PS, 4, 2)
    stamp(a, "ps2")
    a(f"s_setprio {O.cvprio}")
    CAC = KW; POOL = list(range(KW+32, 256, 4))
    mf = []; loads = {}
    for cls in range(4):
        for k in range(8):
            loads[("A",cls,k)] = (lambda r, cls=cls, k=k: [f"ds_read_b64 v[{r}:{r+1}], v{CA} offset:{512*(7-k)+192-64*cls}", f"ds_read_b64 v[{r+2}:{r+3}], v{CA} offset:{512*(7-k)+192-64*cls+8}"])
            loads[("B",cls,k)] = (lambda r, cls=cls, k=k: [f"ds_read_b128 {vr(r)}, v{CB} offset:{512*k+192-64*cls}"])
        for k in range(8):
            for tau in range(k, 8):
                first = (cls == 0 and k == 0)
                mf.append((f"v_mfma_f32_16x16x32_bf16 {vr(CAC+4*tau)}, {{1}}, {{0}}, {0 if first else vr(CAC+4*tau)}", [("A",cls,k), ("B",cls,tau-k)]))
        if cls == 0:
            for tau in range(8):
                mf.insert(8+tau, (f"v_mfma_f32_16x16x32_bf16 {vr(CAC+4*tau)}, {{0}}, {vr(DF)}, {vr(CAC+4*tau)}", [("B",0,tau)]))
    pipeline(a, mf, loads, POOL[:O.cpool], per_gap=O.cgap, lead=14)
    stamp(a, 'cv_m')
    FR = KW+32
    a(f"""
    s_lshl_b32 s41, s5, 2
    v_add_u32 v3, s41, v{VCN}
    s_mov_b64 exec, 1
    ds_add_u32 v3, v{VONE} offset:{C_KF}
    s_mov_b64 exec, -1
    s_mul_i32 s41, s5, {4*PC}
    s_and_b32 s40, s56, 1
    s_lshl_b32 s44, s40, 12
    s_add_u32 s41, s41, {LC}
    s_add_u32 s45, s41, s44
    v_lshl_add_u32 v4, v1, 4, s45
    s_xor_b32 s44, s44, 0x1000
    s_add_u32 s45, s41, s44
    v_lshl_add_u32 v13, v1, 4, s45
    s_mul_i32 s44, s40, {128*ATP}
    s_add_u32 s42, s91, s44
    """)
    lds_wait(a, 3, C_KF, 3, 2)
    h1 = a.label("h1"); hj = a.label("hj")
    a(f"s_bitcmp1_b32 s56, 0\ns_cbranch_scc1 {h1}")
    for k in range(4): a(f"ds_write_b128 v13, {vr(CAC+16+4*k)} offset:{1024*k}")
    a(f"s_branch {hj}\n{h1}:")
    for k in range(4): a(f"ds_write_b128 v13, {vr(CAC+4*k)} offset:{1024*k}")
    for k in range(8): a(f"v_mov_b64 {pr(CAC+2*k)}, {pr(CAC+16+2*k)}")
    a(f"{hj}:\ns_mov_b64 exec, 1\nds_add_u32 v3, v{VONE} offset:{C_KF}\ns_mov_b64 exec, -1")
    lds_wait(a, 3, C_KF, 5, 2)
    stamp(a, 'cv_x')
    for k in range(4): a(f"ds_read_b128 {vr(FR+4*k)}, v4 offset:{1024*k}")
    for k in range(4):
        U = FR+16+4*k
        a(f"s_waitcnt lgkmcnt({3-k})")
        for r in range(4): a(f"v_add_f32 v{CAC+4*k+r}, v{CAC+4*k+r}, v{FR+4*k+r}")
        a(f"v_cvt_pk_bf16_f32 v{U}, v{CAC+4*k}, v{CAC+4*k+1}\nv_cvt_pk_bf16_f32 v{U+1}, v{CAC+4*k+2}, v{CAC+4*k+3}")
        a(f"s_add_u32 s44, s42, {k*32*ATP}\nbuffer_store_dwordx2 {pr(U)}, v{CS_}, {sr(S_WS)}, s44 offen sc1")
    stamp(a, "conv_end")
    prod_tail(a)
O.cpool = 32; O.l2pf = 1; O.kstream = 1; O.wpn = 1; O.hyb = 3; O.k8 = 0; O.phi = 's_mov_b32 s60, 0'; O.opol = ''; O.cpf = 1; O.tch = 0; O.wb1 = 4; O.map2 = 1; O.go_at = 7; O.epk = 0; O.lalign = None; O.cvprio = 1; O.noa = 0; O.nob = 0; O.noconv = 0; O.hpol = 'sc1'; O.rotm = 7; O.hgap = 3; O.wpf = 9; O.pprio = 0; O.dsn = 5; O.pair_at = 36; O.cgap = 2


E1B = 3*SLOT; E2B = XR + 4*HS
def k8_pre(a):
    a(f"""
    s_lshr_b32 s5, s56, 1
    s_and_b32 s40, s56, 1
    s_lshl_b32 s40, s40, 8
    s_mul_i32 s41, s5, {48*512}
    s_add_u32 s41, s41, s40
    s_add_u32 s41, s41, {E1B}
    v_lshl_add_u32 v200, v1, 2, s41
    """)
    for r in range(1, 8): a(f"v_xor_b32 v{200+r}, {r<<4}, v200")
def k8_head(a, W):
    AR, PH, T, DT, C2 = W, W+1, W+2, W+5, W+6
    V = PV
    a(f"""
    s_lshl_b32 s3, s5, 4
    s_lshr_b32 s3, s{S_LDT}, s3
    s_lshl_b32 s3, s3, 16
    v_mov_b32 v{DT}, {hex(LOG2E)}
    v_mul_f32 v{DT}, s3, v{DT}
    v_lshlrev_b32 v{V}, 16, v{V}
    v_lshlrev_b32 v{V+1}, 16, v{V+1}
    v_mul_f32 v{V}, {hex(LOG2E)}, v{V}
    v_exp_f32 v{V}, v{V}
    v_exp_f32 v{DT}, v{DT}
    v_lshlrev_b32 v{V+2}, 16, v{V+2}
    v_cvt_pk_bf16_f32 v{T}, v{DT}, v{V}
    v_lshlrev_b32 v{DT}, 16, v{T}
    v_and_b32 v{V}, 0xffff0000, v{T}
    v_mul_f32 v{AR}, v{V}, v{DT}
    v_mul_f32 v{PH}, v{V+1}, v{DT}
    v_mul_f32 v{AR}, {hex(LOG2E ^ 0x80000000)}, v{AR}
    v_mul_f32 v{PH}, {hex(INV2PI)}, v{PH}
    """)
def k8_cm(a, ops):
    for (o,x,w,t) in ops: a(f"v_pk_mul_f32 {pr(t)}, {pr(x)}, {pr(w)} op_sel_hi:[1,0]")
    for (o,x,w,t) in ops: a(f"v_pk_fma_f32 {pr(o)}, {pr(x)}, {pr(w)}, {pr(t)} op_sel:[1,1,0] op_sel_hi:[0,1,1] neg_lo:[1,0,0]")
def k8_anchors(a, anc, AR, PH, TT):
    for i, (o, p) in enumerate(anc): a(f"v_mul_f32 v{TT+2*i}, {hex(f2u(float(p)))}, v{AR}\nv_mul_f32 v{TT+2*i+1}, {hex(f2u(float(p)))}, v{PH}")
    for i, (o, p) in enumerate(anc): a(f"v_fract_f32 v{TT+2*i+1}, v{TT+2*i+1}\nv_exp_f32 v{TT+2*i}, v{TT+2*i}")
    for i, (o, p) in enumerate(anc): a(f"v_cos_f32 v{o}, v{TT+2*i+1}\nv_sin_f32 v{o+1}, v{TT+2*i+1}")
    a("s_nop 0")
    for i, (o, p) in enumerate(anc): a(f"v_pk_mul_f32 {pr(o)}, {pr(o)}, {pr(TT+2*i)} op_sel_hi:[1,0]")
def k8_part0(a):
    W = KW; AR, PH, DT, C2 = W, W+1, W+5, W+6
    W8, W16, C3, Y, Y2, W128, W256, TT, PK = W+8, W+10, W+12, W+14, W+16, W+18, W+20, W+24, W+40
    k8_head(a, W)
    a(f"""
    v_lshlrev_b32 v{PV+3}, 16, v{PV+3}
    v_add_f32 v{DT}, v{DT}, v{DT}
    v_mul_f32 v{C2}, v{PV+2}, v{DT}
    v_mul_f32 v{C2+1}, v{PV+3}, v{DT}
    """)
    k8_anchors(a, [(W8, 8), (W16, 16), (Y, 1024), (Y2, 1152), (W256, 256)], AR, PH, TT)
    k8_cm(a, [(C3, C2, W8, TT)])
    for i in range(8):
        pk = PK + 4*(i % 2)
        a(f"v_cvt_pk_bf16_f32 v{pk}, v{C2}, -v{C2+1}\nv_cvt_pk_bf16_f32 v{pk+1}, v{C3}, -v{C3+1}")
        if i < 5: a(f"v_cvt_pk_bf16_f32 v{pk+2}, v{Y}, v{Y+1}")
        if i < 4: a(f"v_cvt_pk_bf16_f32 v{pk+3}, v{Y2}, v{Y2+1}")
        ops = []
        if i < 7: ops += [(C2, C2, W16, TT), (C3, C3, W16, TT+2)]
        if i < 4: ops += [(Y, Y, W256, TT+4)]
        if i < 3: ops += [(Y2, Y2, W256, TT+6)]
        k8_cm(a, ops)
        a(f"ds_write2st64_b32 v{208+i}, v{pk}, v{pk+1} offset0:{4*i} offset1:{4*i+2}")
        if i < 4: a(f"ds_write2st64_b32 v{200+i}, v{pk+2}, v{pk+3} offset0:{64+4*i} offset1:{64+4*i+2}")
        if i == 4: a(f"ds_write_b32 v{204}, v{pk+2} offset:{40*512}")
def k8_part1(a):
    W = KW; AR, PH = W, W+1
    Fk = lambda k: W+6+2*k; Ca = lambda k: W+20+2*k
    TT = W+36; O4 = [W+48+2*i for i in range(4)]; PK = 128
    k8_head(a, W)
    k8_anchors(a, [(Fk(1), 1), (Fk(2), 2), (Ca(1), 128), (Ca(2), 256)], AR, PH, TT)
    have = set()
    def put(row, x):
        if x is None: a(f"v_mov_b32 v{PK+row}, 0x3f80")
        else: a(f"v_cvt_pk_bf16_f32 v{PK+row}, v{x}, v{x+1}")
        have.add(row)
    done = set()
    def flush():
        for r in range(0, 32, 2):
            if r not in done and r in have and r+1 in have:
                a(f"ds_write2st64_b32 v{200+(r//2)%8}, v{PK+r}, v{PK+r+1} offset0:{2*r} offset1:{2*r+2}"); done.add(r)
    crow = {1:8, 2:16, 3:20, 4:24, 5:26, 6:28, 7:30}
    put(0, None); put(1, Fk(1)); put(2, Fk(2)); put(8, Ca(1)); put(16, Ca(2))
    for k in (3, 5, 7):
        ops = [(Fk(k), Fk(k-2), Fk(2), TT), (Ca(k), Ca(k-2), Ca(2), TT+2)]
        if k < 7: ops += [(Fk(k+1), Fk(k-1), Fk(2), TT+4), (Ca(k+1), Ca(k-1), Ca(2), TT+6)]
        k8_cm(a, ops); flush()
        put(k, Fk(k)); put(crow[k], Ca(k))
        if k < 7: put(k+1, Fk(k+1)); put(crow[k+1], Ca(k+1))
    prods = [(8+k, Ca(1), Fk(k)) for k in range(1,8)] + [(16+i, Ca(2), Fk(2*i)) for i in (1,2,3)] + [(20+i, Ca(3), Fk(2*i)) for i in (1,2,3)] + [(crow[c]+1, Ca(c), Fk(4)) for c in (4,5,6,7)]
    for i in range(0, len(prods), 4):
        grp = prods[i:i+4]
        k8_cm(a, [(O4[k], x, w, TT+2*k) for k, (r, x, w) in enumerate(grp)]); flush()
        for k, (r, x, w) in enumerate(grp): put(r, O4[k])
    flush(); assert len(done) == 16
def k8_mfma_pre(a, tile_s, ch_s):
    a(f"""
    v_and_b32 v2, 15, v1
    v_lshrrev_b32 v3, 4, v1
    v_lshrrev_b32 v4, 1, v2
    v_xor_b32 v4, v4, v3
    v_lshlrev_b32 v4, 4, v4
    v_lshl_add_u32 v4, v2, 9, v4
    s_mul_i32 s40, s{ch_s}, 3
    s_add_u32 s40, s40, s{tile_s}
    s_lshl_b32 s40, s40, 13
    s_add_u32 s40, s40, {E1B}
    v_add_u32 v214, s40, v4
    v_xor_b32 v215, 64, v214
    s_lshl_b32 s40, s{ch_s}, 13
    s_add_u32 s40, s40, {E2B}
    v_add_u32 v216, s40, v4
    v_xor_b32 v217, 64, v216
    """)
def k8_mfma(a):
    FR = 128; AK = 220
    for ks in range(8):
        a(f"ds_read_b128 {vr(FR+8*ks)}, v{214+(ks&1)} offset:{(ks>>1)*128}")
        a(f"ds_read_b128 {vr(FR+8*ks+4)}, v{216+(ks&1)} offset:{(ks>>1)*128}")
    for ks in range(8):
        a(f"s_waitcnt lgkmcnt({14-2*ks})")
        a(f"v_mfma_f32_16x16x32_bf16 {vr(AK+4*(ks&1))}, {vr(FR+8*ks)}, {vr(FR+8*ks+4)}, {vr(AK+4*(ks&1)) if ks > 1 else 0}")
    a("s_nop 7")
    a(f"v_pk_add_f32 {pr(AK)}, {pr(AK)}, {pr(AK+4)}\nv_pk_add_f32 {pr(AK+2)}, {pr(AK+2)}, {pr(AK+6)}")
    a(f"v_cvt_pk_bf16_f32 v{AK}, v{AK}, v{AK+1}\nv_cvt_pk_bf16_f32 v{AK+1}, v{AK+2}, v{AK+3}")

def dma_setup(a, sp):
    a(f"""
    v_lshrrev_b32 v2, 4, v1
    v_bfe_u32 v3, v1, 1, 3
    s_and_b32 s41, s{sp}, 1
    s_lshl_b32 s41, s41, 2
    v_xor_b32 v3, v3, v2
    v_xor_b32 v3, s41, v3
    v_and_b32 v4, 1, v1
    v_lshl_or_b32 v3, v3, 1, v4
    v_mul_u32_u24 v4, 3584, v2
    v_lshl_add_u32 v8, v3, 4, v4
    v_and_b32 v3, 7, v1
    v_xor_b32 v3, v3, v2
    v_lshrrev_b32 v4, 3, v1
    v_lshlrev_b32 v4, 10, v4
    v_lshl_add_u32 v9, v3, 4, v4
    v_xor_b32 v10, 64, v9
    v_add_u32 v10, 0x1c00, v10
    v_add_u32 v12, {4*3584-2048}, v8
    s_mul_i32 s42, s{sp}, {8*3584}
    s_lshl_b32 s43, s7, 8
    s_add_u32 s42, s42, s43
    s_add_u32 s50, s42, {512*3584}
    s_mov_b32 s47, s42
    s_lshl_b32 s43, s6, 17
    s_lshl_b32 s44, s{sp}, 14
    s_add_u32 s43, s43, s44
    s_mov_b32 s46, 0
    s_lshl_b32 s44, s{sp}, 12
    s_lshl_b32 s45, s{sp}, 11
    s_add_u32 s45, s45, {XR}
    """)
def wu_fix(a): a(f"s_sub_u32 s{S_WU}, s{S_WU}, 1024\ns_subb_u32 s{S_WU+1}, s{S_WU+1}, 0")
def xhalf(h, tag):
    sig, hh = h >> 1, h & 1
    pre = f"s_add_u32 m0, s45, {(h % 7)*HS}\n"
    if hh == 0: pre += "s_add_u32 s48, s46, s43"
    else:
        pre += "s_add_u32 s48, s48, 0x10000\ns_add_u32 s46, s46, 128"
        if O.hyb and sig == O.hyb-1: pre += "\ns_lshl_b32 s3, s60, 7\ns_add_u32 s46, s46, s3"
        elif O.hyb and sig >= O.hyb: pre += f"\ns_cmp_eq_u32 s46, 0x400\ns_cselect_b32 s46, {O.hyb*128}, s46"
    return [(pre, f"buffer_load_dwordx4 v9, {sr(S_X)}, s48 offen lds", tag), ("", f"buffer_load_dwordx4 v10, {sr(S_X)}, s48 offen offset:1024 lds", tag)]
ADV = f"s_add_u32 s47, s47, {32*3584}\ns_cmp_eq_u32 s47, s50\ns_cselect_b32 s47, s42, s47"
def group(g):
    b = (g % NW)*SLOT
    adv = f"s_add_u32 s47, s47, {32*3584}" if g else "s_nop 0"
    if O.hyb and g == 2*O.hyb: adv += f"\ns_mov_b32 s42, s47\ns_mul_i32 s3, s60, {64*3584}\ns_add_u32 s47, s47, s3"
    elif O.hyb and g > 2*O.hyb and g % 2 == 0: adv += "\ns_cmp_eq_u32 s47, s50\ns_cselect_b32 s47, s42, s47"
    o = [(f"s_add_u32 m0, s44, {b}\n{adv}", f"buffer_load_dwordx4 v8, {sr(S_WG)}, s47 offen lds", g),
         ("", f"buffer_load_dwordx4 v8, {sr(S_WU)}, s47 offen offset:1024 lds", g),
         ("", f"buffer_load_dwordx4 v12, {sr(S_WG)}, s47 offen offset:2048 lds", g),
         ("", f"buffer_load_dwordx4 v12, {sr(S_WU)}, s47 offen offset:3072 lds", g)]
    if g < 15: o += xhalf(g+1, g)
    return o
NCG = 0

def prefetches(a):
    if O.cpf: a(f"""
    s_getpc_b64 s[36:37]
    F_pc:
    s_sub_u32 s36, s36, F_pc-{NAME}
    s_subb_u32 s37, s37, 0
    s_bfe_u32 s38, s2, 0x30003
    s_lshl_b32 s38, s38, 2
    s_add_u32 s38, s38, s56
    s_lshl_b32 s38, s38, 10
    s_min_u32 s38, s38, F_last-{NAME}-1024
    v_lshlrev_b32 v2, 4, v1
    v_add_u32 v2, s38, v2
    global_load_dwordx4 v[240:243], v2, s[36:37]
    """)
    if O.tch: a(f"""
    v_lshlrev_b32 v2, 21, v1
    s_mov_b64 exec, 0x7f
    buffer_load_dword v244, v2, {sr(S_WS)}, 0 offen
    s_mov_b64 exec, 1
    buffer_load_dword v245, v2, {sr(S_OUT)}, 0 offen
    buffer_load_dword v246, v2, {sr(S_WD)}, 0 offen
    s_mov_b64 exec, -1
    """)

def g1_producer(a):
    vm = VM(a)
    dma_setup(a, 56); a('s_waitcnt lgkmcnt(0)'); wu_fix(a)
    stamp(a, "p_start")
    units = [(u, -1) for u in xhalf(0, 0)]
    for g in range(NCG, 16):
        for k, u in enumerate(group(g)):
            h = g+1
            if k < 4: mb = g-5 if g > 5 else -1
            else: mb = -1 if h < 7 else 2*((h-7) >> 1) + 2
            units.append((u, mb))
    for k in range(NRG): units += [(u, WAVAIL[k]) for u in wdA_units(k)]
    def take(s, n):
        o = []
        while units and len(o) < n and units[0][1] <= s: o.append(units.pop(0)[0])
        return o
    def emit(dmas, lines):
        n = len(dmas); cuts = [i*len(lines)//n for i in range(n)] if n else []
        k = 0
        for i in range(len(lines)+1):
            while k < n and cuts[k] == i:
                a(dmas[k][0]); vm.issue(dmas[k][1], dmas[k][2]); k += 1
            if i < len(lines): a.lines.append(lines[i])
    def L(fn, *args, **kw):
        b = Asm("B"); fn(b, *args, **kw); return b.lines
    if O.k8:
        vm.ops = ["par"]*4
        k8_pre(a); kaddr_setup(a)
        a("s_and_b32 s38, s56, 1"); k8_mfma_pre(a, 38, 5)
        emit(take(-1, 20), [])
        vm.wait("par", "lgkmcnt(0)")
        stamp(a, "p_par")
        k8_part1(a)
        a("s_waitcnt lgkmcnt(0)\ns_barrier")
        k8_mfma(a)
        l1 = a.label("kt1"); l2 = a.label("ktd")
        a(f"""
        s_lshl_b32 s41, s5, 2
        v_add_u32 v3, s41, v{VCN}
        ds_write_b32 v3, v{VONE} offset:{C_KF}
        s_bitcmp1_b32 s56, 0
        s_cbranch_scc1 {l1}
        ds_write_b64 v{KA0}, v[220:221]
        s_branch {l2}
        {l1}:
        ds_write_b32 v{KA1a}, v220 offset:512
        ds_write_b32 v{KA1b}, v221 offset:512
        {l2}:
        s_waitcnt lgkmcnt(0)
        """)
        stamp(a, "p_kg")
        rest = L(late_loads) + L(prod_setup) + ["    s_waitcnt lgkmcnt(0)"] + L(conv_setup)
        per = (len(rest) + 9)//10
        bg = {1+i: rest[i*per:(i+1)*per] for i in range(10)}
    else:
        emit(take(-1, 20), [])
        late_loads(a)
        prefetches(a); vm.ops += ["pf"]*(O.cpf + 3*O.tch)
        emit(take(-1, 12), L(prod_setup))
        stamp(a, "p_kg")
        a("s_waitcnt lgkmcnt(0)")
        conv_setup(a)
        if O.l2pf:
            a("s_bfe_u32 s88, s2, 0x20003")
            for m in range(O.l2pf):
                a(f"""
                s_add_u32 s89, s88, {4*m}
                s_min_u32 s89, s89, 9
                s_lshl_b32 s90, s60, 1
                s_add_u32 s89, s89, s90
                s_cmp_ge_u32 s89, {16-2*O.hyb}
                s_cselect_b32 s90, {16-2*O.hyb}, 0
                s_sub_u32 s89, s89, s90
                s_add_u32 s89, s89, {2*O.hyb}
                s_mul_i32 s89, s89, {32*3584}
                s_add_u32 s89, s89, s42
                """)
                for k_, (v_, srd_, off_) in enumerate(((8, S_WG, 0), (8, S_WU, 1024), (12, S_WG, 2048), (12, S_WU, 3072))):
                    vm.issue(f"buffer_load_dwordx4 {vr(224+4*k_)}, v{v_}, {sr(srd_)}, s89 offen offset:{off_}", "l2pf")
        a("s_barrier")
        bg = {}
    for s in range(17):
        if s <= 15:
            assert any(t == s for t in vm.ops) and not any(u[0][2] == s for u in units), s
            vm.wait(s)
        if s == 16: a("s_waitcnt lgkmcnt(0)")
        a("s_barrier")
        stamp(a, f"pb{s}")
        if s == 11:
            vm.wait("tag")
            tags_check(a)
        if s == O.xfc:
            vm.wait("xf")
            lu_ = a.label("nou")
            a(f"v_cmp_ne_u32 vcc, v{VT}, v{XFL}\ns_cmp_eq_u64 vcc, 0\ns_cselect_b32 s55, 2, 0\ns_cbranch_scc0 {lu_}")
            u_loads(a, None)
            a(f"{lu_}:")
        if s == 16:
            if O.xfc > 16: a("s_mov_b32 s55, 0")
            lu_ = a.label("nox2")
            a(f"s_cmp_eq_u32 s55, 2\ns_cbranch_scc1 {lu_}")
            xf_addr(a, 36)
            a(f"buffer_load_dword v{XFL}, v14, {sr(S_WS)}, s36 offen sc1\n{lu_}:")
        emit(take(s, O.quota[s] if s < 16 else 99), bg.get(s, []))
        if O.wpf and s == O.wpf-1:
            a(f"""
            s_lshr_b32 s88, s2, 3
            s_sub_u32 s88, s88, 4
            s_lshl_b32 s88, s88, 2
            s_add_u32 s88, s88, s56
            s_lshl_b32 s88, s88, 14
            s_and_b32 s89, s2, 1
            s_lshl_b32 s89, s89, 9
            s_add_u32 s88, s88, s89
            s_and_b32 s89, s2, 6
            s_lshl_b32 s89, s89, 11
            v_lshrrev_b32 v229, 5, v1
            v_lshlrev_b32 v229, 10, v229
            v_and_b32 v228, 31, v1
            v_lshl_add_u32 v228, v228, 4, v229
            """)
        for _ in range(O.wpn if (O.wpf and O.wpf <= s < O.wpf + 8//O.wpn) else 0):
            a("s_add_u32 s90, s88, s89")
            vm.issue(f"buffer_load_dwordx4 v[224:227], v228, {sr(S_WD)}, s90 offen", "wpf")
            if O.map2 == 2:
                a("s_xor_b32 s90, s90, 0x2200")
                vm.issue(f"buffer_load_dwordx4 v[232:235], v228, {sr(S_WD)}, s90 offen", "wpf")
            a("s_add_u32 s89, s89, 0x800\ns_and_b32 s89, s89, 0x3fff")
        if s == 4: vm.issue(f"buffer_load_dword v{VT}, v14, {sr(S_DBG)}, 0 offen sc1", "tag")
        if s == O.xfc-2:
            xf_addr(a, 36)
            vm.issue(f"buffer_load_dword v{XFL}, v14, {sr(S_WS)}, s36 offen sc1", "xf")
        if s == 12: granule_issue(a, vm)
        if s == 15: granule_check(a, vm)
    assert not units
    stamp(a, "p_b16")
    expand_gather(a)
    a(f"s_lshl_b32 s41, s56, 2\nv_add_u32 v3, s41, v{VCN}")
    vm.wait("wd")
    a(f"s_mov_b64 exec, 1\nds_write_b32 v3, v{VONE} offset:{C_PAIR}\ns_mov_b64 exec, -1")
    lu_ = a.label("nou2")
    a(f"s_cmp_eq_u32 s55, 2\ns_cbranch_scc1 {lu_}\ns_waitcnt vmcnt(0)")
    a(f"v_cmp_ne_u32 vcc, v{VT}, v{XFL}\ns_cmp_eq_u64 vcc, 0\ns_cselect_b32 s55, 2, 0\ns_cbranch_scc0 {lu_}")
    u_loads(a, None)
    a(f"{lu_}:")
    tails_prep(a)
    lds_signal(a, VCN, C_KX, VONE)
    a.lines += expand_writes()
    lds_wait(a, VCN, C_KX, 4, 2)
    a("s_waitcnt vmcnt(0)")
    post_b16(a)

ACC = 128
def acc(t, mat, nt): return ACC + ((nt*4+t)*2+mat)*4
def FA(b, t, mat): return 32 + 48*b + (t*2+mat)*4
def FB(b, nt): return 32 + 48*b + 32 + 4*nt
def g1_consumer(a):
    VA, VB = 8, 12
    a(f"""
    s_setprio {O.cprio}
    v_mov_b32 v{VCN}, {CNT}
    v_lshl_add_u32 v2, v1, 2, v{VCN}
    v_mov_b32 v3, 0
    ds_write_b32 v2, v3
    """)
    late_loads(a)
    a(f"""
    """)
    a(f"""
    s_and_b32 s40, s{S_WAVE}, 1
    s_lshr_b32 s41, s{S_WAVE}, 1
    v_lshrrev_b32 v2, 4, v1
    v_bfe_u32 v3, v1, 2, 2
    v_and_b32 v4, 3, v1
    v_and_b32 v5, 1, v2
    v_lshl_or_b32 v5, v5, 2, v3
    s_lshl_b32 s42, s40, 2
    v_xor_b32 v5, s42, v5
    v_lshlrev_b32 v5, 5, v5
    v_lshl_add_u32 v5, v4, 3, v5
    v_lshl_add_u32 v5, v3, 8, v5
    v_lshl_add_u32 v{VA}, v2, 12, v5
    v_xor_b32 v{VA+1}, 32, v{VA}
    v_xor_b32 v{VA+2}, 64, v{VA}
    v_xor_b32 v{VA+3}, 96, v{VA}
    v_and_b32 v6, 15, v1
    v_lshrrev_b32 v7, 1, v6
    v_xor_b32 v7, v7, v2
    v_lshlrev_b32 v7, 4, v7
    v_lshl_add_u32 v7, v6, 7, v7
    s_lshl_b32 s42, s41, 13
    s_add_u32 s42, s42, {XR}
    v_add_u32 v{VB}, s42, v7
    v_xor_b32 v{VB+1}, 64, v{VB}
    s_lshl_b32 s42, s40, 8
    s_add_u32 s42, s42, {AUXL}
    v_lshl_add_u32 v14, v2, 4, s42
    s_lshl_b32 s42, s41, 8
    s_add_u32 s42, s42, {AUXL+1024}
    v_lshl_add_u32 v44, v6, 4, s42
    v_mov_b32 v{VFL}, 0
    s_lshl_b32 s42, s6, 1
    s_add_u32 s42, s42, s41
    s_lshl_b32 s{S_FO}, s42, 2
    s_mul_i32 s42, s42, 28
    s_lshl_b32 s43, s7, 1
    s_add_u32 s43, s43, s40
    s_add_u32 s42, s42, s43
    s_lshl_b32 s50, s42, 13
    s_add_u32 s51, s50, 4096
    s_mul_i32 s42, s43, 37
    s_lshr_b32 s42, s42, 8
    s_add_u32 s{S_FO}, s{S_FO}, s42
    s_mul_i32 s{S_FO}, s{S_FO}, {HFS}
    s_mul_i32 s42, s42, 7
    s_sub_u32 s43, s43, s42
    s_lshl_b32 s43, s43, 2
    s_add_u32 s{S_FO}, s{S_FO}, s43
    s_add_u32 s{S_FO}, s{S_FO}, {HF_OFF}
    s_mov_b64 s[{S_FM}:{S_FM+1}], 1
    s_mov_b32 s44, 0
    s_mov_b32 s45, s41
    s_mov_b32 s52, {SLOT}
    """)
    if O.k8:
        k8_pre(a)
        a(f"s_mul_i32 s40, s5, {8192 - 48*512}\ns_add_u32 s40, s40, {E2B - E1B}")
        for r in range(8): a(f"v_add_u32 v{208+r}, s40, v{200+r}")
        a(f"""
        v_and_b32 v2, 15, v1
        v_lshrrev_b32 v3, 4, v1
        v_lshlrev_b32 v3, 7, v3
        v_lshl_add_u32 v3, v2, 1, v3
        s_mul_i32 s40, s5, {KTP}
        s_add_u32 s40, s40, {KT+1024}
        v_add_u32 v218, s40, v3
        s_waitcnt vmcnt(0) lgkmcnt(0)
        """)
        stamp(a, "c_par")
        k8_part0(a)
        a("s_mov_b32 s38, 2")
        k8_mfma_pre(a, 38, 5)
        stamp(a, "c_kv")
        lk = a.label("nok")
        a(f"s_waitcnt lgkmcnt(0)\ns_barrier\ns_bitcmp1_b32 s56, 0\ns_cbranch_scc1 {lk}")
        k8_mfma(a)
        a(f"""
        ds_write_b16 v218, v220
        ds_write_b16_d16_hi v218, v220 offset:32
        ds_write_b16 v218, v221 offset:64
        ds_write_b16_d16_hi v218, v221 offset:96
        {lk}:
        """)
        stamp(a, "c_kg")
    else:
        kaddr_setup(a)
        a("s_waitcnt vmcnt(0) lgkmcnt(0)")
        stamp(a, "c_par")
        if O.kstream: kgen_valu(a, scalar=False, stream=True)
        else:
            kgen_valu(a, scalar=False); stamp(a, "c_k1"); kgen_ds(a, kacc=AKACC)
        stamp(a, "c_kv")
        kgen_exchange(a, kacc=AKACC, ef=AEF, bar=True)
        stamp(a, "c_kg")
    a("v_lshlrev_b32 v16, 4, v1\nv_mov_b32 v17, v44")
    def reads(b, sp):
        out = [f"ds_read_b128 {vr(FB(b,nt))}, v{VB+sp} offset:{nt*2048}" for nt in range(4)]
        for t in range(4):
            for mat in range(2):
                for rho in range(2):
                    d = FA(b,t,mat)+2*rho
                    out.append(f"ds_read_b64_tr_b16 v[{d}:{d+1}], v{VA+t} offset:{rho*2048+mat*1024}")
        return out
    def advW():
        return [f"s_add_u32 s44, s44, 1", f"s_cmp_eq_u32 s44, {NW}", f"s_cselect_b32 s46, {-(NW-1)*SLOT & 0xffffffff}, s52", f"s_cselect_b32 s44, 0, s44"] + \
               [f"v_add_u32 v{VA+t}, s46, v{VA+t}" for t in range(4)]
    def advX():
        return [f"s_add_u32 s45, s45, 2", f"s_cmp_ge_u32 s45, 7", f"s_cselect_b32 s47, {-5*HS & 0xffffffff}, s52", f"s_cselect_b32 s49, 7, 0", "s_sub_u32 s45, s45, s49"] + \
               [f"v_add_u32 v{VB+k}, s47, v{VB+k}" for k in range(2)]
    def mfma(b, t, mat, nt, first=False):
        c = acc(t,mat,nt)
        return f"v_mfma_f32_16x16x32_bf16 {vr(c)}, {vr(FA(b,t,mat))}, {vr(FB(b,nt))}, {0 if first else vr(c)}"
    def stage(b, rd, late, post=(), first=False):
        ms = [mfma(b,t,mat,nt,first) for t in range(4) for mat in range(2) for nt in range(4)]
        late = list(late); post = list(post)
        for i, m in enumerate(ms):
            a(m)
            if i < len(rd): a(rd[i])
            elif i < 27 and late:
                for _ in range(3 if len(late) > 2*(27-i) else 2):
                    if late: a(late.pop(0))
            if i == 27: a("s_waitcnt lgkmcnt(0)\ns_barrier")
            if i >= 27:
                for _ in range(2):
                    if post: a(post.pop(0))
        assert not late and not post
    a("s_waitcnt vmcnt(0) lgkmcnt(0)\ns_barrier")
    stamp(a, "c_b0")
    for r in reads(0, 0): a(r)
    for x in advW(): a(x)
    a("s_waitcnt lgkmcnt(0)\ns_barrier")
    a("s_mov_b32 s48, 7")
    lp = a.label("g1loop"); lm = a.label("g1mid")
    stage(0, reads(1, 1), advW() + advX(), first=True)
    a(f"s_branch {lm}\n{lp}:")
    stage(0, reads(1, 1), advW() + advX())
    a(f"{lm}:")
    stage(1, reads(0, 0), advW())
    a(f"s_sub_u32 s48, s48, 1\ns_cmp_lg_u32 s48, 0\ns_cbranch_scc1 {lp}")
    NM = 20
    csr = lambda t, mat: f"ds_read_b128 {vr(FA(0,t,mat))}, v14 offset:{mat*512+t*64}"
    post = [f"ds_read_b128 {vr(NM)}, v17"] + [csr(t, mat) for t in range(3) for mat in range(2)]
    stage(0, reads(1, 1), [], post)
    stamp(a, "c_s15")
    a(csr(3,0)); a(csr(3,1))
    def corr_s(ksl, nt):
        return [f"v_fmac_f32 v{acc(t,mat,nt)+r}, v{FA(0,t,mat)+r}, v{NM+nt}" for t in (2*ksl, 2*ksl+1) for mat in range(2) for r in range(4)]
    def corr(ksl, nt):
        if not O.epk: return corr_s(ksl, nt)
        o = []
        for t in (2*ksl, 2*ksl+1):
            for mat in range(2):
                for hf in range(2):
                    c = acc(t,mat,nt)+2*hf; cs = FA(0,t,mat)+2*hf; nm = NM + (nt & ~1); sel = nt & 1
                    o.append(f"v_pk_fma_f32 {pr(c)}, {pr(cs)}, {pr(nm)}, {pr(c)} op_sel:[0,{sel},0] op_sel_hi:[1,{sel},1]")
        return o
    def fin(ksl, nt):
        o = []
        for t in (2*ksl, 2*ksl+1):
            for hf in range(2):
                g = acc(t,0,nt)+2*hf; u = acc(t,1,nt)+2*hf
                if O.epk: o.append(f"v_pk_mul_f32 {pr(g)}, {pr(g)}, {pr(u)}")
                else: o += [f"v_mul_f32 v{g}, v{g}, v{u}", f"v_mul_f32 v{g+1}, v{g+1}, v{u+1}"]
        d = acc(2*ksl,1,nt); k = 0
        for t in (2*ksl, 2*ksl+1):
            for hf in range(2):
                g = acc(t,0,nt)+2*hf
                o.append(f"v_cvt_pk_bf16_f32 v{d+k}, v{g}, v{g+1}"); k += 1
        o.append(f"buffer_store_dwordx4 {vr(d)}, v16, {sr(S_WS)}, s{50+ksl} offen offset:{nt*1024} sc1")
        return o
    groups = [(ksl, nt) for ksl in range(2) for nt in range(4)]
    pre = set()
    for gi, (ksl, nt) in enumerate(groups):
        fill = []
        if gi == 1: a("s_waitcnt lgkmcnt(0)")
        if O.shadow == 4:
            if 1 <= gi <= 6: fill = corr_s(*groups[gi+1]); pre.add(gi+1)
            if gi == 7: fill = corr_s(*groups[0]); pre.add(0)
        elif O.shadow == 2:
            tgt = {1:3, 2:3, 3:5, 4:5, 5:7, 6:7}
            if gi in tgt:
                c = corr_s(*groups[tgt[gi]]); fill = c[:8] if gi % 2 else c[8:]; pre.add(tgt[gi])
        n = len(fill)//4
        for k, m in enumerate([mfma(1, t, mat, nt) for t in (2*ksl, 2*ksl+1) for mat in range(2)]):
            a(m)
            for x in fill[n*k:n*k+n]: a(x)
    for gi in range(8):
        if gi not in pre:
            for x in corr(*groups[gi]): a(x)
        for x in fin(*groups[gi]): a(x)
    stamp(a, "c_end")

LA = LC
VX, VO = 9, 10
XF = 24; RS = 28
def tail_setup(a, vm):
    a(f"""
    v_lshrrev_b32 v2, 3, v0
    v_lshlrev_b32 v{VX}, 10, v2
    v_and_b32 v3, 7, v0
    v_lshl_add_u32 v{VX}, v3, 4, v{VX}
    s_lshl_b32 s55, s53, 16
    s_lshl_b32 s50, s54, 7
    s_add_u32 s55, s55, s50
    v_mul_u32_u24 v{VO}, {PP}, v2
    v_lshl_add_u32 v{VO}, v3, 5, v{VO}
    v_add_u32 v{VO}, {LA}, v{VO}
    v_and_b32 v4, 15, v2
    v_lshlrev_b32 v3, 1, v3
    v_xor_b32 v3, v3, v4
    v_lshlrev_b32 v3, 4, v3
    v_lshl_add_u32 v3, v4, 8, v3
    v_lshrrev_b32 v4, 4, v2
    v_lshl_add_u32 v14, v4, 14, v3
    v_xor_b32 v15, 16, v14
    v_lshlrev_b32 v2, 3, v2
    s_lshl_b32 s50, s53, 9
    s_add_u32 s50, s50, {ST_G}
    """)
    for t, tag in ((f"buffer_load_dwordx4 {vr(XF)}, v{VX}, {sr(S_X)}, s55 offen", "x"), (f"buffer_load_dwordx2 {pr(RS)}, v2, {sr(S_WS)}, s50 offen sc1", "rs")):
        if vm: vm.issue(t, tag)
        else: a(t)

def prod_tail(a):
    a(f"""
    F_ptail:
    s_mov_b64 exec, 1
    ds_add_u32 v{VCN}, v{VONE} offset:{C_PS}
    s_mov_b64 exec, -1
    v_lshlrev_b32 v12, 4, v1
    v_lshlrev_b32 v13, 2, v1
    s_lshl_b32 s42, s53, 3
    s_add_u32 s42, s42, s54
    s_mul_i32 s42, s42, {ATP}
    s_lshl_b32 s41, s56, 11
    s_add_u32 s42, s42, s41
    s_add_u32 s42, s42, {AT_OFF}
    s_lshr_b32 s46, s53, 4
    s_lshl_b32 s46, s46, 3
    s_add_u32 s46, s46, s54
    s_lshl_b32 s46, s46, 2
    s_add_u32 s46, s46, s56
    s_mul_i32 s46, s46, {AFS}
    s_add_u32 s46, s46, {AF_OFF}
    v_and_b32 v16, 7, v1
    v_mul_u32_u24 v18, {2*PP}, v16
    v_lshrrev_b32 v16, 3, v1
    v_lshl_add_u32 v18, v16, 2, v18
    s_lshl_b32 s49, s56, 6
    s_add_u32 s49, s49, {LA}
    v_add_u32 v18, s49, v18
    v_mov_b32 v5, s{S_TAG}
    v_mov_b32 v4, 0
    s_waitcnt vmcnt(0)
    s_mov_b64 exec, 1
    buffer_store_dword v5, v4, {sr(S_WS)}, s{S_FO} offen sc1
    s_mov_b64 exec, -1
    """)
    stamp(a, 'a_st0')
    AG = 96; AU = 112
    lds_wait(a, VCN, C_PS, 8, 3)
    lds_wait(a, VCN, 52, 4, 3, sleep=4)
    tail_setup(a, None)
    poll(a, 5, 13, S_WS, "s46", 0xffff, f"s{S_TAG}", sleep=O.asleep)
    stamp(a, "hflag")
    for k in range(2): a(f"buffer_load_dwordx4 {vr(AG+4*k)}, v12, {sr(S_WS)}, s42 offen offset:{1024*k} sc1")
    for k in range(2):
        a(f"s_waitcnt vmcnt({1-k})")
        for j in range(4):
            a(f"v_lshlrev_b32 v{AU+8*k+2*j}, 16, v{AG+4*k+j}\nv_and_b32 v{AU+8*k+2*j+1}, 0xffff0000, v{AG+4*k+j}")
        for e in range(8): a(f"ds_write_b32 v18, v{AU+8*k+e} offset:{(16*(e&3) + (e>>2))*PP + 32*k}")
    lr = a.label("rsr"); lo = a.label("rso")
    a(f"""
    v_readlane_b32 s41, v{VT}, s53
    s_mov_b32 s58, {POLL_MAX}
    {lr}:
    s_waitcnt vmcnt(0)
    v_cmp_ne_u32 vcc, s41, v{RS+1}
    s_cbranch_vccz {lo}
    buffer_load_dwordx2 {pr(RS)}, v2, {sr(S_WS)}, s50 offen sc1
    s_sub_u32 s58, s58, 1
    s_cmp_lg_u32 s58, 0
    s_cbranch_scc1 {lr}
    {lo}:
    """)
    stamp(a, "g2_end")
    a("s_branch F_fin")

def gemm2(a):
    VA, VP, V3 = 16, 20, 12
    V3 = 28
    VH, VQ, VW2 = 8, 13, 12
    AC = 144
    R = NRG
    a(f"""
    F_g2:
    s_setprio 3
    v_mov_b32 v{VCN}, {CNT}
    v_lshrrev_b32 v4, 4, v1                     ; g
    v_bfe_u32 v2, v1, 3, 1
    v_and_b32 v3, 1, v4
    v_lshl_or_b32 v3, v3, 1, v2
    v_lshlrev_b32 v3, 5, v3
    v_and_b32 v4, 3, v1
    v_lshl_add_u32 v3, v4, 3, v3
    v_lshrrev_b32 v4, 2, v1
    v_lshl_add_u32 v3, v4, 7, v3
    s_lshl_b32 s52, s{S_WAVE}, 12
    v_add_u32 v{VA}, s52, v3
    v_xor_b32 v{VA+1}, 32, v{VA}
    v_xor_b32 v{VA+2}, 64, v{VA}
    v_xor_b32 v{VA+3}, 96, v{VA}
    """)
    for t in range(4): a(f"v_add_u32 v{VP+t}, 0x18000, v{VA+t}\nv_add_u32 v{V3+t}, 0x8000, v{VA+t}")
    wd_voff(a)
    lf = a.label("nofl")
    a(f"""
    s_lshl_b32 s41, s{S_WAVE}, 2
    v_add_u32 v7, s41, v{VCN}
    s_mul_i32 s86, s{S_WAVE}, {14*32*1024}
    s_lshl_b32 s41, s54, 7
    s_add_u32 s86, s86, s41
    s_add_u32 s87, s86, {14*32768}
    {rotc(44)}
    s_add_u32 s51, s44, {R-1}
    s_cmp_ge_u32 s51, 14
    s_cselect_b32 s41, 14, 0
    s_sub_u32 s51, s51, s41
    s_lshl_b32 s51, s51, 15
    s_add_u32 s51, s51, s86
    v_add_u32 v{VW2}, {8192-1024}, v{VWD}
    v_lshlrev_b32 v{VH}, 4, v1
    v_lshlrev_b32 v{VQ}, 2, v1
    s_lshl_b32 s47, s53, 2
    s_add_u32 s47, s47, s{S_WAVE}
    s_mul_i32 s47, s47, {HFS}
    s_add_u32 s47, s47, {HF_OFF}
    s_mul_i32 s45, s53, 56
    s_mul_i32 s48, s{S_WAVE}, 14
    s_add_u32 s45, s45, s48
    s_lshl_b32 s88, s45, 12
    s_add_u32 s89, s88, {14*4096}
    s_lshl_b32 s45, s44, 12
    s_add_u32 s45, s45, s88
    """)
    lds_wait(a, 7, C_PAIR, 1, 2)
    stamp(a, "g2a")
    def wread(reg, slot):
        base = WSLOT[slot]; o = []
        for t in range(4):
            for rho in range(2):
                off = base + rho*2048
                if off >= XR: v, off = VP+t, off - 0x18000
                elif off >= 65536 - 4096: v, off = V3+t, off - 0x8000
                else: v = VA+t
                o.append(f"ds_read_b64_tr_b16 v[{reg+4*t+2*rho}:{reg+4*t+2*rho+1}], v{v} offset:{off}")
        return o
    vm = VM(a)
    def wdma(step):
        k = step % 7
        if O.nob: return
        for hh in range(2):
            a((WADV if hh == 0 else "") + f"s_add_u32 m0, s52, {WSLOT[k] + hh*2048}\ns_add_u32 s49, s51, {hh*16384}")
            vm.issue(f"buffer_load_dwordx4 v{VWD}, {sr(S_WD)}, s49 offen lds", ("w", step))
            vm.issue(f"buffer_load_dwordx4 v{VW2}, {sr(S_WD)}, s49 offen offset:1024 lds", ("w", step))
    blocks = [32+16*i for i in range(7)] + [208, 224, 240]
    wreg = {s: blocks[s] for s in range(R)}
    free = blocks[R:]
    a(f"ds_read_b32 v5, v{VCN} offset:{C_TAG}")
    for s in range(R):
        for x in wread(wreg[s], s): a(x)
    a(f"s_waitcnt lgkmcnt(0)\nv_readfirstlane_b32 s{S_TAG}, v5")
    lf2 = a.label("nofl2")
    stamp(a, 'g2r')
    a(f"""
    s_cmp_eq_u64 s[{S_FM}:{S_FM+1}], 0
    s_cbranch_scc1 {lf2}
    s_waitcnt vmcnt({len(vm.ops)})
    s_mov_b64 exec, 1
    buffer_store_dword v5, v{VFL}, {sr(S_WS)}, s{S_FO} offen sc1
    s_mov_b64 exec, -1
    {lf2}:
    """)
    stamp(a, "flag")
    for s in range(R, R+O.wb1): wdma(s)
    a("s_mov_b64 exec, 0x7f")
    vm.issue(f"buffer_load_dword v2, v{VQ}, {sr(S_WS)}, s47 offen sc1", "hp")
    a("s_mov_b64 exec, -1")
    for s in range(R+O.wb1, 7+R): wdma(s)
    stamp(a, 'g2e')
    vm.wait("hp")
    lo = a.label("hok")
    a(f"s_mov_b64 exec, 0x7f\nv_cmp_ne_u32 vcc, s{S_TAG}, v2\ns_mov_b64 exec, -1\ns_cbranch_vccz {lo}")
    poll(a, 2, VQ, S_WS, "s47", 0x7f, f"s{S_TAG}")
    a(f"{lo}:")
    stamp(a, "hflag")
    hreg = {}; hn = [0]; pend = []
    def hqueue(keep=0):
        while hn[0] < 14 and len(free) > keep:
            step = hn[0]; hreg[step] = free.pop(0); hn[0] += 1
            for j in range(4):
                pre = "s_add_u32 s45, s45, 4096\ns_cmp_eq_u32 s45, s89\ns_cselect_b32 s45, s88, s45" if (step and j == 0) else ""
                pend.append((pre, f"buffer_load_dwordx4 {vr(hreg[step]+4*j)}, v{VH}, {sr(S_WS)}, s45 offen offset:{j*1024} {O.hpol}", ("h", step)))
    def pop():
        if pend:
            p = pend.pop(0); a(p[0]); vm.issue(p[1], p[2])
    hqueue()
    while pend: pop()
    a(f"s_setprio {O.g2prio}")
    for s in range(14):
        nxt = []
        if R <= s+1 <= 13:
            wreg[s+1] = free.pop(0)
            while any(p[2] == ("w", s+1) for p in pend): pop()
            if ("w", s+1) in vm.ops: vm.wait(("w", s+1))
            nxt = wread(wreg[s+1], (s+1) % 7)
        while any(p[2] == ("h", s) for p in pend): pop()
        vm.wait(("h", s), "lgkmcnt(0)" if s >= R else "")
        if s == 0: stamp(a, "h0")
        stamp(a, f"hs{s}")
        if R <= s and s+7 <= 13:
            k_ = (s+7) % 7; q_ = []
            for hh in range(2):
                q_.append(((WADV if hh == 0 else "") + f"s_add_u32 m0, s52, {WSLOT[k_] + hh*2048}\ns_add_u32 s49, s51, {hh*16384}", f"buffer_load_dwordx4 v{VWD}, {sr(S_WD)}, s49 offen lds", ("w", s+7)))
                q_.append(("", f"buffer_load_dwordx4 v{VW2}, {sr(S_WD)}, s49 offen offset:1024 lds", ("w", s+7)))
            pend += q_
        if s == 12:
            nxt += [f"v_and_b32 v2, 15, v1\nv_lshrrev_b32 v3, 4, v1", f"v_xor_b32 v3, v3, v2\nv_lshlrev_b32 v3, 4, v3", f"v_lshl_add_u32 v3, v2, 8, v3\nv_add_u32 v{VA}, s52, v3",
                    f"v_xor_b32 v{VA+1}, 64, v{VA}\nv_xor_b32 v{VA+2}, 128, v{VA}", f"v_xor_b32 v{VA+3}, 192, v{VA}"]
        if s == 13:
            wr_ = [f"ds_write_b128 v{VA+t}, {vr(AC+16*t+4*j)} offset:{j*SLOT}" for t in range(4) for j in range(4)]
            nxt = ["s_nop 0"]*5 + wr_[:11]
        k = 0
        for t in range(4):
            for j in range(4):
                c = AC + 16*t + 4*j
                a(f"v_mfma_f32_16x16x32_bf16 {vr(c)}, {vr(wreg[s]+4*t)}, {vr(hreg[s]+4*j)}, {0 if s == 0 else vr(c)}")
                if nxt: a(nxt.pop(0))
                if k % O.hgap == 0: pop()
                k += 1
        free.append(wreg[s]); free.append(hreg[s])
        hqueue(1 if R <= s+2 <= 13 else 0)
        if s == 10: tail_setup(a, vm)
        if s == O.go_at: a(f"v_mov_b32 v7, 1"); lds_signal(a, VCN, 52, 7)
    stamp(a, "g2_end")
    a(wr_[11]); a("s_nop 0"); a(wr_[12]); a("s_nop 0"); a(wr_[13]); a("s_nop 0"); a(wr_[14]); a("s_nop 0"); a(wr_[15])
    HF = 32
    a(f"""
    F_fin:
    s_waitcnt vmcnt(0)
    v_and_b32 v{RS}, 0xffff0000, v{RS}
    v_rcp_f32 v{RS+1}, v{RS}
    s_nop 0
    v_fma_f32 v{RS+2}, -v{RS}, v{RS+1}, 1.0
    v_fma_f32 v{RS+1}, v{RS+2}, v{RS+1}, v{RS+1}
    v_mul_f32 v{RS}, v{RS+1}, v{RS+1}
    """)
    for k in range(4): a(f"v_lshlrev_b32 v{HF+40+2*k}, 16, v{XF+k}\nv_and_b32 v{HF+40+2*k+1}, 0xffff0000, v{XF+k}")
    a("s_waitcnt lgkmcnt(0)")
    stamp(a, "t_pre")
    a("s_barrier")
    stamp(a, "t_bar")
    for q in range(4):
        for hf in range(2): a(f"ds_read_b128 {vr(HF+8*q+4*hf)}, v{14+hf} offset:{q*4096}")
    for hf in range(2): a(f"ds_read_b128 {vr(HF+32+4*hf)}, v{VO} offset:{16*hf}")
    for q in range(1, 4):
        a(f"s_waitcnt lgkmcnt({8-2*q})")
        for k in range(4): a(f"v_pk_add_f32 {pr(HF+2*k)}, {pr(HF+2*k)}, {pr(HF+8*q+2*k)}")
    for k in range(4): a(f"v_pk_fma_f32 {pr(HF+2*k)}, {pr(HF+2*k)}, {pr(RS)}, {pr(HF+40+2*k)} op_sel_hi:[1,0,1]")
    a("s_waitcnt lgkmcnt(0)")
    for k in range(4): a(f"v_pk_add_f32 {pr(HF+2*k)}, {pr(HF+2*k)}, {pr(HF+32+2*k)}")
    for k in range(4): a(f"v_cvt_pk_bf16_f32 v{XF+k}, v{HF+2*k}, v{HF+2*k+1}")
    a(f"buffer_store_dwordx4 {vr(XF)}, v{VX}, {sr(S_OUT)}, s55 offen {O.opol}")
    stamp(a, "end")

def treduce16(a, R, T):
    for i in range(8): a(f"v_permlane32_swap_b32 v{R[i]}, v{R[i+8]}")
    for i in range(8): a(f"v_add_f32 v{R[i]}, v{R[i]}, v{R[i+8]}")
    for i in range(4): a(f"v_permlane16_swap_b32 v{R[i]}, v{R[i+4]}")
    for i in range(4): a(f"v_add_f32 v{R[i]}, v{R[i]}, v{R[i+4]}")
    a("s_nop 0")
    for i in range(2): a(f"v_add_f32_dpp v{T+i}, v{R[i]}, v{R[i]} row_ror:8 row_mask:0xf bank_mask:0x3")
    a("s_nop 0")
    for i in range(2): a(f"v_add_f32_dpp v{T+i}, v{R[i+2]}, v{R[i+2]} row_ror:8 row_mask:0xf bank_mask:0xc")
    a("s_nop 0")
    a(f"v_add_f32_dpp v{R[0]}, v{T}, v{T} row_half_mirror row_mask:0xf bank_mask:0x5")
    a("s_nop 1")
    a(f"v_add_f32_dpp v{R[0]}, v{T+1}, v{T+1} row_half_mirror row_mask:0xf bank_mask:0xa")
    a("s_nop 1")
    a(f"v_add_f32_dpp v{R[0]}, v{R[0]}, v{R[0]} quad_perm:[1,0,3,2] row_mask:0xf bank_mask:0xf")
    a("s_nop 1")
    a(f"v_add_f32_dpp v{R[0]}, v{R[0]}, v{R[0]} quad_perm:[2,3,0,1] row_mask:0xf bank_mask:0xf")
    return lambda row: 4*row

def treduce8(a, R, T):
    for i in range(4): a(f"v_permlane32_swap_b32 v{R[i]}, v{R[i+4]}")
    for i in range(4): a(f"v_add_f32 v{R[i]}, v{R[i]}, v{R[i+4]}")
    a("s_nop 0")
    for i in range(2): a(f"v_permlane16_swap_b32 v{R[i]}, v{R[i+2]}")
    for i in range(2): a(f"v_add_f32 v{R[i]}, v{R[i]}, v{R[i+2]}")
    a("s_nop 0")
    a(f"v_add_f32_dpp v{T}, v{R[0]}, v{R[0]} row_ror:8 row_mask:0xf bank_mask:0x3")
    a(f"v_add_f32_dpp v{T}, v{R[1]}, v{R[1]} row_ror:8 row_mask:0xf bank_mask:0xc")
    a("s_nop 1")
    a(f"v_add_f32_dpp v{R[0]}, v{T}, v{T} row_half_mirror row_mask:0xf bank_mask:0xf")
    a("s_nop 1")
    a(f"v_add_f32_dpp v{R[0]}, v{R[0]}, v{R[0]} quad_perm:[1,0,3,2] row_mask:0xf bank_mask:0xf")
    a("s_nop 1")
    a(f"v_add_f32_dpp v{R[0]}, v{R[0]}, v{R[0]} quad_perm:[2,3,0,1] row_mask:0xf bank_mask:0xf")
    return lambda row: 8*row

def aux_role(a):
    S_OT = 61; GR = 12
    a(f"""
    s_memrealtime s[40:41]
    v_mov_b32 v{VCN}, {CNT}
    v_mov_b32 v{VONE}, 1
    v_mov_b32 v15, 0
    s_setprio 0
    s_cmp_ge_u32 s{S_WAVE}, 4
    s_cbranch_scc1 F_aux2
    s_setprio 2
    """)
    X = 16; F = 80; SUM = 208; T = 224
    a(f"""
    v_lshlrev_b32 v2, 4, v1
    s_lshl_b32 s44, s2, 6
    s_lshl_b32 s45, s{S_WAVE}, 4
    s_add_u32 s44, s44, s45
    s_lshl_b32 s42, s44, 10
    s_waitcnt lgkmcnt(0)
    """)
    for i in range(16):
        a(f"buffer_load_dwordx4 {vr(X+4*i)}, v2, {sr(S_X)}, s42 offen offset:{(i%4)*1024}")
        if i % 4 == 3 and i < 15: a("s_add_u32 s42, s42, 4096")
    late_loads(a)
    a(f"""
    s_lshl_b32 s46, s{S_WAVE}, 1
    v_and_b32 v9, 7, v1
    v_xor_b32 v9, s46, v9
    v_lshlrev_b32 v9, 4, v9
    v_lshl_add_u32 v9, v1, 10, v9
    v_xor_b32 v10, 16, v9
    s_barrier
    ds_read_b32 v{GR+1}, v{VCN} offset:256
    """)
    for i in range(16):
        a(f"s_waitcnt vmcnt({15-i})")
        if i == 0: stamp(a, "a_x")
        for j in range(4):
            a(f"v_lshlrev_b32 v{F+8*i+2*j}, 16, v{X+4*i+j}\nv_and_b32 v{F+8*i+2*j+1}, 0xffff0000, v{X+4*i+j}")
        a(f"v_pk_add_f32 {pr(T)}, {pr(F+8*i)}, {pr(F+8*i+2)}")
        a(f"v_pk_add_f32 {pr(T+2)}, {pr(F+8*i+4)}, {pr(F+8*i+6)}")
        a(f"v_pk_add_f32 {pr(T)}, {pr(T)}, {pr(T+2)}")
        a(f"v_add_f32 v{SUM+i}, v{T}, v{T+1}")
    R = [SUM+i for i in range(16)]
    ln = treduce16(a, R, T)
    a(f"""
    v_mul_f32 v{T}, 0x3b000000, v{SUM}
    v_cvt_pk_bf16_f32 v{T+4}, v{T}, v{T}
    v_and_b32 v{T+4}, 0xffff0000, v{T+4}
    v_sub_f32 v{T+5}, v{T}, v{T+4}
    """)
    for i in range(16): a(f"v_readlane_b32 s{76+i}, v{T+4}, {ln(i)}")
    def sb(i): return f"s[{76+(i&~1)}:{77+(i&~1)}] op_sel:[0,{i&1}] op_sel_hi:[1,{i&1}]"
    for i in range(16):
        for j in range(0, 8, 2): a(f"v_pk_add_f32 {pr(F+8*i+j)}, {pr(F+8*i+j)}, {sb(i)} neg_lo:[0,1] neg_hi:[0,1]")
        a(f"v_pk_mul_f32 {pr(T)}, {pr(F+8*i)}, {pr(F+8*i)}")
        for j in (2,4,6): a(f"v_pk_fma_f32 {pr(T)}, {pr(F+8*i+j)}, {pr(F+8*i+j)}, {pr(T)}")
        a(f"v_add_f32 v{SUM+i}, v{T}, v{T+1}")
    treduce16(a, R, T)
    a(f"""
    v_mul_f32 v{T+6}, 0x3b000000, v{SUM}
    v_fma_f32 v{T+6}, -v{T+5}, v{T+5}, v{T+6}
    v_max_f32 v{T+6}, 0, v{T+6}
    v_cvt_pk_bf16_f32 v{T+6}, v{T+6}, v{T+6}
    v_and_b32 v{T+6}, 0xffff0000, v{T+6}
    v_add_f32 v{T+6}, 0x3727c5ac, v{T+6}
    v_cvt_pk_bf16_f32 v{T+6}, v{T+6}, v{T+6}
    v_and_b32 v{T+6}, 0xffff0000, v{T+6}
    v_sqrt_f32 v{T+6}, v{T+6}
    v_lshlrev_b32 v5, 1, v1
    v_cvt_pk_bf16_f32 v{GR}, v{T+4}, v{T+6}
    s_lshl_b32 s46, s44, 3
    s_add_u32 s46, s46, {ST_G}
    s_mov_b32 exec_lo, 0x11111111
    s_mov_b32 exec_hi, 0x11111111
    s_waitcnt lgkmcnt(0)
    buffer_store_dwordx2 {pr(GR)}, v5, {sr(S_WS)}, s46 offen sc1
    s_mov_b64 exec, -1
    v_and_b32 v{T+6}, 0xffff0000, v{GR}
    v_rcp_f32 v{T+7}, v{T+6}
    s_nop 0
    v_fma_f32 v{T+5}, -v{T+6}, v{T+7}, 1.0
    v_fma_f32 v{T+7}, v{T+5}, v{T+7}, v{T+7}
    s_nop 0
    """)
    stamp(a, "a_st")
    for i in range(16): a(f"v_readlane_b32 s{76+i}, v{T+7}, {ln(i)}")
    for oo in range(2):
        for i in range(8*oo, 8*oo+8):
            for j in range(0, 8, 2): a(f"v_pk_mul_f32 {pr(F+8*i+j)}, {pr(F+8*i+j)}, {sb(i)}")
        for c in range(8):
            d = X + 32*oo + 4*c
            for k in range(4): a(f"v_cvt_pk_bf16_f32 v{d+k}, v{F+8*(8*oo+2*k)+c}, v{F+8*(8*oo+2*k+1)+c}")
            a(f"ds_write_b128 v{9+oo}, {vr(d)} offset:{c*128}")
    lds_signal(a, VCN, C_LN, VONE)
    TT = 232; FF = 128
    a(f"""
    s_mov_b64 s[{S_FM}:{S_FM+1}], 0
    v_lshlrev_b32 v4, 4, v1
    s_lshl_b32 s46, s{S_WAVE}, 14
    v_add_u32 v2, s46, v4
    s_mul_i32 s47, s2, {XQ}
    s_add_u32 s46, s46, s47
    s_add_u32 s46, s46, {XNT_OFF}
    """)
    for tt in range(8): a(f"v_xor_b32 v{TT+tt}, {tt<<4}, v2")
    lds_wait(a, VCN, C_LN, 4, 3)
    stamp(a, "a_bar")
    for tt in range(16): a(f"ds_read_b128 {vr(FF+4*tt)}, v{TT+tt%8} offset:{tt*1024}")
    a("s_waitcnt lgkmcnt(0)")
    lds_signal(a, VCN, C_A, VONE)
    for tt in range(16):
        a(f"buffer_store_dwordx4 {vr(FF+4*tt)}, v4, {sr(S_WS)}, s46 offen offset:{(tt%4)*1024} sc1")
        if tt % 4 == 3 and tt < 15: a("s_add_u32 s46, s46, 0x1000")
    a(f"""
    s_lshl_b32 s46, s{S_WAVE}, 7
    s_lshl_b32 s47, s2, 2
    s_add_u32 s46, s46, s47
    s_add_u32 s46, s46, {XF_OFF}
    s_waitcnt vmcnt(0)
    s_mov_b64 exec, 1
    buffer_store_dword v{GR+1}, v15, {sr(S_WS)}, s46 offen sc1
    s_mov_b64 exec, -1
    """)
    stamp(a, "a_end")
    a("s_branch F_g2")
    WR = list(range(192, 256, 4)); SEL = 8; CS = 188
    lt = a.label("atag")
    a(f"""
    F_aux2:
    s_lshr_b32 s46, s2, 1
    s_cmp_ge_u32 s46, 7
    s_cselect_b32 s47, 7, 0
    s_cselect_b32 s{S_WG}, s{S_WU}, s{S_WG}
    s_cselect_b32 s{S_WG+1}, s{S_WU+1}, s{S_WG+1}
    s_cselect_b32 s6, 1, 0
    s_sub_u32 s46, s46, s47
    s_and_b32 s48, s2, 1
    s_mul_i32 s48, s48, 7
    s_add_u32 s7, s46, s48
    s_lshl_b32 s45, s7, 8
    s_mul_i32 s46, s56, {128*3584}
    s_add_u32 s45, s45, s46
    s_cmp_ge_u32 s2, 28
    s_cselect_b32 s{S_WG+2}, 0, s{S_WG+2}
    v_lshrrev_b32 v3, 4, v1
    v_mul_u32_u24 v3, 3584, v3
    v_and_b32 v4, 15, v1
    v_lshl_add_u32 v8, v4, 4, v3
    s_waitcnt lgkmcnt(0)
    s_or_b32 s{S_OT}, s40, 1
    """)
    late_loads(a)
    a(f"""
    s_cmp_lg_u32 s56, 0
    s_cbranch_scc1 {lt}
    v_mov_b32 v5, s{S_OT}
    ds_write_b32 v{VCN}, v5 offset:256
    s_lshl_b32 s40, s2, 2
    s_mov_b64 exec, 1
    buffer_store_dword v5, v15, {sr(S_DBG)}, s40 offen sc1
    s_mov_b64 exec, -1
    """)
    cnt_init(a)
    a(f"{lt}:\ns_waitcnt lgkmcnt(0)\ns_barrier\nds_read_b32 v{GR+1}, v{VCN} offset:256")
    vm = VM(a); vm.ops = ["par"]*4
    WR = list(range(128, 256, 4)); SEL = KW+64; CS = KW+68
    for i in range(32):
        vm.issue(f"buffer_load_dwordx4 {vr(WR[i])}, v8, {sr(S_WG)}, s45 offen", ("w", i))
        if i < 31: a(f"s_add_u32 s45, s45, {4*3584}")
    a(f"""
    v_and_b32 v3, 1, v1
    v_lshlrev_b32 v3, 4, v3
    v_mov_b32 v4, 0x3f80
    v_lshlrev_b32 v3, v3, v4
    v_bfe_u32 v4, v1, 1, 3
    """)
    for k in range(4): a(f"v_cmp_eq_u32 s[{78+2*k}:{79+2*k}], {k}, v4")
    for k in range(4): a(f"v_cndmask_b32 v{SEL+k}, 0, v3, s[{78+2*k}:{79+2*k}]")
    a(f"""
    v_and_b32 v4, 15, v1
    v_lshlrev_b32 v4, 5, v4
    v_bfe_u32 v5, v1, 4, 1
    v_lshl_add_u32 v4, v5, 4, v4
    s_lshl_b32 s46, s56, 9
    s_add_u32 s46, s46, {LU}
    v_add_u32 v10, s46, v4
    """)
    for i in range(32):
        vm.wait(("w", i))
        a(f"v_mfma_f32_16x16x32_bf16 {vr(CS)}, {vr(SEL)}, {vr(WR[i])}, {vr(CS) if i else 0}")
    a(f"s_mov_b32 exec_hi, 0\ns_nop 6\nds_write_b128 v10, {vr(CS)}\ns_mov_b64 exec, -1")
    lds_signal(a, VCN, C_ST, VONE)
    l4 = a.label("nocs")
    a(f"s_cmp_ge_u32 s2, 28\ns_cbranch_scc1 {l4}\ns_cmp_ge_u32 s56, 2\ns_cbranch_scc1 {l4}")
    lds_wait(a, VCN, C_ST, 4, 2)
    a(f"""
    v_and_b32 v3, 127, v0
    v_lshlrev_b32 v5, 2, v3
    v_add_u32 v5, {LU}, v5
    ds_read2st64_b32 v[192:193], v5 offset0:0 offset1:2
    ds_read2st64_b32 v[194:195], v5 offset0:4 offset1:6
    v_lshlrev_b32 v3, 3, v3
    s_mul_i32 s47, s6, 14
    s_add_u32 s47, s47, s7
    s_lshl_b32 s47, s47, 10
    s_add_u32 s47, s47, {CS_G}
    s_waitcnt lgkmcnt(0)
    v_pk_add_f32 v[192:193], v[192:193], v[194:195]
    v_add_f32 v{GR}, v192, v193
    buffer_store_dwordx2 {pr(GR)}, v3, {sr(S_WS)}, s47 offen sc1
    {l4}:
    """)
    stamp(a, "a_cs")
    kaddr_setup(a)
    prod_setup(a)
    a(f"buffer_load_dword v{VT}, v14, {sr(S_DBG)}, 0 offen sc1\ns_waitcnt lgkmcnt(0)")
    kgen_valu(a, scalar=False, stream=True)
    stamp(a, "a_kg")
    kgen_exchange(a, kacc=AKACC, ef=AEF)
    lds_signal(a, VCN, C_KX, VONE)
    lds_wait(a, VCN, C_KX, 4, 2)
    expand_gather(a)
    tails_prep(a)
    a.lines += expand_writes()
    lds_signal(a, VCN, C_A, VONE)
    a("s_waitcnt vmcnt(0)")
    tags_check(a)
    stamp(a, "a_ex")
    lds_wait(a, VCN, C_A, 8, 2)
    for k in range(NRG):
        for u in wdA_units(k): a(u[0]); a(u[1])
    xf_addr(a, 41)
    poll(a, XFL, 14, S_WS, "s41", -1, f"v{VT}")
    u_loads(a, None)
    conv_setup(a)
    a(f"s_lshl_b32 s41, s56, 2\nv_add_u32 v3, s41, v{VCN}\ns_waitcnt vmcnt(0)\nds_write_b32 v3, v{VONE} offset:{C_PAIR}")
    a("s_mov_b32 s55, 2\ns_branch F_pp")

def k_fused():
    a = Asm("F")
    a(f"""
    s_cmp_ge_u32 s2, 256
    s_cbranch_scc1 F_end
    s_load_dwordx2 s[{S_X}:{S_X+1}], s[0:1], 0
    s_load_dwordx2 s[{S_WG}:{S_WG+1}], s[0:1], 64
    s_load_dwordx2 s[{S_WU}:{S_WU+1}], s[0:1], 72
    s_load_dwordx8 s[64:71], s[0:1], 8
    s_load_dwordx4 s[72:75], s[0:1], 40
    """)
    if O.stamps: a(f"{O.stamps} s[92:93]")
    a(f"v_lshrrev_b32 v2, 6, v0\nv_and_b32 v1, 63, v0\nv_readfirstlane_b32 s{S_WAVE}, v2")
    srd_tail(a, S_X, 2048*512*2); srd_tail(a, S_WG, 512*1792*2); srd_tail(a, S_WU, 512*1792*2+1024)
    if O.k8: a(f"s_and_b32 s56, s{S_WAVE}, 3\ns_waitcnt lgkmcnt(0)")
    else: a(f"s_and_b32 s56, s{S_WAVE}, 3\ns_lshr_b32 s40, s{S_WAVE}, 2\ns_cmp_lt_u32 s2, 32\ns_cselect_b32 s41, 1, 0\ns_cmp_lg_u32 s40, s41\ns_cbranch_scc1 F_nopar\ns_waitcnt lgkmcnt(0)")
    a(f"s_lshl_b32 s40, s2, 2\ns_load_dword s{S_LDT}, s[72:73], s40")
    kgen_param_loads(a, VM(a))
    a(f"""
    F_nopar:
    s_cmp_lt_u32 s2, 32
    s_cbranch_scc1 F_aux
    s_bfe_u32 s60, s2, 0x20001
    s_and_b32 s40, s2, 1
    s_lshl_b32 s40, s40, 1
    s_add_u32 s60, s60, s40
    s_cmp_ge_u32 s60, {8-O.hyb}
    s_cselect_b32 s40, {8-O.hyb}, 0
    s_sub_u32 s60, s60, s40
    s_bfe_u32 s6, s2, 0x20001
    s_lshl_b32 s6, s6, 2
    s_bfe_u32 s40, s2, 0x20003
    s_add_u32 s6, s6, s40
    s_and_b32 s7, s2, 1
    s_mul_i32 s7, s7, 7
    s_lshr_b32 s40, s2, 5
    s_add_u32 s7, s7, s40
    s_sub_u32 s7, s7, 1
    s_cmp_lt_u32 s{S_WAVE}, 4
    s_cbranch_scc1 F_cons
    """)
    g1_producer(a)
    a("F_cons:")
    g1_consumer(a)
    gemm2(a)
    stamp_flush(a)
    a("F_end:\ns_endpgm\nF_aux:")
    aux_role(a)
    a("F_last:\ns_endpgm")
    return dict(name=NAME, body=a.text(), grid=256, block=512, lds=163840, vgpr=256, sgpr=102)

def single_file(k):
    return make_file([k]).replace("; @launch kernel=%s " % k["name"], "; @launch ")
SETS = {"T": dict(hs12=1, hs13=2, g2_end=3, t_pre=4, t_bar=5, end=6, a_st0=1, hflag=7),
        "G": dict(c_par=1, c_k1=2, c_kv=3, c_kg=4, c_b0=5, pb1=1, pb7=2, pb10=3, pb12=4, pb14=5, pb15=6, pb16=7),
        "E": dict(pb16=1, ps2=2, cv_m=3, cv_x=4, conv_end=5, a_st0=6, hflag=7, c_end=1, g2a=2, g2r=3, g2d=4, flag=5, g2e=6),
        "Z": dict(c_s15=1, c_end=2, end=7),
        "A": dict(c_b0=1, c_s15=2, c_end=3, flag=4, g2a=5, hflag=6, end=7,   p_par=1, p_kg=2, p_b16=3, ps2=5,  a_x=1, a_bar=2, a_end=3, a_cs=1, a_kg=2, a_ex=3),
        "B": dict(c_par=3, c_kg=4, p_start=1, h0=2, g2_end=6, end=7, pb3=2, pb10=3, ps1=4, conv_end=5, a_st=3),
        "D": dict(hflag=1, hs0=2, hs3=3, hs4=4, hs7=5, hs10=6, hs13=7),
        "C": dict(pb10=1, pb12=2, pb13=3, pb14=4, pb15=5, pb16=6, p_b16=7)}
if __name__ == "__main__":
    sfx = ""
    for kv in sys.argv[1:]:
        k, v = kv.split("=")
        if k == "sfx": sfx = v
        else: setattr(O, k, eval(v))
    open(f"../f3{sfx}.s","w").write(single_file(k_fused()))
    O.stamps = "s_memrealtime"
    for k, v in SETS.items():
        O.stamp_sel = v
        open(f"../f3{sfx}_{k}.s","w").write(single_file(k_fused()))
```

```python
from common import Asm, vr, sr, make_file
from util import *
import struct, sys
def f2u(x): return struct.unpack("<I", struct.pack("<f", x))[0]
LOG2E = f2u(1.4426950408889634); INV2PI = f2u(0.15915494309189535)
pr = lambda r: f"v[{r}:{r+1}]"
NAME = "parallel_sum__ssm_conv_s4d__glu_gated_bilinear__prompt_kernel"

WS_SIZE = 0x10000000
ST_G = 0x700000; CS_G = 0x704000; HF_OFF = 0x990000; HFS = 3328; XF_OFF = 0x70D000; AF_OFF = 0x720000
XNT_OFF = 0x780000; XP = 8448; XQ = 65536+256; AT_OFF = 0xA00000; ATP = 8192+256; AFS = 1280; TS_OFF = 0xE00000
S_WAVE = 4
S_WS, S_X, S_WG, S_WU, S_WD, S_OUT, S_DBG = 8, 12, 16, 20, 24, 28, 32
S_TAG = 62; S_DD = 63; S_LDT = 59; S_FM = 76; S_FO = 57
VFL = 15
SLOT = 16384; NW = 6
XR = 6*SLOT; HS = 8192
LC = XR + 2*HS; LU = LC + 8*4160; PXB = XR + 7*HS; KT = PXB; KTP = 3072; AUXL = PXB + 6144; CNT = AUXL + 1536
SCR = 5*SLOT
UP = 4608; PC = 4160; PP = 272
assert LU + 2*UP <= AUXL and CNT + 512 == 163840
C_PS, C_A, C_TAG, C_ST, C_KF, C_LN, C_KX, C_PAIR = 0, 4, 8, 12, 16, 24, 28, 32
WSLOT = [4*SLOT, 5*SLOT, 0, SLOT, 2*SLOT, 3*SLOT, XR]
WAVAIL = [11, 12, 13, 14, 15, 16, 16]
NRG = 4
POLL_MAX = 1 << 16

class Opt: pass
O = Opt()
O.stamps = None; O.stamp_sel = {}
O.upfront = 20; O.quota = [8,8,8,8,8,8,8,8,8,8,8,8,8,8,8,8]
O.rate = [0,16,28,28,28,28,28,28,28,28,28,28,28,28,10,0]
O.psleep = 3; O.up2 = 6; O.kpre = 40; O.xfc = 16; O.asleep = 8; O.a0sleep = 16; O.wreg = 6; O.g2prio = 0; O.auxw0 = 2; O.pre0 = 85; O.hlead = 5; O.cprio = 3; O.shadow = 9

def stamp(a, name):
    if O.stamps and name in O.stamp_sel:
        i = O.stamp_sel[name]; a(f"{O.stamps} s[100:101]\ns_waitcnt lgkmcnt(0)\ns_mov_b32 s{92+i}, s100")
def stamp_flush(a):
    if not O.stamps: return
    for i in range(8): a(f"v_mov_b32 v{2+i}, s{92+i}")
    a(f"""
    v_mov_b32 v10, 0
    s_lshl_b32 s92, s2, 3
    s_add_u32 s92, s92, s{S_WAVE}
    s_lshl_b32 s92, s92, 5
    s_add_u32 s92, s92, {TS_OFF}
    s_mov_b64 exec, 1
    buffer_store_dwordx4 v[2:5], v10, {sr(S_WS)}, s92 offen
    buffer_store_dwordx4 v[6:9], v10, {sr(S_WS)}, s92 offen offset:16
    s_mov_b64 exec, -1
    """)
def srd_tail(a, s, size): a(f"s_mov_b32 s{s+2}, {hex(size)}\ns_mov_b32 s{s+3}, 0x20000")
MAPA = """    s_bfe_u32 s53, s2, 0x20001
    s_lshl_b32 s53, s53, 3
    s_lshr_b32 s40, s2, 5
    s_add_u32 s53, s53, s40                 ; R64
    s_and_b32 s54, s2, 1
    s_lshl_b32 s54, s54, 2
    s_bfe_u32 s40, s2, 0x20003
    s_add_u32 s54, s54, s40                 ; C64"""
MAPB = """    s_and_b32 s53, s2, 7
    s_lshl_b32 s53, s53, 2
    s_lshr_b32 s40, s2, 6
    s_add_u32 s53, s53, s40
    s_bfe_u32 s54, s2, 0x30003"""
def rotc(r):
    if O.map2: return f"s_mul_i32 s{r}, s54, {O.rotm}\ns_lshr_b32 s{r}, s{r}, 2"
    return f"s_and_b32 s{r}, s54, 3\ns_mul_i32 s{r}, s{r}, {O.rotm}\ns_add_u32 s{r}, s{r}, 1\ns_lshr_b32 s{r}, s{r}, 1"
def late_loads(a):
    a(f"""
    s_load_dwordx2 s[{S_WS}:{S_WS+1}], s[0:1], 104
    s_load_dwordx2 s[{S_DBG}:{S_DBG+1}], s[0:1], 96
    s_load_dwordx2 s[{S_WD}:{S_WD+1}], s[0:1], 80
    s_load_dwordx2 s[{S_OUT}:{S_OUT+1}], s[0:1], 88
    """)
    srd_tail(a, S_WS, WS_SIZE); srd_tail(a, S_DBG, 256); srd_tail(a, S_WD, 512*1792*2); srd_tail(a, S_OUT, 2048*512*2)
    a(f"""
    {MAPB if O.map2 else MAPA}
    s_lshl_b32 s40, s2, 2
    s_waitcnt lgkmcnt(0)
    s_load_dword s{S_DD}, s[74:75], s40
    """)
def poll(a, vdst, vaddr, srdreg, soff, mask, cmp_src, op="ne", sleep=None):
    l = a.label("poll"); d = a.label("polld")
    a(f"s_mov_b64 exec, {mask}\ns_mov_b32 s58, {POLL_MAX}\n{l}:")
    a(f"""
    buffer_load_dword v{vdst}, v{vaddr}, {sr(srdreg)}, {soff} offen sc1
    s_waitcnt vmcnt(0)
    v_cmp_{op}_u32 vcc, {cmp_src}, v{vdst}
    s_cbranch_vccz {d}
    s_sleep {sleep or O.psleep}
    s_sub_u32 s58, s58, 1
    s_cmp_lg_u32 s58, 0
    s_cbranch_scc1 {l}
    {d}:
    s_mov_b64 exec, -1
    """)
def lds_signal(a, vaddr, off, vone):
    a(f"s_mov_b64 exec, 1\nds_add_u32 v{vaddr}, v{vone} offset:{off}\ns_mov_b64 exec, -1")
def lds_wait(a, vaddr, off, target, vt, sleep=1):
    l = a.label("lw"); d = a.label("lwd")
    a(f"""
    s_mov_b32 s58, {POLL_MAX}
    {l}:
    ds_read_b32 v{vt}, v{vaddr} offset:{off}
    s_waitcnt lgkmcnt(0)
    v_readfirstlane_b32 s40, v{vt}
    s_cmp_ge_u32 s40, {target}
    s_cbranch_scc1 {d}
    s_sleep {sleep}
    s_sub_u32 s58, s58, 1
    s_cmp_lg_u32 s58, 0
    s_cbranch_scc1 {l}
    {d}:
    """)

VWD = 11; VCN = 6; VONE = 7
PV = 16; AD = 20; RA = 28; KA0, KA1a, KA1b, KA2 = 32, 33, 34, 35
VT = 36; XFL = 37; GA = 38; CA, CB, CU, CS_ = 49, 50, 51, 52; UA = 53; UV = 54; UG = 55
KW = 56; PKR = 128; UF = 188; GF = 196; EF = 200; KACC = 212

def kgen_param_loads(a, vm):
    a(f"v_lshlrev_b32 v{KW}, 1, v1\ns_lshl_b32 s40, s2, 9\ns_lshl_b32 s41, s56, 7\ns_add_u32 s40, s40, s41")
    a(f"s_mov_b32 s38, {512*128*2}\ns_mov_b32 s39, 0x20000")
    for i in range(4):
        a(f"s_mov_b32 s36, s{64+2*i}\ns_mov_b32 s37, s{65+2*i}")
        vm.issue(f"buffer_load_ushort v{PV+i}, v{KW}, s[36:39], s40 offen", "par")

def rot_calc(a, sd):
    a(f"s_and_b32 s{sd}, s54, 3\ns_mul_i32 s{sd}, s{sd}, 7\ns_add_u32 s{sd}, s{sd}, 1\ns_lshr_b32 s{sd}, s{sd}, 1")
def wd_voff(a):
    a(f"""
    v_lshrrev_b32 v2, 4, v1
    v_bfe_u32 v3, v1, 1, 2
    v_xor_b32 v3, v3, v2
    v_and_b32 v4, 1, v1
    v_lshl_or_b32 v3, v3, 1, v4
    v_lshrrev_b32 v4, 3, v1
    v_lshlrev_b32 v4, 10, v4
    v_lshl_add_u32 v{VWD}, v3, 4, v4
    """)
def kaddr_setup(a, SCR=SCR):
    T = KW+2
    a(f"""
    v_mov_b32 v{VCN}, {CNT}
    v_mov_b32 v{VONE}, 1
    s_lshl_b32 s40, s56, 12
    s_add_u32 s40, s40, {SCR}
    v_lshl_add_u32 v{AD}, v1, 2, s40
    """)
    for r in range(1, 8): a(f"v_xor_b32 v{AD+r}, {r<<4}, v{AD}")
    a(f"""
    v_and_b32 v{T}, 15, v1                  ; m / b / n
    v_lshrrev_b32 v{T+1}, 4, v1             ; g
    v_lshrrev_b32 v{T+2}, 1, v{T}
    v_xor_b32 v{T+2}, v{T+2}, v{T+1}
    v_lshlrev_b32 v{T+2}, 4, v{T+2}
    v_lshl_add_u32 v{T+2}, v{T}, 8, v{T+2}
    v_add_u32 v{RA}, s40, v{T+2}
    v_xor_b32 v{RA+1}, 64, v{RA}
    v_xor_b32 v{RA+2}, 128, v{RA}
    v_xor_b32 v{RA+3}, 192, v{RA}
    s_lshr_b32 s5, s56, 1                   ; ch
    s_mul_i32 s41, s5, {KTP}
    s_add_u32 s41, s41, {KT}
    v_lshrrev_b32 v{T+2}, 1, v{T+1}
    v_lshlrev_b32 v{T+2}, 8, v{T+2}
    v_and_b32 v{T+3}, 1, v{T+1}
    v_lshl_add_u32 v{T+2}, v{T+3}, 3, v{T+2}
    v_lshl_add_u32 v{T+2}, v{T}, 4, v{T+2}
    v_add_u32 v{KA0}, s41, v{T+2}
    v_cmp_gt_u32 vcc, 2, v{T+1}
    v_lshlrev_b32 v{T+2}, 7, v{T+1}
    v_lshlrev_b32 v{T+3}, 2, v{T}
    v_lshlrev_b32 v{T+4}, 3, v{T}
    v_cndmask_b32 v{T+3}, v{T+3}, v{T+4}, vcc
    v_add3_u32 v{KA1a}, v{T+2}, v{T+3}, s41
    v_mov_b32 v{T+3}, 64
    v_cndmask_b32 v{T+3}, v{T+3}, 4, vcc
    v_add_u32 v{KA1b}, v{KA1a}, v{T+3}
    v_lshl_add_u32 v{T+2}, v{T}, 1, v{T+2}
    v_add_u32 v{KA2}, s41, v{T+2}
    """)

def prod_setup(a):
    T = KW+2
    wd_voff(a)
    a(f"""
    s_mul_i32 s86, s56, {14*32*1024}
    s_lshl_b32 s40, s54, 7
    s_add_u32 s86, s86, s40
    s_add_u32 s87, s86, {14*32768}
    {rotc(51)}
    s_lshl_b32 s51, s51, 15
    s_add_u32 s51, s51, s86
    s_lshl_b32 s52, s56, 12
    v_mov_b32 v{VCN}, {CNT}
    v_mov_b32 v{VONE}, 1
    v_and_b32 v14, 31, v1
    v_lshlrev_b32 v14, 2, v14
    s_lshr_b32 s5, s56, 1                   ; ch
    v_and_b32 v{T}, 15, v1
    v_lshrrev_b32 v{T+1}, 4, v1
    v_and_b32 v{T+2}, 3, v1
    v_mul_u32_u24 v{CA}, {PC}, v{T+2}
    v_lshl_add_u32 v{CA}, v{T+1}, 4, v{CA}
    v_and_b32 v{T+2}, 12, v1
    v_lshlrev_b32 v{T+2}, 1, v{T+2}
    v_sub_u32 v{CA}, v{CA}, v{T+2}
    s_mul_i32 s40, s5, {4*PC}
    s_and_b32 s39, s56, 1
    s_lshl_b32 s39, s39, 8
    s_sub_u32 s40, s40, s39
    s_add_u32 s40, s40, {LC + 2*(2048-16-1792) - 192}
    v_add_u32 v{CA}, s40, v{CA}
    v_lshlrev_b32 v{CU}, 5, v{T}
    v_lshl_add_u32 v{CB}, v{T+1}, 4, v{CU}
    v_lshl_add_u32 v{CS_}, v{T+1}, 3, v{CU}
    s_mul_i32 s40, s5, {UP}
    s_add_u32 s41, s40, {LU + 480}
    v_add_u32 v{CU}, s41, v{CS_}
    v_mul_u32_u24 v{CS_}, {8*ATP}, v{T+1}
    v_lshl_add_u32 v{CS_}, v{T}, 3, v{CS_}
    s_sub_u32 s40, s40, s39
    s_add_u32 s40, s40, {LU + 480 - 32 - 192}
    v_add_u32 v{CB}, s40, v{CB}
    v_and_b32 v{UV}, 255, v0
    v_lshlrev_b32 v{T}, 3, v{UV}
    v_lshlrev_b32 v{UV}, 4, v{UV}
    v_bfe_u32 v{T+1}, v0, 4, 4
    v_and_b32 v{UG}, 0xf0, v{UV}
    v_mul_u32_u24 v{UA}, {XQ}, v{T+1}
    v_add_u32 v{UG}, v{UG}, v{UA}
    v_and_b32 v{UA}, 0x70, v{UV}
    v_lshl_add_u32 v{UA}, v{T+1}, 7, v{UA}
    v_bfe_u32 v{T+1}, v0, 3, 1
    v_mul_u32_u24 v{T+1}, {UP}, v{T+1}
    v_add_u32 v{UA}, v{UA}, v{T+1}
    v_add_u32 v{UA}, {LU+480}, v{UA}
    v_sub_u32 v{T}, 2051, v{T}
    s_movk_i32 s41, 128
    s_mov_b32 s40, {KT}
    """)
    for e in range(11):
        a(f"""
        v_subrev_u32 v{T+1}, {e}, v{T}
        v_cvt_f32_u32 v{T+2}, v{T+1}
        v_cvt_pk_bf16_f32 v{T+2}, v{T+2}, v{T+2}
        v_lshrrev_b32 v{T+2}, 16, v{T+2}
        v_subrev_u32 v{T+2}, 0x4280, v{T+2}
        v_med3_i32 v{T+2}, v{T+2}, v{T+1}, s41
        v_lshl_add_u32 v{GA+e}, v{T+2}, 1, s40
        """)

SFR = 192
def kgen_valu(a, scalar=True, stream=False):
    W = KW
    AR, PH, T, DT = W, W+1, W+2, W+5
    C2, W8, Y = W+6, W+8, W+10
    Fk = lambda k: W+20+2*k
    Ca = lambda k: W+34+2*k
    V = PV
    a(f"""
    s_lshl_b32 s3, s5, 4
    s_lshr_b32 s3, s{S_LDT}, s3
    s_lshl_b32 s3, s3, 16
    v_mov_b32 v{DT}, {hex(LOG2E)}
    v_mul_f32 v{DT}, s3, v{DT}
    v_lshlrev_b32 v{V}, 16, v{V}
    v_lshlrev_b32 v{V+1}, 16, v{V+1}
    v_lshlrev_b32 v{V+2}, 16, v{V+2}
    v_lshlrev_b32 v{V+3}, 16, v{V+3}
    v_mul_f32 v{V}, {hex(LOG2E)}, v{V}
    v_exp_f32 v{V}, v{V}
    v_exp_f32 v{DT}, v{DT}
    s_nop 0
    v_cvt_pk_bf16_f32 v{T}, v{DT}, v{V}
    v_lshlrev_b32 v{DT}, 16, v{T}
    v_and_b32 v{V}, 0xffff0000, v{T}
    v_mul_f32 v{AR}, v{V}, v{DT}
    v_mul_f32 v{PH}, v{V+1}, v{DT}
    v_mul_f32 v{AR}, {hex(LOG2E ^ 0x80000000)}, v{AR}
    v_mul_f32 v{PH}, {hex(INV2PI)}, v{PH}
    v_mul_f32 v{C2}, v{V+2}, v{DT}
    v_mul_f32 v{C2+1}, v{V+3}, v{DT}
    v_add_f32 v{C2}, v{C2}, v{C2}
    v_add_f32 v{C2+1}, v{C2+1}, v{C2+1}
    """)
    have = set(); wr = [0, 0]
    NR = (16, 16, 16, 9)
    def drain():
        while wr[0] < 4:
            t, r = wr
            if r >= NR[t]:
                for ks in range(4): a(f"ds_read_b128 {vr(SFR+16*t+4*ks)}, v{RA+ks}")
                wr[0] += 1; wr[1] = 0; continue
            if (t, r) in have and (r+1 >= NR[t] or (t, r+1) in have):
                if r+1 < NR[t]: a(f"ds_write2st64_b32 v{AD+r//2}, v{PKR+16*t+r}, v{PKR+16*t+r+1} offset0:{r} offset1:{r+1}")
                else: a(f"ds_write_b32 v{AD+r//2}, v{PKR+16*t+r} offset:{r*256}")
                wr[1] += 2
            return
    def put(tile, row, x, neg=False):
        r = PKR + 16*tile + row
        if stream: drain()
        if x is None: a(f"v_mov_b32 v{r}, 0x3f80")
        else: a(f"v_cvt_pk_bf16_f32 v{r}, v{x}, {'-' if neg else ''}v{x+1}")
        have.add((tile, row))
    def cm_multi(ops):
        if scalar:
            for (o,x,w,t) in ops: a(f"v_mul_f32 v{t}, v{x}, v{w}\nv_mul_f32 v{t+1}, v{x}, v{w+1}")
            for (o,x,w,t) in ops: a(f"v_fma_f32 v{o}, -v{x+1}, v{w+1}, v{t}\nv_fma_f32 v{o+1}, v{x+1}, v{w}, v{t+1}")
        else:
            for (o,x,w,t) in ops: a(f"v_pk_mul_f32 {pr(t)}, {pr(x)}, {pr(w)} op_sel_hi:[1,0]")
            for (o,x,w,t) in ops: a(f"v_pk_fma_f32 {pr(o)}, {pr(x)}, {pr(w)}, {pr(t)} op_sel:[1,1,0] op_sel_hi:[0,1,1] neg_lo:[1,0,0]")
    W16 = W+50; C3 = W+52; TT = W+54
    anc = [(W8, 8), (W16, 16), (Fk(1), 1), (Ca(1), 128), (Y, 1024)]
    for i, (o, p) in enumerate(anc): a(f"v_mul_f32 v{TT+2*i}, {hex(f2u(float(p)))}, v{AR}\nv_mul_f32 v{TT+2*i+1}, {hex(f2u(float(p)))}, v{PH}")
    for i, (o, p) in enumerate(anc): a(f"v_fract_f32 v{TT+2*i+1}, v{TT+2*i+1}\nv_exp_f32 v{TT+2*i}, v{TT+2*i}")
    for i, (o, p) in enumerate(anc): a(f"v_cos_f32 v{o}, v{TT+2*i+1}\nv_sin_f32 v{o+1}, v{TT+2*i+1}")
    for i, (o, p) in enumerate(anc): a(f"v_mul_f32 v{o}, v{o}, v{TT+2*i}\nv_mul_f32 v{o+1}, v{o+1}, v{TT+2*i}")
    cm_multi([(C3, C2, W8, TT)])
    for b in range(0, 16, 2):
        put(0, b, C2, True); put(0, b+1, C3, True)
        k = b//2 + 2
        ops = []
        if b < 14: ops += [(C2, C2, W16, TT), (C3, C3, W16, TT+2)]
        if k <= 7: ops += [(Fk(k), Fk(k-1), Fk(1), TT+4), (Ca(k), Ca(k-1), Ca(1), TT+6)]
        cm_multi(ops)
    O4 = [W+64+2*i for i in range(4)]
    put(1, 0, None)
    for k in range(1, 8): put(1, k, Fk(k))
    put(1, 8, Ca(1)); put(2, 0, Ca(2)); put(2, 4, Ca(3)); put(3, 0, Y)
    for c in (4,5,6,7): put(2, 8+2*(c-4), Ca(c))
    prods = [(1, 8+k, Ca(1), Fk(k)) for k in range(1,8)] + [(2, i, Ca(2), Fk(2*i)) for i in (1,2,3)] + [(2, 4+i, Ca(3), Fk(2*i)) for i in (1,2,3)] \
          + [(2, 9+2*(c-4), Ca(c), Fk(4)) for c in (4,5,6,7)] + [(3, c, Y, Ca(c)) for c in range(1,8)] + [(3, 8, Y, Y)]
    for i in range(0, len(prods), 4):
        grp = prods[i:i+4]
        cm_multi([(O4[k], x, w, TT+2*k) for k, (t, r, x, w) in enumerate(grp)])
        for k, (t, r, x, w) in enumerate(grp): put(t, r, O4[k])
    if stream:
        stamp(a, "c_k1")
        while wr[0] < 4: drain()
        a("s_waitcnt lgkmcnt(0)")
        for ks in range(4):
            for t in range(3):
                a(f"v_mfma_f32_16x16x32_bf16 {vr(AKACC+4*t)}, {vr(SFR+16*(t+1)+4*ks)}, {vr(SFR+4*ks)}, {vr(AKACC+4*t) if ks else 0}")

AKACC = 128; AEF = 140
def kgen_ds(a, kacc=None):
    KACC = kacc or globals()['KACC']
    FRG = KW
    for t in range(4):
        n = 16 if t < 3 else 9
        for r in range(0, n, 2):
            if r+1 < n: a(f"ds_write2st64_b32 v{AD+r//2}, v{PKR+16*t+r}, v{PKR+16*t+r+1} offset0:{r} offset1:{r+1}")
            else: a(f"ds_write_b32 v{AD+r//2}, v{PKR+16*t+r} offset:{r*256}")
        for ks in range(4): a(f"ds_read_b128 {vr(FRG+16*t+4*ks)}, v{RA+ks}")
    a("s_waitcnt lgkmcnt(0)")
    for ks in range(4):
        for t in range(3):
            a(f"v_mfma_f32_16x16x32_bf16 {vr(KACC+4*t)}, {vr(FRG+16*(t+1)+4*ks)}, {vr(FRG+4*ks)}, {vr(KACC+4*t) if ks else 0}")

def cnt_init(a):
    a(f"v_lshl_add_u32 v2, v1, 2, v{VCN}\nv_mov_b32 v3, 0\nds_write_b32 v2, v3")

def kgen_exchange(a, kacc=None, ef=None, bar=False):
    KACC = kacc or globals()['KACC']; EF = ef or globals()['EF']
    l = a.label("kr"); d = a.label("kd")
    a(f"""
    s_mul_i32 s40, s5, {KTP}
    s_add_u32 s40, s40, {PXB}
    v_lshl_add_u32 v2, v1, 4, s40
    s_lshl_b32 s41, s5, 2
    v_add_u32 v3, s41, v{VCN}
    s_bitcmp1_b32 s56, 0
    s_cbranch_scc0 {l}
    s_nop 1
    """)
    for t in range(3): a(f"ds_write_b128 v2, {vr(KACC+4*t)} offset:{1024*t}")
    if bar: a("s_waitcnt lgkmcnt(0)\ns_barrier")
    a(f"ds_write_b32 v3, v{VONE} offset:{C_KF}\ns_branch {d}\n{l}:")
    if bar: a("s_barrier")
    else: lds_wait(a, 3, C_KF, 1, 4)
    for t in range(3): a(f"ds_read_b128 {vr(EF+4*t)}, v2 offset:{1024*t}")
    a("s_waitcnt lgkmcnt(0)")
    for k in range(12): a(f"v_add_f32 v{KACC+k}, v{KACC+k}, v{EF+k}")
    for k in range(6): a(f"v_cvt_pk_bf16_f32 v{EF+k}, v{KACC+2*k}, v{KACC+2*k+1}")
    a(f"""
    ds_write_b64 v{KA0}, v[{EF}:{EF+1}]
    ds_write_b32 v{KA1a}, v{EF+2} offset:512
    ds_write_b32 v{KA1b}, v{EF+3} offset:512
    ds_write_b16 v{KA2}, v{EF+4} offset:1024
    ds_write_b16_d16_hi v{KA2}, v{EF+4} offset:1056
    ds_write_b16 v{KA2}, v{EF+5} offset:1088
    ds_write_b16_d16_hi v{KA2}, v{EF+5} offset:1120
    {d}:
    """)

EXO = 128
TLV, TLA = 160, 161
def expand_gather(a, step=None):
    P = KW
    for ch in range(2):
        for e in range(11): a(f"ds_read_u16 v{P+11*ch+e}, v{GA+e} offset:{KTP*ch}")
    a("s_waitcnt lgkmcnt(0)")
    for ch in range(2):
        for s_ in range(4):
            for k in range(4):
                e = 11*ch + 3 - s_ + 2*k
                a(f"v_lshl_or_b32 v{EXO+16*ch+4*s_+k}, v{P+e+1}, 16, v{P+e}")
    a(f"v_add_u32 v{KW+22}, {LC}, v{UV}")
def expand_writes():
    return [f"    ds_write_b128 v{KW+22}, {vr(EXO+16*ch+4*s_)} offset:{4*PC*ch + s_*PC}" for ch in range(2) for s_ in range(4)]

def tails_prep(a):
    T = KW+24
    a(f"""
    v_lshrrev_b32 v{T}, 3, v1
    v_and_b32 v{T+1}, 3, v{T}
    v_and_b32 v{T+2}, 7, v1
    v_lshlrev_b32 v{T+2}, 1, v{T+2}
    v_sub_u32 v{T+3}, v{T+1}, v{T+2}
    v_lshrrev_b32 v{T+4}, 5, v1
    v_mul_u32_u24 v{T+4}, {KTP}, v{T+4}
    v_max_i32 v{T+5}, 1, v{T+3}
    v_lshl_add_u32 v{T+4}, v{T+5}, 1, v{T+4}
    v_add_u32 v{T+4}, {KT-2}, v{T+4}
    ds_read_u16 v{T+6}, v{T+4} offset:2
    ds_read_u16 v{T+7}, v{T+4}
    v_mul_u32_u24 v{T}, {PC}, v{T}
    v_lshl_add_u32 v{T}, v{T+2}, 1, v{T}
    v_add_u32 v{TLA}, {LC+4096}, v{T}
    v_cmp_eq_u32 vcc, 0, v{T+3}
    v_cmp_lt_i32 s[40:41], 0, v{T+3}
    s_waitcnt lgkmcnt(0)
    v_lshl_or_b32 v{T+6}, v{T+7}, 16, v{T+6}
    v_cndmask_b32 v{T+7}, 0, v{T+7}, vcc
    v_cndmask_b32 v{TLV}, v{T+7}, v{T+6}, s[40:41]
    v_mov_b64 v[164:165], 0
    v_mov_b64 v[166:167], 0
    v_lshrrev_b32 v{T+4}, 5, v1
    v_mul_u32_u24 v{T+4}, {UP}, v{T+4}
    v_and_b32 v{T+5}, 31, v1
    v_min_u32 v{T+5}, 29, v{T+5}
    v_lshl_add_u32 v{T+4}, v{T+5}, 4, v{T+4}
    v_add_u32 v162, {LU}, v{T+4}
    """)
def tails(a):
    l = a.label("t1")
    a(f"s_cmp_lg_u32 s56, 0\ns_cbranch_scc1 {l}\nds_write_b32 v{TLA}, v{TLV}\nds_write_b128 v162, v[164:167]\n{l}:")

def xf_addr(a, s):
    a(f"s_lshr_b32 s{s}, s2, 6\ns_lshl_b32 s{s}, s{s}, 7\ns_add_u32 s{s}, s{s}, {XF_OFF}")
def u_loads(a, vm):
    a(f"s_lshl_b32 s36, s2, 8\ns_add_u32 s36, s36, {XNT_OFF}\ns_add_u32 s37, s36, {16*XQ}")
    for k in range(2):
        t = f"buffer_load_dwordx4 {vr(UF+4*k)}, v{UG}, {sr(S_WS)}, s{36+k} offen sc1"
        if vm: vm.issue(t, "u")
        else: a(t)

def tags_check(a):
    lt = a.label("tagok")
    a(f"v_cmp_eq_u32 vcc, 0, v{VT}\ns_cbranch_vccz {lt}")
    poll(a, VT, 14, S_DBG, "0", -1, "0", "eq")
    a(f"{lt}:\nv_readfirstlane_b32 s{S_TAG}, v{VT}\ns_nop 1\nv_mov_b32 v2, s{S_TAG}\nds_write_b32 v{VCN}, v2 offset:{C_TAG}")

def granule_issue(a, vm):
    a(f"""
    v_lshlrev_b32 v13, 4, v1
    s_lshl_b32 s36, s7, 10
    s_mul_i32 s37, s56, {1792*8}
    s_add_u32 s36, s36, s37
    s_add_u32 s36, s36, {CS_G}
    s_lshl_b32 s37, s6, 10
    s_add_u32 s37, s37, {ST_G}
    s_cmp_lt_u32 s56, 2
    s_cselect_b32 s61, s36, s37
    """)
    vm.issue(f"buffer_load_dwordx4 {vr(GF)}, v13, {sr(S_WS)}, s61 offen sc1", "gr")
def csq(a, sd, smat, sj):
    a(f"""
    s_cmp_ge_u32 s{sj}, 7
    s_cselect_b32 s37, 13, 0
    s_mul_i32 s{sd}, s{smat}, 7
    s_add_u32 s{sd}, s{sd}, s{sj}
    s_lshl_b32 s{sd}, s{sd}, 1
    s_sub_u32 s{sd}, s{sd}, s37
    """)
def granule_check(a, vm):
    lr = a.label("grre"); lo = a.label("grok"); l2 = a.label("gst"); l3 = a.label("gdn")
    csq(a, 36, 56, 7)
    a(f"""
    s_lshl_b32 s37, s6, 1
    s_cmp_lt_u32 s56, 2
    s_cselect_b32 s36, s36, s37
    s_cselect_b32 s37, 0, 1
    s_add_u32 s37, s37, s36
    v_readlane_b32 s36, v{VT}, s36
    v_readlane_b32 s37, v{VT}, s37
    v_cmp_gt_u32 vcc, 32, v1
    v_mov_b32 v5, s36
    v_mov_b32 v4, s37
    v_cndmask_b32 v4, v4, v5, vcc
    s_mov_b32 s58, {POLL_MAX}
    """)
    vm.wait("gr")
    a(f"""
    {lr}:
    v_cmp_ne_u32 vcc, v4, v{GF+1}
    v_cmp_ne_u32 s[36:37], v4, v{GF+3}
    s_or_b64 vcc, vcc, s[36:37]
    s_cbranch_scc0 {lo}
    buffer_load_dwordx4 {vr(GF)}, v13, {sr(S_WS)}, s61 offen sc1
    s_waitcnt vmcnt(0)
    s_sub_u32 s58, s58, 1
    s_cmp_lg_u32 s58, 0
    s_cbranch_scc1 {lr}
    {lo}:
    s_cmp_lt_u32 s56, 2
    s_cbranch_scc0 {l2}
    s_lshl_b32 s36, s56, 9
    s_add_u32 s36, s36, {AUXL}
    v_lshl_add_u32 v4, v1, 3, s36
    ds_write2_b32 v4, v{GF}, v{GF+2} offset0:0 offset1:1
    s_branch {l3}
    {l2}:
    v_lshlrev_b32 v{GF}, 16, v{GF}
    v_lshlrev_b32 v{GF+2}, 16, v{GF+2}
    v_xor_b32 v{GF}, 0x80000000, v{GF}
    v_xor_b32 v{GF+2}, 0x80000000, v{GF+2}
    v_and_b32 v4, 7, v1
    v_lshlrev_b32 v4, 5, v4
    v_bfe_u32 v5, v1, 3, 2
    v_lshl_add_u32 v4, v5, 2, v4
    v_lshrrev_b32 v5, 5, v1
    v_lshl_add_u32 v4, v5, 8, v4
    v_add_u32 v4, {AUXL+1024}, v4
    ds_write2_b32 v4, v{GF}, v{GF+2} offset0:0 offset1:4
    {l3}:
    """)

WADV = "s_add_u32 s51, s51, 0x8000\ns_cmp_eq_u32 s51, s87\ns_cselect_b32 s51, s86, s51\n"
def wdA_units(k):
    return [((WADV if (k and e == 0) else "") + f"s_add_u32 m0, s52, {WSLOT[k] + e*1024}\ns_add_u32 s49, s51, {e*8192}", f"buffer_load_dwordx4 v{VWD}, {sr(S_WD)}, s49 offen lds", "wd") for e in range(4)]

DF = 16
GROUPS = ((7,4,3,0),(6,5,2,1))
def conv_setup(a):
    a(f"""
    s_lshr_b32 s91, s2, 5
    s_mul_i32 s91, s91, {ATP}
    s_and_b32 s41, s2, 31
    s_lshl_b32 s41, s41, 1
    s_add_u32 s41, s41, s5
    s_lshl_b32 s41, s41, 7
    s_add_u32 s91, s91, s41
    s_add_u32 s91, s91, {AT_OFF}
    s_lshl_b32 s41, s5, 4
    s_lshr_b32 s38, s{S_DD}, s41
    s_and_b32 s38, s38, 0xffff
    s_and_b32 s41, s56, 1
    s_sub_u32 s41, s41, 1
    s_and_b32 s38, s38, s41
    v_and_b32 v2, 15, v1
    v_lshrrev_b32 v3, 4, v1
    v_lshlrev_b32 v3, 3, v3
    v_sub_u32 v2, v2, v3
    v_add_u32 v2, 16, v2                        ; i = m+16-8g
    v_ashrrev_i32 v2, 1, v2
    v_and_b32 v3, 1, v1
    v_lshlrev_b32 v3, 4, v3
    v_lshlrev_b32 v3, v3, s38
    v_cmp_eq_i32 s[78:79], 0, v2
    v_cmp_eq_i32 s[80:81], 1, v2
    v_cmp_eq_i32 s[82:83], 2, v2
    v_cmp_eq_i32 s[84:85], 3, v2
    v_cndmask_b32 v{DF}, 0, v3, s[78:79]
    v_cndmask_b32 v{DF+1}, 0, v3, s[80:81]
    v_cndmask_b32 v{DF+2}, 0, v3, s[82:83]
    v_cndmask_b32 v{DF+3}, 0, v3, s[84:85]
    s_and_b32 s41, s56, 1
    s_lshl_b32 s41, s41, 5
    s_lshr_b32 s{S_FO}, s2, 3
    s_add_u32 s{S_FO}, s{S_FO}, s41
    s_mul_i32 s{S_FO}, s{S_FO}, {AFS}
    s_and_b32 s41, s2, 7
    s_lshl_b32 s41, s41, 1
    s_add_u32 s41, s41, s5
    s_lshl_b32 s41, s41, 2
    s_add_u32 s{S_FO}, s{S_FO}, s41
    s_add_u32 s{S_FO}, s{S_FO}, {AF_OFF}
    """)

def post_b16(a):
    lu = a.label("uok")
    a("F_pp:")
    tails(a)
    l2 = a.label("uj")
    a(f"s_waitcnt vmcnt(28)\ns_cmp_eq_u32 s55, 2\ns_cbranch_scc1 {l2}\ns_cmp_eq_u32 s55, 1\ns_cbranch_scc1 {lu}")
    xf_addr(a, 41)
    poll(a, XFL, 14, S_WS, "s41", -1, f"v{VT}")
    u_loads(a, None)
    a(f"{lu}:\ns_waitcnt vmcnt(0)\n{l2}:")
    stamp(a, "ps1")
    a(f"""
    ds_write_b128 v{UA}, {vr(UF)}
    ds_write_b128 v{UA}, {vr(UF+4)} offset:2048
    s_mov_b64 exec, 1
    ds_add_u32 v{VCN}, v{VONE} offset:{C_PS}
    s_mov_b64 exec, -1
    """)
    lds_wait(a, VCN, C_PS, 4, 2)
    stamp(a, "ps2")
    a(f"s_setprio {O.cvprio}")
    CAC = KW; POOL = list(range(KW+32, 256, 4))
    mf = []; loads = {}
    for cls in range(4):
        for k in range(8):
            loads[("A",cls,k)] = (lambda r, cls=cls, k=k: [f"ds_read_b64 v[{r}:{r+1}], v{CA} offset:{512*(7-k)+192-64*cls}", f"ds_read_b64 v[{r+2}:{r+3}], v{CA} offset:{512*(7-k)+192-64*cls+8}"])
            loads[("B",cls,k)] = (lambda r, cls=cls, k=k: [f"ds_read_b128 {vr(r)}, v{CB} offset:{512*k+192-64*cls}"])
        for k in range(8):
            for tau in range(k, 8):
                first = (cls == 0 and k == 0)
                mf.append((f"v_mfma_f32_16x16x32_bf16 {vr(CAC+4*tau)}, {{1}}, {{0}}, {0 if first else vr(CAC+4*tau)}", [("A",cls,k), ("B",cls,tau-k)]))
        if cls == 0:
            for tau in range(8):
                mf.insert(8+tau, (f"v_mfma_f32_16x16x32_bf16 {vr(CAC+4*tau)}, {{0}}, {vr(DF)}, {vr(CAC+4*tau)}", [("B",0,tau)]))
    pipeline(a, mf, loads, POOL[:O.cpool], per_gap=O.cgap, lead=14)
    stamp(a, 'cv_m')
    FR = KW+32
    a(f"""
    s_lshl_b32 s41, s5, 2
    v_add_u32 v3, s41, v{VCN}
    s_mov_b64 exec, 1
    ds_add_u32 v3, v{VONE} offset:{C_KF}
    s_mov_b64 exec, -1
    s_mul_i32 s41, s5, {4*PC}
    s_and_b32 s40, s56, 1
    s_lshl_b32 s44, s40, 12
    s_add_u32 s41, s41, {LC}
    s_add_u32 s45, s41, s44
    v_lshl_add_u32 v4, v1, 4, s45
    s_xor_b32 s44, s44, 0x1000
    s_add_u32 s45, s41, s44
    v_lshl_add_u32 v13, v1, 4, s45
    s_mul_i32 s44, s40, {128*ATP}
    s_add_u32 s42, s91, s44
    """)
    lds_wait(a, 3, C_KF, 3, 2)
    h1 = a.label("h1"); hj = a.label("hj")
    a(f"s_bitcmp1_b32 s56, 0\ns_cbranch_scc1 {h1}")
    for k in range(4): a(f"ds_write_b128 v13, {vr(CAC+16+4*k)} offset:{1024*k}")
    a(f"s_branch {hj}\n{h1}:")
    for k in range(4): a(f"ds_write_b128 v13, {vr(CAC+4*k)} offset:{1024*k}")
    for k in range(8): a(f"v_mov_b64 {pr(CAC+2*k)}, {pr(CAC+16+2*k)}")
    a(f"{hj}:\ns_mov_b64 exec, 1\nds_add_u32 v3, v{VONE} offset:{C_KF}\ns_mov_b64 exec, -1")
    lds_wait(a, 3, C_KF, 5, 2)
    stamp(a, 'cv_x')
    for k in range(4): a(f"ds_read_b128 {vr(FR+4*k)}, v4 offset:{1024*k}")
    for k in range(4):
        U = FR+16+4*k
        a(f"s_waitcnt lgkmcnt({3-k})")
        for r in range(4): a(f"v_add_f32 v{CAC+4*k+r}, v{CAC+4*k+r}, v{FR+4*k+r}")
        a(f"v_cvt_pk_bf16_f32 v{U}, v{CAC+4*k}, v{CAC+4*k+1}\nv_cvt_pk_bf16_f32 v{U+1}, v{CAC+4*k+2}, v{CAC+4*k+3}")
        a(f"s_add_u32 s44, s42, {k*32*ATP}\nbuffer_store_dwordx2 {pr(U)}, v{CS_}, {sr(S_WS)}, s44 offen sc1")
    stamp(a, "conv_end")
    prod_tail(a)
O.cpool = 32; O.apf = 0; O.cop = []; O.up3 = 12; O.tl2 = 1; O.epg = 6; O.l2pf = 1; O.kstream = 1; O.wpn = 1; O.hyb = 3; O.k8 = 0; O.phi = 's_mov_b32 s60, 0'; O.opol = ''; O.cpf = 1; O.tch = 0; O.wb1 = 4; O.map2 = 1; O.go_at = 7; O.epk = 0; O.lalign = None; O.cvprio = 1; O.noa = 0; O.nob = 0; O.noconv = 0; O.hpol = 'sc1'; O.rotm = 7; O.hgap = 3; O.wpf = 9; O.pprio = 0; O.dsn = 5; O.pair_at = 36; O.cgap = 2


E1B = 3*SLOT; E2B = XR + 4*HS
def k8_pre(a):
    a(f"""
    s_lshr_b32 s5, s56, 1
    s_and_b32 s40, s56, 1
    s_lshl_b32 s40, s40, 8
    s_mul_i32 s41, s5, {48*512}
    s_add_u32 s41, s41, s40
    s_add_u32 s41, s41, {E1B}
    v_lshl_add_u32 v200, v1, 2, s41
    """)
    for r in range(1, 8): a(f"v_xor_b32 v{200+r}, {r<<4}, v200")
def k8_head(a, W):
    AR, PH, T, DT, C2 = W, W+1, W+2, W+5, W+6
    V = PV
    a(f"""
    s_lshl_b32 s3, s5, 4
    s_lshr_b32 s3, s{S_LDT}, s3
    s_lshl_b32 s3, s3, 16
    v_mov_b32 v{DT}, {hex(LOG2E)}
    v_mul_f32 v{DT}, s3, v{DT}
    v_lshlrev_b32 v{V}, 16, v{V}
    v_lshlrev_b32 v{V+1}, 16, v{V+1}
    v_mul_f32 v{V}, {hex(LOG2E)}, v{V}
    v_exp_f32 v{V}, v{V}
    v_exp_f32 v{DT}, v{DT}
    v_lshlrev_b32 v{V+2}, 16, v{V+2}
    v_cvt_pk_bf16_f32 v{T}, v{DT}, v{V}
    v_lshlrev_b32 v{DT}, 16, v{T}
    v_and_b32 v{V}, 0xffff0000, v{T}
    v_mul_f32 v{AR}, v{V}, v{DT}
    v_mul_f32 v{PH}, v{V+1}, v{DT}
    v_mul_f32 v{AR}, {hex(LOG2E ^ 0x80000000)}, v{AR}
    v_mul_f32 v{PH}, {hex(INV2PI)}, v{PH}
    """)
def k8_cm(a, ops):
    for (o,x,w,t) in ops: a(f"v_pk_mul_f32 {pr(t)}, {pr(x)}, {pr(w)} op_sel_hi:[1,0]")
    for (o,x,w,t) in ops: a(f"v_pk_fma_f32 {pr(o)}, {pr(x)}, {pr(w)}, {pr(t)} op_sel:[1,1,0] op_sel_hi:[0,1,1] neg_lo:[1,0,0]")
def k8_anchors(a, anc, AR, PH, TT):
    for i, (o, p) in enumerate(anc): a(f"v_mul_f32 v{TT+2*i}, {hex(f2u(float(p)))}, v{AR}\nv_mul_f32 v{TT+2*i+1}, {hex(f2u(float(p)))}, v{PH}")
    for i, (o, p) in enumerate(anc): a(f"v_fract_f32 v{TT+2*i+1}, v{TT+2*i+1}\nv_exp_f32 v{TT+2*i}, v{TT+2*i}")
    for i, (o, p) in enumerate(anc): a(f"v_cos_f32 v{o}, v{TT+2*i+1}\nv_sin_f32 v{o+1}, v{TT+2*i+1}")
    a("s_nop 0")
    for i, (o, p) in enumerate(anc): a(f"v_pk_mul_f32 {pr(o)}, {pr(o)}, {pr(TT+2*i)} op_sel_hi:[1,0]")
def k8_part0(a):
    W = KW; AR, PH, DT, C2 = W, W+1, W+5, W+6
    W8, W16, C3, Y, Y2, W128, W256, TT, PK = W+8, W+10, W+12, W+14, W+16, W+18, W+20, W+24, W+40
    k8_head(a, W)
    a(f"""
    v_lshlrev_b32 v{PV+3}, 16, v{PV+3}
    v_add_f32 v{DT}, v{DT}, v{DT}
    v_mul_f32 v{C2}, v{PV+2}, v{DT}
    v_mul_f32 v{C2+1}, v{PV+3}, v{DT}
    """)
    k8_anchors(a, [(W8, 8), (W16, 16), (Y, 1024), (Y2, 1152), (W256, 256)], AR, PH, TT)
    k8_cm(a, [(C3, C2, W8, TT)])
    for i in range(8):
        pk = PK + 4*(i % 2)
        a(f"v_cvt_pk_bf16_f32 v{pk}, v{C2}, -v{C2+1}\nv_cvt_pk_bf16_f32 v{pk+1}, v{C3}, -v{C3+1}")
        if i < 5: a(f"v_cvt_pk_bf16_f32 v{pk+2}, v{Y}, v{Y+1}")
        if i < 4: a(f"v_cvt_pk_bf16_f32 v{pk+3}, v{Y2}, v{Y2+1}")
        ops = []
        if i < 7: ops += [(C2, C2, W16, TT), (C3, C3, W16, TT+2)]
        if i < 4: ops += [(Y, Y, W256, TT+4)]
        if i < 3: ops += [(Y2, Y2, W256, TT+6)]
        k8_cm(a, ops)
        a(f"ds_write2st64_b32 v{208+i}, v{pk}, v{pk+1} offset0:{4*i} offset1:{4*i+2}")
        if i < 4: a(f"ds_write2st64_b32 v{200+i}, v{pk+2}, v{pk+3} offset0:{64+4*i} offset1:{64+4*i+2}")
        if i == 4: a(f"ds_write_b32 v{204}, v{pk+2} offset:{40*512}")
def k8_part1(a):
    W = KW; AR, PH = W, W+1
    Fk = lambda k: W+6+2*k; Ca = lambda k: W+20+2*k
    TT = W+36; O4 = [W+48+2*i for i in range(4)]; PK = 128
    k8_head(a, W)
    k8_anchors(a, [(Fk(1), 1), (Fk(2), 2), (Ca(1), 128), (Ca(2), 256)], AR, PH, TT)
    have = set()
    def put(row, x):
        if x is None: a(f"v_mov_b32 v{PK+row}, 0x3f80")
        else: a(f"v_cvt_pk_bf16_f32 v{PK+row}, v{x}, v{x+1}")
        have.add(row)
    done = set()
    def flush():
        for r in range(0, 32, 2):
            if r not in done and r in have and r+1 in have:
                a(f"ds_write2st64_b32 v{200+(r//2)%8}, v{PK+r}, v{PK+r+1} offset0:{2*r} offset1:{2*r+2}"); done.add(r)
    crow = {1:8, 2:16, 3:20, 4:24, 5:26, 6:28, 7:30}
    put(0, None); put(1, Fk(1)); put(2, Fk(2)); put(8, Ca(1)); put(16, Ca(2))
    for k in (3, 5, 7):
        ops = [(Fk(k), Fk(k-2), Fk(2), TT), (Ca(k), Ca(k-2), Ca(2), TT+2)]
        if k < 7: ops += [(Fk(k+1), Fk(k-1), Fk(2), TT+4), (Ca(k+1), Ca(k-1), Ca(2), TT+6)]
        k8_cm(a, ops); flush()
        put(k, Fk(k)); put(crow[k], Ca(k))
        if k < 7: put(k+1, Fk(k+1)); put(crow[k+1], Ca(k+1))
    prods = [(8+k, Ca(1), Fk(k)) for k in range(1,8)] + [(16+i, Ca(2), Fk(2*i)) for i in (1,2,3)] + [(20+i, Ca(3), Fk(2*i)) for i in (1,2,3)] + [(crow[c]+1, Ca(c), Fk(4)) for c in (4,5,6,7)]
    for i in range(0, len(prods), 4):
        grp = prods[i:i+4]
        k8_cm(a, [(O4[k], x, w, TT+2*k) for k, (r, x, w) in enumerate(grp)]); flush()
        for k, (r, x, w) in enumerate(grp): put(r, O4[k])
    flush(); assert len(done) == 16
def k8_mfma_pre(a, tile_s, ch_s):
    a(f"""
    v_and_b32 v2, 15, v1
    v_lshrrev_b32 v3, 4, v1
    v_lshrrev_b32 v4, 1, v2
    v_xor_b32 v4, v4, v3
    v_lshlrev_b32 v4, 4, v4
    v_lshl_add_u32 v4, v2, 9, v4
    s_mul_i32 s40, s{ch_s}, 3
    s_add_u32 s40, s40, s{tile_s}
    s_lshl_b32 s40, s40, 13
    s_add_u32 s40, s40, {E1B}
    v_add_u32 v214, s40, v4
    v_xor_b32 v215, 64, v214
    s_lshl_b32 s40, s{ch_s}, 13
    s_add_u32 s40, s40, {E2B}
    v_add_u32 v216, s40, v4
    v_xor_b32 v217, 64, v216
    """)
def k8_mfma(a):
    FR = 128; AK = 220
    for ks in range(8):
        a(f"ds_read_b128 {vr(FR+8*ks)}, v{214+(ks&1)} offset:{(ks>>1)*128}")
        a(f"ds_read_b128 {vr(FR+8*ks+4)}, v{216+(ks&1)} offset:{(ks>>1)*128}")
    for ks in range(8):
        a(f"s_waitcnt lgkmcnt({14-2*ks})")
        a(f"v_mfma_f32_16x16x32_bf16 {vr(AK+4*(ks&1))}, {vr(FR+8*ks)}, {vr(FR+8*ks+4)}, {vr(AK+4*(ks&1)) if ks > 1 else 0}")
    a("s_nop 7")
    a(f"v_pk_add_f32 {pr(AK)}, {pr(AK)}, {pr(AK+4)}\nv_pk_add_f32 {pr(AK+2)}, {pr(AK+2)}, {pr(AK+6)}")
    a(f"v_cvt_pk_bf16_f32 v{AK}, v{AK}, v{AK+1}\nv_cvt_pk_bf16_f32 v{AK+1}, v{AK+2}, v{AK+3}")

def dma_setup(a, sp):
    a(f"""
    v_lshrrev_b32 v2, 4, v1
    v_bfe_u32 v3, v1, 1, 3
    s_and_b32 s41, s{sp}, 1
    s_lshl_b32 s41, s41, 2
    v_xor_b32 v3, v3, v2
    v_xor_b32 v3, s41, v3
    v_and_b32 v4, 1, v1
    v_lshl_or_b32 v3, v3, 1, v4
    v_mul_u32_u24 v4, 3584, v2
    v_lshl_add_u32 v8, v3, 4, v4
    v_and_b32 v3, 7, v1
    v_xor_b32 v3, v3, v2
    v_lshrrev_b32 v4, 3, v1
    v_lshlrev_b32 v4, 10, v4
    v_lshl_add_u32 v9, v3, 4, v4
    v_xor_b32 v10, 64, v9
    v_add_u32 v10, 0x1c00, v10
    v_add_u32 v12, {4*3584-2048}, v8
    s_mul_i32 s42, s{sp}, {8*3584}
    s_lshl_b32 s43, s7, 8
    s_add_u32 s42, s42, s43
    s_add_u32 s50, s42, {512*3584}
    s_mov_b32 s47, s42
    s_lshl_b32 s43, s6, 17
    s_lshl_b32 s44, s{sp}, 14
    s_add_u32 s43, s43, s44
    s_mov_b32 s46, 0
    s_lshl_b32 s44, s{sp}, 12
    s_lshl_b32 s45, s{sp}, 11
    s_add_u32 s45, s45, {XR}
    """)
def wu_fix(a): a(f"s_sub_u32 s{S_WU}, s{S_WU}, 1024\ns_subb_u32 s{S_WU+1}, s{S_WU+1}, 0")
def xhalf(h, tag):
    sig, hh = h >> 1, h & 1
    pre = f"s_add_u32 m0, s45, {(h % 7)*HS}\n"
    if hh == 0: pre += "s_add_u32 s48, s46, s43"
    else:
        pre += "s_add_u32 s48, s48, 0x10000\ns_add_u32 s46, s46, 128"
        if O.hyb and sig == O.hyb-1: pre += "\ns_lshl_b32 s3, s60, 7\ns_add_u32 s46, s46, s3"
        elif O.hyb and sig >= O.hyb: pre += f"\ns_cmp_eq_u32 s46, 0x400\ns_cselect_b32 s46, {O.hyb*128}, s46"
    return [(pre, f"buffer_load_dwordx4 v9, {sr(S_X)}, s48 offen lds", tag), ("", f"buffer_load_dwordx4 v10, {sr(S_X)}, s48 offen offset:1024 lds", tag)]
ADV = f"s_add_u32 s47, s47, {32*3584}\ns_cmp_eq_u32 s47, s50\ns_cselect_b32 s47, s42, s47"
def group(g):
    b = (g % NW)*SLOT
    adv = f"s_add_u32 s47, s47, {32*3584}" if g else "s_nop 0"
    if O.hyb and g == 2*O.hyb: adv += f"\ns_mov_b32 s42, s47\ns_mul_i32 s3, s60, {64*3584}\ns_add_u32 s47, s47, s3"
    elif O.hyb and g > 2*O.hyb and g % 2 == 0: adv += "\ns_cmp_eq_u32 s47, s50\ns_cselect_b32 s47, s42, s47"
    o = [(f"s_add_u32 m0, s44, {b}\n{adv}", f"buffer_load_dwordx4 v8, {sr(S_WG)}, s47 offen lds", g),
         ("", f"buffer_load_dwordx4 v8, {sr(S_WU)}, s47 offen offset:1024 lds", g),
         ("", f"buffer_load_dwordx4 v12, {sr(S_WG)}, s47 offen offset:2048 lds", g),
         ("", f"buffer_load_dwordx4 v12, {sr(S_WU)}, s47 offen offset:3072 lds", g)]
    if g < 15: o += xhalf(g+1, g)
    return o
NCG = 0

def prefetches(a):
    if O.cpf: a(f"""
    s_getpc_b64 s[36:37]
    F_pc:
    s_sub_u32 s36, s36, F_pc-{NAME}
    s_subb_u32 s37, s37, 0
    s_bfe_u32 s38, s2, 0x30003
    s_lshl_b32 s38, s38, 2
    s_add_u32 s38, s38, s56
    s_lshl_b32 s38, s38, 10
    s_min_u32 s38, s38, F_last-{NAME}-1024
    v_lshlrev_b32 v2, 4, v1
    v_add_u32 v2, s38, v2
    global_load_dwordx4 v[240:243], v2, s[36:37]
    """)
    if O.tch: a(f"""
    v_lshlrev_b32 v2, 21, v1
    s_mov_b64 exec, 0x7f
    buffer_load_dword v244, v2, {sr(S_WS)}, 0 offen
    s_mov_b64 exec, 1
    buffer_load_dword v245, v2, {sr(S_OUT)}, 0 offen
    buffer_load_dword v246, v2, {sr(S_WD)}, 0 offen
    s_mov_b64 exec, -1
    """)

def g1_producer(a):
    vm = VM(a)
    dma_setup(a, 56); a('s_waitcnt lgkmcnt(0)'); wu_fix(a)
    stamp(a, "p_start")
    units = [(u, -1) for u in xhalf(0, 0)]
    for g in range(NCG, 16):
        for k, u in enumerate(group(g)):
            h = g+1
            if k < 4: mb = g-5 if g > 5 else -1
            else: mb = -1 if h < 7 else 2*((h-7) >> 1) + 2
            units.append((u, mb))
    for k in range(NRG): units += [(u, WAVAIL[k]) for u in wdA_units(k)]
    def take(s, n):
        o = []
        while units and len(o) < n and units[0][1] <= s: o.append(units.pop(0)[0])
        return o
    def emit(dmas, lines):
        n = len(dmas); cuts = [i*len(lines)//n for i in range(n)] if n else []
        k = 0
        for i in range(len(lines)+1):
            while k < n and cuts[k] == i:
                a(dmas[k][0]); vm.issue(dmas[k][1], dmas[k][2]); k += 1
            if i < len(lines): a.lines.append(lines[i])
    def L(fn, *args, **kw):
        b = Asm("B"); fn(b, *args, **kw); return b.lines
    if O.k8:
        vm.ops = ["par"]*4
        k8_pre(a); kaddr_setup(a)
        a("s_and_b32 s38, s56, 1"); k8_mfma_pre(a, 38, 5)
        emit(take(-1, 20), [])
        vm.wait("par", "lgkmcnt(0)")
        stamp(a, "p_par")
        k8_part1(a)
        a("s_waitcnt lgkmcnt(0)\ns_barrier")
        k8_mfma(a)
        l1 = a.label("kt1"); l2 = a.label("ktd")
        a(f"""
        s_lshl_b32 s41, s5, 2
        v_add_u32 v3, s41, v{VCN}
        ds_write_b32 v3, v{VONE} offset:{C_KF}
        s_bitcmp1_b32 s56, 0
        s_cbranch_scc1 {l1}
        ds_write_b64 v{KA0}, v[220:221]
        s_branch {l2}
        {l1}:
        ds_write_b32 v{KA1a}, v220 offset:512
        ds_write_b32 v{KA1b}, v221 offset:512
        {l2}:
        s_waitcnt lgkmcnt(0)
        """)
        stamp(a, "p_kg")
        rest = L(late_loads) + L(prod_setup) + ["    s_waitcnt lgkmcnt(0)"] + L(conv_setup)
        per = (len(rest) + 9)//10
        bg = {1+i: rest[i*per:(i+1)*per] for i in range(10)}
    else:
        emit(take(-1, 20), [])
        late_loads(a)
        prefetches(a); vm.ops += ["pf"]*(O.cpf + 3*O.tch)
        emit(take(-1, O.up3), L(prod_setup))
        stamp(a, "p_kg")
        a("s_waitcnt lgkmcnt(0)")
        conv_setup(a)
        if O.l2pf:
            a("s_bfe_u32 s88, s2, 0x20003")
            for m in range(O.l2pf):
                a(f"""
                s_add_u32 s89, s88, {4*m}
                s_min_u32 s89, s89, 9
                s_lshl_b32 s90, s60, 1
                s_add_u32 s89, s89, s90
                s_cmp_ge_u32 s89, {16-2*O.hyb}
                s_cselect_b32 s90, {16-2*O.hyb}, 0
                s_sub_u32 s89, s89, s90
                s_add_u32 s89, s89, {2*O.hyb}
                s_mul_i32 s89, s89, {32*3584}
                s_add_u32 s89, s89, s42
                """)
                for k_, (v_, srd_, off_) in enumerate(((8, S_WG, 0), (8, S_WU, 1024), (12, S_WG, 2048), (12, S_WU, 3072))):
                    vm.issue(f"buffer_load_dwordx4 {vr(224+4*k_)}, v{v_}, {sr(srd_)}, s89 offen offset:{off_}", "l2pf")
        a("s_barrier")
        bg = {}
    for s in range(17):
        if s <= 15:
            assert any(t == s for t in vm.ops) and not any(u[0][2] == s for u in units), s
            vm.wait(s)
        if s == 16: a("s_waitcnt lgkmcnt(0)")
        a("s_barrier")
        stamp(a, f"pb{s}")
        if s == 11:
            vm.wait("tag")
            tags_check(a)
        if s == O.xfc:
            vm.wait("xf")
            lu_ = a.label("nou")
            a(f"v_cmp_ne_u32 vcc, v{VT}, v{XFL}\ns_cmp_eq_u64 vcc, 0\ns_cselect_b32 s55, 2, 0\ns_cbranch_scc0 {lu_}")
            u_loads(a, None)
            a(f"{lu_}:")
        if s == 16:
            if O.xfc > 16: a("s_mov_b32 s55, 0")
            lu_ = a.label("nox2")
            a(f"s_cmp_eq_u32 s55, 2\ns_cbranch_scc1 {lu_}")
            xf_addr(a, 36)
            a(f"buffer_load_dword v{XFL}, v14, {sr(S_WS)}, s36 offen sc1\n{lu_}:")
        emit(take(s, O.quota[s] if s < 16 else 99), bg.get(s, []))
        if O.wpf and s == O.wpf-1:
            a(f"""
            s_lshr_b32 s88, s2, 3
            s_sub_u32 s88, s88, 4
            s_lshl_b32 s88, s88, 2
            s_add_u32 s88, s88, s56
            s_lshl_b32 s88, s88, 14
            s_and_b32 s89, s2, 1
            s_lshl_b32 s89, s89, 9
            s_add_u32 s88, s88, s89
            s_and_b32 s89, s2, 6
            s_lshl_b32 s89, s89, 11
            v_lshrrev_b32 v229, 5, v1
            v_lshlrev_b32 v229, 10, v229
            v_and_b32 v228, 31, v1
            v_lshl_add_u32 v228, v228, 4, v229
            """)
        for _ in range(O.wpn if (O.wpf and O.wpf <= s < O.wpf + 8//O.wpn) else 0):
            a("s_add_u32 s90, s88, s89")
            vm.issue(f"buffer_load_dwordx4 v[224:227], v228, {sr(S_WD)}, s90 offen", "wpf")
            if O.map2 == 2:
                a("s_xor_b32 s90, s90, 0x2200")
                vm.issue(f"buffer_load_dwordx4 v[232:235], v228, {sr(S_WD)}, s90 offen", "wpf")
            a("s_add_u32 s89, s89, 0x800\ns_and_b32 s89, s89, 0x3fff")
        if s == 4: vm.issue(f"buffer_load_dword v{VT}, v14, {sr(S_DBG)}, 0 offen sc1", "tag")
        if s == O.xfc-2:
            xf_addr(a, 36)
            vm.issue(f"buffer_load_dword v{XFL}, v14, {sr(S_WS)}, s36 offen sc1", "xf")
        if s == 12: granule_issue(a, vm)
        if s == 15: granule_check(a, vm)
    assert not units
    stamp(a, "p_b16")
    expand_gather(a)
    a(f"s_lshl_b32 s41, s56, 2\nv_add_u32 v3, s41, v{VCN}")
    vm.wait("wd")
    a(f"s_mov_b64 exec, 1\nds_write_b32 v3, v{VONE} offset:{C_PAIR}\ns_mov_b64 exec, -1")
    lu_ = a.label("nou2")
    a(f"s_cmp_eq_u32 s55, 2\ns_cbranch_scc1 {lu_}\ns_waitcnt vmcnt(0)")
    a(f"v_cmp_ne_u32 vcc, v{VT}, v{XFL}\ns_cmp_eq_u64 vcc, 0\ns_cselect_b32 s55, 2, 0\ns_cbranch_scc0 {lu_}")
    u_loads(a, None)
    a(f"{lu_}:")
    tails_prep(a)
    lds_signal(a, VCN, C_KX, VONE)
    a.lines += expand_writes()
    lds_wait(a, VCN, C_KX, 4, 2)
    a("s_waitcnt vmcnt(0)")
    post_b16(a)

ACC = 128
def acc(t, mat, nt): return ACC + ((nt*4+t)*2+mat)*4
def FA(b, t, mat): return 32 + 48*b + (t*2+mat)*4
def FB(b, nt): return 32 + 48*b + 32 + 4*nt
def g1_consumer(a):
    VA, VB = 8, 12
    a(f"""
    s_setprio {O.cprio}
    v_mov_b32 v{VCN}, {CNT}
    v_lshl_add_u32 v2, v1, 2, v{VCN}
    v_mov_b32 v3, 0
    ds_write_b32 v2, v3
    """)
    late_loads(a)
    if O.cop:
        a(f"s_sub_u32 s40, s2, 32\ns_lshl_b32 s40, s40, 2\ns_add_u32 s40, s40, s{S_WAVE}\ns_lshl_b32 s40, s40, 11\nv_lshlrev_b32 v2, 4, v1")
        for srd_ in O.cop:
            for k_ in range(2): a(f"buffer_load_dwordx4 {vr(36+4*k_)}, v2, {sr(srd_)}, s40 offen offset:{1024*k_}")
    a(f"""
    s_and_b32 s40, s{S_WAVE}, 1
    s_lshr_b32 s41, s{S_WAVE}, 1
    v_lshrrev_b32 v2, 4, v1
    v_bfe_u32 v3, v1, 2, 2
    v_and_b32 v4, 3, v1
    v_and_b32 v5, 1, v2
    v_lshl_or_b32 v5, v5, 2, v3
    s_lshl_b32 s42, s40, 2
    v_xor_b32 v5, s42, v5
    v_lshlrev_b32 v5, 5, v5
    v_lshl_add_u32 v5, v4, 3, v5
    v_lshl_add_u32 v5, v3, 8, v5
    v_lshl_add_u32 v{VA}, v2, 12, v5
    v_xor_b32 v{VA+1}, 32, v{VA}
    v_xor_b32 v{VA+2}, 64, v{VA}
    v_xor_b32 v{VA+3}, 96, v{VA}
    v_and_b32 v6, 15, v1
    v_lshrrev_b32 v7, 1, v6
    v_xor_b32 v7, v7, v2
    v_lshlrev_b32 v7, 4, v7
    v_lshl_add_u32 v7, v6, 7, v7
    s_lshl_b32 s42, s41, 13
    s_add_u32 s42, s42, {XR}
    v_add_u32 v{VB}, s42, v7
    v_xor_b32 v{VB+1}, 64, v{VB}
    s_lshl_b32 s42, s40, 8
    s_add_u32 s42, s42, {AUXL}
    v_lshl_add_u32 v14, v2, 4, s42
    s_lshl_b32 s42, s41, 8
    s_add_u32 s42, s42, {AUXL+1024}
    v_lshl_add_u32 v44, v6, 4, s42
    v_mov_b32 v{VFL}, 0
    s_lshl_b32 s42, s6, 1
    s_add_u32 s42, s42, s41
    s_lshl_b32 s{S_FO}, s42, 2
    s_mul_i32 s42, s42, 28
    s_lshl_b32 s43, s7, 1
    s_add_u32 s43, s43, s40
    s_add_u32 s42, s42, s43
    s_lshl_b32 s50, s42, 13
    s_add_u32 s51, s50, 4096
    s_mul_i32 s42, s43, 37
    s_lshr_b32 s42, s42, 8
    s_add_u32 s{S_FO}, s{S_FO}, s42
    s_mul_i32 s{S_FO}, s{S_FO}, {HFS}
    s_mul_i32 s42, s42, 7
    s_sub_u32 s43, s43, s42
    s_lshl_b32 s43, s43, 2
    s_add_u32 s{S_FO}, s{S_FO}, s43
    s_add_u32 s{S_FO}, s{S_FO}, {HF_OFF}
    s_mov_b64 s[{S_FM}:{S_FM+1}], 1
    s_mov_b32 s44, 0
    s_mov_b32 s45, s41
    s_mov_b32 s52, {SLOT}
    """)
    if O.k8:
        k8_pre(a)
        a(f"s_mul_i32 s40, s5, {8192 - 48*512}\ns_add_u32 s40, s40, {E2B - E1B}")
        for r in range(8): a(f"v_add_u32 v{208+r}, s40, v{200+r}")
        a(f"""
        v_and_b32 v2, 15, v1
        v_lshrrev_b32 v3, 4, v1
        v_lshlrev_b32 v3, 7, v3
        v_lshl_add_u32 v3, v2, 1, v3
        s_mul_i32 s40, s5, {KTP}
        s_add_u32 s40, s40, {KT+1024}
        v_add_u32 v218, s40, v3
        s_waitcnt vmcnt(0) lgkmcnt(0)
        """)
        stamp(a, "c_par")
        k8_part0(a)
        a("s_mov_b32 s38, 2")
        k8_mfma_pre(a, 38, 5)
        stamp(a, "c_kv")
        lk = a.label("nok")
        a(f"s_waitcnt lgkmcnt(0)\ns_barrier\ns_bitcmp1_b32 s56, 0\ns_cbranch_scc1 {lk}")
        k8_mfma(a)
        a(f"""
        ds_write_b16 v218, v220
        ds_write_b16_d16_hi v218, v220 offset:32
        ds_write_b16 v218, v221 offset:64
        ds_write_b16_d16_hi v218, v221 offset:96
        {lk}:
        """)
        stamp(a, "c_kg")
    else:
        kaddr_setup(a)
        a(f"s_waitcnt vmcnt({2*len(O.cop)}) lgkmcnt(0)")
        stamp(a, "c_par")
        if O.kstream == 2: pass
        elif O.kstream: kgen_valu(a, scalar=False, stream=True)
        else:
            kgen_valu(a, scalar=False); stamp(a, "c_k1"); kgen_ds(a, kacc=AKACC)
        stamp(a, "c_kv")
        kgen_exchange(a, kacc=AKACC, ef=AEF, bar=True)
        stamp(a, "c_kg")
    a("v_lshlrev_b32 v16, 4, v1\nv_mov_b32 v17, v44")
    def reads(b, sp):
        out = [f"ds_read_b128 {vr(FB(b,nt))}, v{VB+sp} offset:{nt*2048}" for nt in range(4)]
        for t in range(4):
            for mat in range(2):
                for rho in range(2):
                    d = FA(b,t,mat)+2*rho
                    out.append(f"ds_read_b64_tr_b16 v[{d}:{d+1}], v{VA+t} offset:{rho*2048+mat*1024}")
        return out
    def advW():
        return [f"s_add_u32 s44, s44, 1", f"s_cmp_eq_u32 s44, {NW}", f"s_cselect_b32 s46, {-(NW-1)*SLOT & 0xffffffff}, s52", f"s_cselect_b32 s44, 0, s44"] + \
               [f"v_add_u32 v{VA+t}, s46, v{VA+t}" for t in range(4)]
    def advX():
        return [f"s_add_u32 s45, s45, 2", f"s_cmp_ge_u32 s45, 7", f"s_cselect_b32 s47, {-5*HS & 0xffffffff}, s52", f"s_cselect_b32 s49, 7, 0", "s_sub_u32 s45, s45, s49"] + \
               [f"v_add_u32 v{VB+k}, s47, v{VB+k}" for k in range(2)]
    def mfma(b, t, mat, nt, first=False):
        c = acc(t,mat,nt)
        return f"v_mfma_f32_16x16x32_bf16 {vr(c)}, {vr(FA(b,t,mat))}, {vr(FB(b,nt))}, {0 if first else vr(c)}"
    def stage(b, rd, late, post=(), first=False):
        ms = [mfma(b,t,mat,nt,first) for t in range(4) for mat in range(2) for nt in range(4)]
        late = list(late); post = list(post)
        for i, m in enumerate(ms):
            a(m)
            if i < len(rd): a(rd[i])
            elif i < 27 and late:
                for _ in range(3 if len(late) > 2*(27-i) else 2):
                    if late: a(late.pop(0))
            if i == 27: a("s_waitcnt lgkmcnt(0)\ns_barrier")
            if i >= 27:
                for _ in range(2):
                    if post: a(post.pop(0))
        assert not late and not post
    a("s_waitcnt vmcnt(0) lgkmcnt(0)\ns_barrier")
    stamp(a, "c_b0")
    for r in reads(0, 0): a(r)
    for x in advW(): a(x)
    a("s_waitcnt lgkmcnt(0)\ns_barrier")
    a("s_mov_b32 s48, 7")
    lp = a.label("g1loop"); lm = a.label("g1mid")
    stage(0, reads(1, 1), advW() + advX(), first=True)
    a(f"s_branch {lm}\n{lp}:")
    stage(0, reads(1, 1), advW() + advX())
    a(f"{lm}:")
    stage(1, reads(0, 0), advW())
    a(f"s_sub_u32 s48, s48, 1\ns_cmp_lg_u32 s48, 0\ns_cbranch_scc1 {lp}")
    NM = 20
    csr = lambda t, mat: f"ds_read_b128 {vr(FA(0,t,mat))}, v14 offset:{mat*512+t*64}"
    post = [f"ds_read_b128 {vr(NM)}, v17"] + [csr(t, mat) for t in range(3) for mat in range(2)]
    stage(0, reads(1, 1), [], post)
    stamp(a, "c_s15")
    a(csr(3,0)); a(csr(3,1))
    def corr_s(ksl, nt):
        return [f"v_fmac_f32 v{acc(t,mat,nt)+r}, v{FA(0,t,mat)+r}, v{NM+nt}" for t in (2*ksl, 2*ksl+1) for mat in range(2) for r in range(4)]
    def corr(ksl, nt):
        if not O.epk: return corr_s(ksl, nt)
        o = []
        for t in (2*ksl, 2*ksl+1):
            for mat in range(2):
                for hf in range(2):
                    c = acc(t,mat,nt)+2*hf; cs = FA(0,t,mat)+2*hf; nm = NM + (nt & ~1); sel = nt & 1
                    o.append(f"v_pk_fma_f32 {pr(c)}, {pr(cs)}, {pr(nm)}, {pr(c)} op_sel:[0,{sel},0] op_sel_hi:[1,{sel},1]")
        return o
    def fin(ksl, nt):
        o = []
        for t in (2*ksl, 2*ksl+1):
            for hf in range(2):
                g = acc(t,0,nt)+2*hf; u = acc(t,1,nt)+2*hf
                if O.epk: o.append(f"v_pk_mul_f32 {pr(g)}, {pr(g)}, {pr(u)}")
                else: o += [f"v_mul_f32 v{g}, v{g}, v{u}", f"v_mul_f32 v{g+1}, v{g+1}, v{u+1}"]
        d = acc(2*ksl,1,nt); k = 0
        for t in (2*ksl, 2*ksl+1):
            for hf in range(2):
                g = acc(t,0,nt)+2*hf
                o.append(f"v_cvt_pk_bf16_f32 v{d+k}, v{g}, v{g+1}"); k += 1
        o.append(f"buffer_store_dwordx4 {vr(d)}, v16, {sr(S_WS)}, s{50+ksl} offen offset:{nt*1024} sc1")
        return o
    groups = [(ksl, nt) for ksl in range(2) for nt in range(4)]
    if O.shadow == 9:
        q = []
        for gi, (ksl, nt) in enumerate(groups):
            if gi == 1: a("s_waitcnt lgkmcnt(0)"); q += corr_s(*groups[2])
            if gi >= 2: q += ([] if gi-2 == 2 else corr_s(*groups[gi-2])) + fin(*groups[gi-2])
            for m in [mfma(1, t, mat, nt) for t in (2*ksl, 2*ksl+1) for mat in range(2)]:
                a(m)
                for _ in range(O.epg):
                    if q: a(q.pop(0))
        for gi in (6, 7): q += corr_s(*groups[gi]) + fin(*groups[gi])
        for x in q: a(x)
    else:
        pre = set()
        for gi, (ksl, nt) in enumerate(groups):
            fill = []
            if gi == 1: a("s_waitcnt lgkmcnt(0)")
            if O.shadow == 4:
                if 1 <= gi <= 6: fill = corr_s(*groups[gi+1]); pre.add(gi+1)
                if gi == 7: fill = corr_s(*groups[0]); pre.add(0)
            elif O.shadow == 2:
                tgt = {1:3, 2:3, 3:5, 4:5, 5:7, 6:7}
                if gi in tgt:
                    c = corr_s(*groups[tgt[gi]]); fill = c[:8] if gi % 2 else c[8:]; pre.add(tgt[gi])
            n = len(fill)//4
            for k, m in enumerate([mfma(1, t, mat, nt) for t in (2*ksl, 2*ksl+1) for mat in range(2)]):
                a(m)
                for x in fill[n*k:n*k+n]: a(x)
        for gi in range(8):
            if gi not in pre:
                for x in corr(*groups[gi]): a(x)
            for x in fin(*groups[gi]): a(x)
    stamp(a, "c_end")

LA = LC
VX, VO = 9, 10
XF = 24; RS = 28
def tail_setup(a, vm):
    a(f"""
    v_lshrrev_b32 v2, 3, v0
    v_lshlrev_b32 v{VX}, 10, v2
    v_and_b32 v3, 7, v0
    v_lshl_add_u32 v{VX}, v3, 4, v{VX}
    s_lshl_b32 s55, s53, 16
    s_lshl_b32 s50, s54, 7
    s_add_u32 s55, s55, s50
    v_mul_u32_u24 v{VO}, {PP}, v2
    v_lshl_add_u32 v{VO}, v3, 5, v{VO}
    v_add_u32 v{VO}, {LA}, v{VO}
    v_and_b32 v4, 15, v2
    v_lshlrev_b32 v3, 1, v3
    v_xor_b32 v3, v3, v4
    v_lshlrev_b32 v3, 4, v3
    v_lshl_add_u32 v3, v4, 8, v3
    v_lshrrev_b32 v4, 4, v2
    v_lshl_add_u32 v14, v4, 14, v3
    v_xor_b32 v15, 16, v14
    v_lshlrev_b32 v2, 3, v2
    s_lshl_b32 s50, s53, 9
    s_add_u32 s50, s50, {ST_G}
    """)
    for t, tag in ((f"buffer_load_dwordx4 {vr(XF)}, v{VX}, {sr(S_X)}, s55 offen", "x"), (f"buffer_load_dwordx2 {pr(RS)}, v2, {sr(S_WS)}, s50 offen sc1", "rs")):
        if vm: vm.issue(t, tag)
        else: a(t)

def prod_tail(a):
    a(f"""
    F_ptail:
    s_mov_b64 exec, 1
    ds_add_u32 v{VCN}, v{VONE} offset:{C_PS}
    s_mov_b64 exec, -1
    v_lshlrev_b32 v12, 4, v1
    v_lshlrev_b32 v13, 2, v1
    s_lshl_b32 s42, s53, 3
    s_add_u32 s42, s42, s54
    s_mul_i32 s42, s42, {ATP}
    s_lshl_b32 s41, s56, 11
    s_add_u32 s42, s42, s41
    s_add_u32 s42, s42, {AT_OFF}
    s_lshr_b32 s46, s53, 4
    s_lshl_b32 s46, s46, 3
    s_add_u32 s46, s46, s54
    s_lshl_b32 s46, s46, 2
    s_add_u32 s46, s46, s56
    s_mul_i32 s46, s46, {AFS}
    s_add_u32 s46, s46, {AF_OFF}
    v_and_b32 v16, 7, v1
    v_mul_u32_u24 v18, {2*PP}, v16
    v_lshrrev_b32 v16, 3, v1
    v_lshl_add_u32 v18, v16, 2, v18
    s_lshl_b32 s49, s56, 6
    s_add_u32 s49, s49, {LA}
    v_add_u32 v18, s49, v18
    v_mov_b32 v5, s{S_TAG}
    v_mov_b32 v4, 0
    s_waitcnt vmcnt(0)
    s_mov_b64 exec, 1
    buffer_store_dword v5, v4, {sr(S_WS)}, s{S_FO} offen sc1
    s_mov_b64 exec, -1
    """)
    stamp(a, 'a_st0')
    AG = 96; AU = 112
    lds_wait(a, VCN, C_PS, 8, 3)
    lds_wait(a, VCN, 52, 4, 3, sleep=4)
    tail_setup(a, None)
    poll(a, 5, 13, S_WS, "s46", 0xffff, f"s{S_TAG}", sleep=O.asleep)
    stamp(a, "hflag")
    for k in range(2): a(f"buffer_load_dwordx4 {vr(AG+4*k)}, v12, {sr(S_WS)}, s42 offen offset:{1024*k} sc1")
    for k in range(2):
        a(f"s_waitcnt vmcnt({1-k})")
        for j in range(4):
            a(f"v_lshlrev_b32 v{AU+8*k+2*j}, 16, v{AG+4*k+j}\nv_and_b32 v{AU+8*k+2*j+1}, 0xffff0000, v{AG+4*k+j}")
        for e in range(8): a(f"ds_write_b32 v18, v{AU+8*k+e} offset:{(16*(e&3) + (e>>2))*PP + 32*k}")
    lr = a.label("rsr"); lo = a.label("rso")
    a(f"""
    v_readlane_b32 s41, v{VT}, s53
    s_mov_b32 s58, {POLL_MAX}
    {lr}:
    s_waitcnt vmcnt(0)
    v_cmp_ne_u32 vcc, s41, v{RS+1}
    s_cbranch_vccz {lo}
    buffer_load_dwordx2 {pr(RS)}, v2, {sr(S_WS)}, s50 offen sc1
    s_sub_u32 s58, s58, 1
    s_cmp_lg_u32 s58, 0
    s_cbranch_scc1 {lr}
    {lo}:
    """)
    stamp(a, "g2_end")
    a("s_branch F_fin")

def gemm2(a):
    VA, VP, V3 = 16, 20, 12
    V3 = 28
    VH, VQ, VW2 = 8, 13, 12
    AC = 144
    R = NRG
    a(f"""
    F_g2:
    s_setprio 3
    v_mov_b32 v{VCN}, {CNT}
    v_lshrrev_b32 v4, 4, v1                     ; g
    v_bfe_u32 v2, v1, 3, 1
    v_and_b32 v3, 1, v4
    v_lshl_or_b32 v3, v3, 1, v2
    v_lshlrev_b32 v3, 5, v3
    v_and_b32 v4, 3, v1
    v_lshl_add_u32 v3, v4, 3, v3
    v_lshrrev_b32 v4, 2, v1
    v_lshl_add_u32 v3, v4, 7, v3
    s_lshl_b32 s52, s{S_WAVE}, 12
    v_add_u32 v{VA}, s52, v3
    v_xor_b32 v{VA+1}, 32, v{VA}
    v_xor_b32 v{VA+2}, 64, v{VA}
    v_xor_b32 v{VA+3}, 96, v{VA}
    """)
    for t in range(4): a(f"v_add_u32 v{VP+t}, 0x18000, v{VA+t}\nv_add_u32 v{V3+t}, 0x8000, v{VA+t}")
    wd_voff(a)
    lf = a.label("nofl")
    a(f"""
    s_lshl_b32 s41, s{S_WAVE}, 2
    v_add_u32 v7, s41, v{VCN}
    s_mul_i32 s86, s{S_WAVE}, {14*32*1024}
    s_lshl_b32 s41, s54, 7
    s_add_u32 s86, s86, s41
    s_add_u32 s87, s86, {14*32768}
    {rotc(44)}
    s_add_u32 s51, s44, {R-1}
    s_cmp_ge_u32 s51, 14
    s_cselect_b32 s41, 14, 0
    s_sub_u32 s51, s51, s41
    s_lshl_b32 s51, s51, 15
    s_add_u32 s51, s51, s86
    v_add_u32 v{VW2}, {8192-1024}, v{VWD}
    v_lshlrev_b32 v{VH}, 4, v1
    v_lshlrev_b32 v{VQ}, 2, v1
    s_lshl_b32 s47, s53, 2
    s_add_u32 s47, s47, s{S_WAVE}
    s_mul_i32 s47, s47, {HFS}
    s_add_u32 s47, s47, {HF_OFF}
    s_mul_i32 s45, s53, 56
    s_mul_i32 s48, s{S_WAVE}, 14
    s_add_u32 s45, s45, s48
    s_lshl_b32 s88, s45, 12
    s_add_u32 s89, s88, {14*4096}
    s_lshl_b32 s45, s44, 12
    s_add_u32 s45, s45, s88
    """)
    lds_wait(a, 7, C_PAIR, 1, 2)
    stamp(a, "g2a")
    def wread(reg, slot):
        base = WSLOT[slot]; o = []
        for t in range(4):
            for rho in range(2):
                off = base + rho*2048
                if off >= XR: v, off = VP+t, off - 0x18000
                elif off >= 65536 - 4096: v, off = V3+t, off - 0x8000
                else: v = VA+t
                o.append(f"ds_read_b64_tr_b16 v[{reg+4*t+2*rho}:{reg+4*t+2*rho+1}], v{v} offset:{off}")
        return o
    vm = VM(a)
    def wdma(step):
        k = step % 7
        if O.nob: return
        for hh in range(2):
            a((WADV if hh == 0 else "") + f"s_add_u32 m0, s52, {WSLOT[k] + hh*2048}\ns_add_u32 s49, s51, {hh*16384}")
            vm.issue(f"buffer_load_dwordx4 v{VWD}, {sr(S_WD)}, s49 offen lds", ("w", step))
            vm.issue(f"buffer_load_dwordx4 v{VW2}, {sr(S_WD)}, s49 offen offset:1024 lds", ("w", step))
    blocks = [32+16*i for i in range(7)] + [208, 224, 240]
    wreg = {s: blocks[s] for s in range(R)}
    free = blocks[R:]
    a(f"ds_read_b32 v5, v{VCN} offset:{C_TAG}")
    for s in range(R):
        for x in wread(wreg[s], s): a(x)
    a(f"s_waitcnt lgkmcnt(0)\nv_readfirstlane_b32 s{S_TAG}, v5")
    lf2 = a.label("nofl2")
    stamp(a, 'g2r')
    a(f"""
    s_cmp_eq_u64 s[{S_FM}:{S_FM+1}], 0
    s_cbranch_scc1 {lf2}
    s_waitcnt vmcnt({len(vm.ops)})
    s_mov_b64 exec, 1
    buffer_store_dword v5, v{VFL}, {sr(S_WS)}, s{S_FO} offen sc1
    s_mov_b64 exec, -1
    {lf2}:
    """)
    stamp(a, "flag")
    for s in range(R, R+O.wb1): wdma(s)
    a("s_mov_b64 exec, 0x7f")
    vm.issue(f"buffer_load_dword v2, v{VQ}, {sr(S_WS)}, s47 offen sc1", "hp")
    a("s_mov_b64 exec, -1")
    for s in range(R+O.wb1, 7+R): wdma(s)
    stamp(a, 'g2e')
    vm.wait("hp")
    lo = a.label("hok")
    a(f"s_mov_b64 exec, 0x7f\nv_cmp_ne_u32 vcc, s{S_TAG}, v2\ns_mov_b64 exec, -1\ns_cbranch_vccz {lo}")
    poll(a, 2, VQ, S_WS, "s47", 0x7f, f"s{S_TAG}")
    a(f"{lo}:")
    stamp(a, "hflag")
    hreg = {}; hn = [0]; pend = []
    def hqueue(keep=0):
        while hn[0] < 14 and len(free) > keep:
            step = hn[0]; hreg[step] = free.pop(0); hn[0] += 1
            for j in range(4):
                pre = "s_add_u32 s45, s45, 4096\ns_cmp_eq_u32 s45, s89\ns_cselect_b32 s45, s88, s45" if (step and j == 0) else ""
                pend.append((pre, f"buffer_load_dwordx4 {vr(hreg[step]+4*j)}, v{VH}, {sr(S_WS)}, s45 offen offset:{j*1024} {O.hpol}", ("h", step)))
    def pop():
        if pend:
            p = pend.pop(0); a(p[0]); vm.issue(p[1], p[2])
    hqueue()
    while pend: pop()
    a(f"s_setprio {O.g2prio}")
    for s in range(14):
        nxt = []
        if R <= s+1 <= 13:
            wreg[s+1] = free.pop(0)
            while any(p[2] == ("w", s+1) for p in pend): pop()
            if ("w", s+1) in vm.ops: vm.wait(("w", s+1))
            nxt = wread(wreg[s+1], (s+1) % 7)
        while any(p[2] == ("h", s) for p in pend): pop()
        vm.wait(("h", s), "lgkmcnt(0)" if s >= R else "")
        if s == 0: stamp(a, "h0")
        stamp(a, f"hs{s}")
        if R <= s and s+7 <= 13:
            k_ = (s+7) % 7; q_ = []
            for hh in range(2):
                q_.append(((WADV if hh == 0 else "") + f"s_add_u32 m0, s52, {WSLOT[k_] + hh*2048}\ns_add_u32 s49, s51, {hh*16384}", f"buffer_load_dwordx4 v{VWD}, {sr(S_WD)}, s49 offen lds", ("w", s+7)))
                q_.append(("", f"buffer_load_dwordx4 v{VW2}, {sr(S_WD)}, s49 offen offset:1024 lds", ("w", s+7)))
            pend += q_
        if s == 12:
            nxt += [f"v_and_b32 v2, 15, v1\nv_lshrrev_b32 v3, 4, v1", f"v_xor_b32 v3, v3, v2\nv_lshlrev_b32 v3, 4, v3", f"v_lshl_add_u32 v3, v2, 8, v3\nv_add_u32 v{VA}, s52, v3",
                    f"v_xor_b32 v{VA+1}, 64, v{VA}\nv_xor_b32 v{VA+2}, 128, v{VA}", f"v_xor_b32 v{VA+3}, 192, v{VA}"]
        if s == 13:
            wr_ = [f"ds_write_b128 v{VA+t}, {vr(AC+16*t+4*j)} offset:{j*SLOT}" for t in range(4) for j in range(4)]
            nxt = ["s_nop 0"]*5 + wr_[:11]
        k = 0
        if O.tl2 and s == 12: order = [(12, t, j) for t in (0, 1) for j in range(4)]
        elif O.tl2 and s == 13:
            order = [(13, t, j) for t in (0, 1) for j in range(4)] + [(12, t, j) for t in (2, 3) for j in range(4)] + [(13, t, j) for t in (2, 3) for j in range(4)]
            nxt = ["s_nop 0"]*5 + wr_[:8] + ["s_nop 0"]*8 + wr_[8:11]
        else: order = [(s, t, j) for t in range(4) for j in range(4)]
        for (s_, t, j) in order:
            c = AC + 16*t + 4*j
            a(f"v_mfma_f32_16x16x32_bf16 {vr(c)}, {vr(wreg[s_]+4*t)}, {vr(hreg[s_]+4*j)}, {0 if s == 0 else vr(c)}")
            if nxt:
                x_ = nxt.pop(0)
                if x_ != "s_nop 0" or not (O.tl2 and 13 <= k < 18): a(x_)
            if O.tl2 and s == 12 and nxt: a(nxt.pop(0))
            if k % O.hgap == 0: pop()
            k += 1
        assert not nxt
        free.append(wreg[s]); free.append(hreg[s])
        hqueue(1 if R <= s+2 <= 13 else 0)
        if s == 10: tail_setup(a, vm)
        if s == O.go_at: a(f"v_mov_b32 v7, 1"); lds_signal(a, VCN, 52, 7)
    stamp(a, "g2_end")
    a(wr_[11]); a("s_nop 0"); a(wr_[12]); a("s_nop 0"); a(wr_[13]); a("s_nop 0"); a(wr_[14]); a("s_nop 0"); a(wr_[15])
    HF = 32
    a(f"""
    F_fin:
    s_waitcnt vmcnt(0)
    v_and_b32 v{RS}, 0xffff0000, v{RS}
    v_rcp_f32 v{RS+1}, v{RS}
    s_nop 0
    v_fma_f32 v{RS+2}, -v{RS}, v{RS+1}, 1.0
    v_fma_f32 v{RS+1}, v{RS+2}, v{RS+1}, v{RS+1}
    v_mul_f32 v{RS}, v{RS+1}, v{RS+1}
    """)
    for k in range(4): a(f"v_lshlrev_b32 v{HF+40+2*k}, 16, v{XF+k}\nv_and_b32 v{HF+40+2*k+1}, 0xffff0000, v{XF+k}")
    a("s_waitcnt lgkmcnt(0)")
    stamp(a, "t_pre")
    a("s_barrier")
    stamp(a, "t_bar")
    for q in range(4):
        for hf in range(2): a(f"ds_read_b128 {vr(HF+8*q+4*hf)}, v{14+hf} offset:{q*4096}")
    for hf in range(2): a(f"ds_read_b128 {vr(HF+32+4*hf)}, v{VO} offset:{16*hf}")
    for q in range(1, 4):
        a(f"s_waitcnt lgkmcnt({8-2*q})")
        for k in range(4): a(f"v_pk_add_f32 {pr(HF+2*k)}, {pr(HF+2*k)}, {pr(HF+8*q+2*k)}")
    for k in range(4): a(f"v_pk_fma_f32 {pr(HF+2*k)}, {pr(HF+2*k)}, {pr(RS)}, {pr(HF+40+2*k)} op_sel_hi:[1,0,1]")
    a("s_waitcnt lgkmcnt(0)")
    for k in range(4): a(f"v_pk_add_f32 {pr(HF+2*k)}, {pr(HF+2*k)}, {pr(HF+32+2*k)}")
    for k in range(4): a(f"v_cvt_pk_bf16_f32 v{XF+k}, v{HF+2*k}, v{HF+2*k+1}")
    a(f"buffer_store_dwordx4 {vr(XF)}, v{VX}, {sr(S_OUT)}, s55 offen {O.opol}")
    stamp(a, "end")

def treduce16(a, R, T):
    for i in range(8): a(f"v_permlane32_swap_b32 v{R[i]}, v{R[i+8]}")
    for i in range(8): a(f"v_add_f32 v{R[i]}, v{R[i]}, v{R[i+8]}")
    for i in range(4): a(f"v_permlane16_swap_b32 v{R[i]}, v{R[i+4]}")
    for i in range(4): a(f"v_add_f32 v{R[i]}, v{R[i]}, v{R[i+4]}")
    a("s_nop 0")
    for i in range(2): a(f"v_add_f32_dpp v{T+i}, v{R[i]}, v{R[i]} row_ror:8 row_mask:0xf bank_mask:0x3")
    a("s_nop 0")
    for i in range(2): a(f"v_add_f32_dpp v{T+i}, v{R[i+2]}, v{R[i+2]} row_ror:8 row_mask:0xf bank_mask:0xc")
    a("s_nop 0")
    a(f"v_add_f32_dpp v{R[0]}, v{T}, v{T} row_half_mirror row_mask:0xf bank_mask:0x5")
    a("s_nop 1")
    a(f"v_add_f32_dpp v{R[0]}, v{T+1}, v{T+1} row_half_mirror row_mask:0xf bank_mask:0xa")
    a("s_nop 1")
    a(f"v_add_f32_dpp v{R[0]}, v{R[0]}, v{R[0]} quad_perm:[1,0,3,2] row_mask:0xf bank_mask:0xf")
    a("s_nop 1")
    a(f"v_add_f32_dpp v{R[0]}, v{R[0]}, v{R[0]} quad_perm:[2,3,0,1] row_mask:0xf bank_mask:0xf")
    return lambda row: 4*row

def treduce8(a, R, T):
    for i in range(4): a(f"v_permlane32_swap_b32 v{R[i]}, v{R[i+4]}")
    for i in range(4): a(f"v_add_f32 v{R[i]}, v{R[i]}, v{R[i+4]}")
    a("s_nop 0")
    for i in range(2): a(f"v_permlane16_swap_b32 v{R[i]}, v{R[i+2]}")
    for i in range(2): a(f"v_add_f32 v{R[i]}, v{R[i]}, v{R[i+2]}")
    a("s_nop 0")
    a(f"v_add_f32_dpp v{T}, v{R[0]}, v{R[0]} row_ror:8 row_mask:0xf bank_mask:0x3")
    a(f"v_add_f32_dpp v{T}, v{R[1]}, v{R[1]} row_ror:8 row_mask:0xf bank_mask:0xc")
    a("s_nop 1")
    a(f"v_add_f32_dpp v{R[0]}, v{T}, v{T} row_half_mirror row_mask:0xf bank_mask:0xf")
    a("s_nop 1")
    a(f"v_add_f32_dpp v{R[0]}, v{R[0]}, v{R[0]} quad_perm:[1,0,3,2] row_mask:0xf bank_mask:0xf")
    a("s_nop 1")
    a(f"v_add_f32_dpp v{R[0]}, v{R[0]}, v{R[0]} quad_perm:[2,3,0,1] row_mask:0xf bank_mask:0xf")
    return lambda row: 8*row

def aux_role(a):
    S_OT = 61; GR = 12
    a(f"""
    s_memrealtime s[40:41]
    v_mov_b32 v{VCN}, {CNT}
    v_mov_b32 v{VONE}, 1
    v_mov_b32 v15, 0
    s_setprio 0
    s_cmp_ge_u32 s{S_WAVE}, 4
    s_cbranch_scc1 F_aux2
    s_setprio 2
    """)
    X = 16; F = 80; SUM = 208; T = 224
    a(f"""
    v_lshlrev_b32 v2, 4, v1
    s_lshl_b32 s44, s2, 6
    s_lshl_b32 s45, s{S_WAVE}, 4
    s_add_u32 s44, s44, s45
    s_lshl_b32 s42, s44, 10
    s_waitcnt lgkmcnt(0)
    """)
    for i in range(16):
        a(f"buffer_load_dwordx4 {vr(X+4*i)}, v2, {sr(S_X)}, s42 offen offset:{(i%4)*1024}")
        if i % 4 == 3 and i < 15: a("s_add_u32 s42, s42, 4096")
    late_loads(a)
    a(f"""
    s_lshl_b32 s46, s{S_WAVE}, 1
    v_and_b32 v9, 7, v1
    v_xor_b32 v9, s46, v9
    v_lshlrev_b32 v9, 4, v9
    v_lshl_add_u32 v9, v1, 10, v9
    v_xor_b32 v10, 16, v9
    s_barrier
    ds_read_b32 v{GR+1}, v{VCN} offset:256
    """)
    for i in range(16):
        a(f"s_waitcnt vmcnt({15-i})")
        if i == 0: stamp(a, "a_x")
        for j in range(4):
            a(f"v_lshlrev_b32 v{F+8*i+2*j}, 16, v{X+4*i+j}\nv_and_b32 v{F+8*i+2*j+1}, 0xffff0000, v{X+4*i+j}")
        a(f"v_pk_add_f32 {pr(T)}, {pr(F+8*i)}, {pr(F+8*i+2)}")
        a(f"v_pk_add_f32 {pr(T+2)}, {pr(F+8*i+4)}, {pr(F+8*i+6)}")
        a(f"v_pk_add_f32 {pr(T)}, {pr(T)}, {pr(T+2)}")
        a(f"v_add_f32 v{SUM+i}, v{T}, v{T+1}")
    R = [SUM+i for i in range(16)]
    ln = treduce16(a, R, T)
    a(f"""
    v_mul_f32 v{T}, 0x3b000000, v{SUM}
    v_cvt_pk_bf16_f32 v{T+4}, v{T}, v{T}
    v_and_b32 v{T+4}, 0xffff0000, v{T+4}
    v_sub_f32 v{T+5}, v{T}, v{T+4}
    """)
    for i in range(16): a(f"v_readlane_b32 s{76+i}, v{T+4}, {ln(i)}")
    def sb(i): return f"s[{76+(i&~1)}:{77+(i&~1)}] op_sel:[0,{i&1}] op_sel_hi:[1,{i&1}]"
    for i in range(16):
        for j in range(0, 8, 2): a(f"v_pk_add_f32 {pr(F+8*i+j)}, {pr(F+8*i+j)}, {sb(i)} neg_lo:[0,1] neg_hi:[0,1]")
        a(f"v_pk_mul_f32 {pr(T)}, {pr(F+8*i)}, {pr(F+8*i)}")
        for j in (2,4,6): a(f"v_pk_fma_f32 {pr(T)}, {pr(F+8*i+j)}, {pr(F+8*i+j)}, {pr(T)}")
        a(f"v_add_f32 v{SUM+i}, v{T}, v{T+1}")
    treduce16(a, R, T)
    a(f"""
    v_mul_f32 v{T+6}, 0x3b000000, v{SUM}
    v_fma_f32 v{T+6}, -v{T+5}, v{T+5}, v{T+6}
    v_max_f32 v{T+6}, 0, v{T+6}
    v_cvt_pk_bf16_f32 v{T+6}, v{T+6}, v{T+6}
    v_and_b32 v{T+6}, 0xffff0000, v{T+6}
    v_add_f32 v{T+6}, 0x3727c5ac, v{T+6}
    v_cvt_pk_bf16_f32 v{T+6}, v{T+6}, v{T+6}
    v_and_b32 v{T+6}, 0xffff0000, v{T+6}
    v_sqrt_f32 v{T+6}, v{T+6}
    v_lshlrev_b32 v5, 1, v1
    v_cvt_pk_bf16_f32 v{GR}, v{T+4}, v{T+6}
    s_lshl_b32 s46, s44, 3
    s_add_u32 s46, s46, {ST_G}
    s_mov_b32 exec_lo, 0x11111111
    s_mov_b32 exec_hi, 0x11111111
    s_waitcnt lgkmcnt(0)
    buffer_store_dwordx2 {pr(GR)}, v5, {sr(S_WS)}, s46 offen sc1
    s_mov_b64 exec, -1
    v_and_b32 v{T+6}, 0xffff0000, v{GR}
    v_rcp_f32 v{T+7}, v{T+6}
    s_nop 0
    v_fma_f32 v{T+5}, -v{T+6}, v{T+7}, 1.0
    v_fma_f32 v{T+7}, v{T+5}, v{T+7}, v{T+7}
    s_nop 0
    """)
    stamp(a, "a_st")
    for i in range(16): a(f"v_readlane_b32 s{76+i}, v{T+7}, {ln(i)}")
    for oo in range(2):
        for i in range(8*oo, 8*oo+8):
            for j in range(0, 8, 2): a(f"v_pk_mul_f32 {pr(F+8*i+j)}, {pr(F+8*i+j)}, {sb(i)}")
        for c in range(8):
            d = X + 32*oo + 4*c
            for k in range(4): a(f"v_cvt_pk_bf16_f32 v{d+k}, v{F+8*(8*oo+2*k)+c}, v{F+8*(8*oo+2*k+1)+c}")
            a(f"ds_write_b128 v{9+oo}, {vr(d)} offset:{c*128}")
    lds_signal(a, VCN, C_LN, VONE)
    TT = 232; FF = 128
    a(f"""
    s_mov_b64 s[{S_FM}:{S_FM+1}], 0
    v_lshlrev_b32 v4, 4, v1
    s_lshl_b32 s46, s{S_WAVE}, 14
    v_add_u32 v2, s46, v4
    s_mul_i32 s47, s2, {XQ}
    s_add_u32 s46, s46, s47
    s_add_u32 s46, s46, {XNT_OFF}
    """)
    for tt in range(8): a(f"v_xor_b32 v{TT+tt}, {tt<<4}, v2")
    lds_wait(a, VCN, C_LN, 4, 3)
    stamp(a, "a_bar")
    for tt in range(16): a(f"ds_read_b128 {vr(FF+4*tt)}, v{TT+tt%8} offset:{tt*1024}")
    a("s_waitcnt lgkmcnt(0)")
    lds_signal(a, VCN, C_A, VONE)
    for tt in range(16):
        a(f"buffer_store_dwordx4 {vr(FF+4*tt)}, v4, {sr(S_WS)}, s46 offen offset:{(tt%4)*1024} sc1")
        if tt % 4 == 3 and tt < 15: a("s_add_u32 s46, s46, 0x1000")
    a(f"""
    s_lshl_b32 s46, s{S_WAVE}, 7
    s_lshl_b32 s47, s2, 2
    s_add_u32 s46, s46, s47
    s_add_u32 s46, s46, {XF_OFF}
    s_waitcnt vmcnt(0)
    s_mov_b64 exec, 1
    buffer_store_dword v{GR+1}, v15, {sr(S_WS)}, s46 offen sc1
    s_mov_b64 exec, -1
    """)
    stamp(a, "a_end")
    wd_voff(a)
    a(f"""
    s_mul_i32 s86, s56, {14*32*1024}
    s_lshl_b32 s40, s54, 7
    s_add_u32 s86, s86, s40
    s_add_u32 s87, s86, {14*32768}
    {rotc(51)}
    s_lshl_b32 s51, s51, 15
    s_add_u32 s51, s51, s86
    s_lshl_b32 s52, s56, 12
    """)
    lds_wait(a, VCN, C_A, 4, 2)
    for k in range(NRG):
        for u in wdA_units(k): a(u[0]); a(u[1])
    poll(a, 3, 15, S_DBG, "0", -1, "0", "eq")
    a(f"s_lshl_b32 s41, s56, 2\nv_add_u32 v2, s41, v{VCN}\nds_write_b32 v{VCN}, v3 offset:{C_TAG}\nds_write_b32 v2, v{VONE} offset:{C_PAIR}")
    if O.apf:
        lp_ = a.label("apf")
        a(f"""
        v_lshrrev_b32 v2, 5, v1
        v_lshlrev_b32 v2, 10, v2
        v_and_b32 v3, 31, v1
        v_lshl_add_u32 v2, v3, 4, v2
        s_lshr_b32 s46, s2, 3
        s_lshl_b32 s46, s46, 2
        s_add_u32 s46, s46, s{S_WAVE}
        s_mul_i32 s46, s46, {112*1024}
        s_and_b32 s47, s2, 1
        s_xor_b32 s47, s47, 1
        s_lshl_b32 s47, s47, 9
        s_add_u32 s46, s46, s47
        s_mov_b32 s47, 28
        {lp_}:
        buffer_load_dwordx4 v[144:147], v2, {sr(S_WD)}, s46 offen
        buffer_load_dwordx4 v[148:151], v2, {sr(S_WD)}, s46 offen offset:2048
        s_add_u32 s46, s46, 4096
        s_waitcnt vmcnt({O.apf})
        s_sub_u32 s47, s47, 1
        s_cmp_lg_u32 s47, 0
        s_cbranch_scc1 {lp_}
        """)
    a("s_branch F_g2")
    WR = list(range(192, 256, 4)); SEL = 8; CS = 188
    lt = a.label("atag")
    a(f"""
    F_aux2:
    s_lshr_b32 s46, s2, 1
    s_cmp_ge_u32 s46, 7
    s_cselect_b32 s47, 7, 0
    s_cselect_b32 s{S_WG}, s{S_WU}, s{S_WG}
    s_cselect_b32 s{S_WG+1}, s{S_WU+1}, s{S_WG+1}
    s_cselect_b32 s6, 1, 0
    s_sub_u32 s46, s46, s47
    s_and_b32 s48, s2, 1
    s_mul_i32 s48, s48, 7
    s_add_u32 s7, s46, s48
    s_lshl_b32 s45, s7, 8
    s_mul_i32 s46, s56, {128*3584}
    s_add_u32 s45, s45, s46
    s_cmp_ge_u32 s2, 28
    s_cselect_b32 s{S_WG+2}, 0, s{S_WG+2}
    v_lshrrev_b32 v3, 4, v1
    v_mul_u32_u24 v3, 3584, v3
    v_and_b32 v4, 15, v1
    v_lshl_add_u32 v8, v4, 4, v3
    s_waitcnt lgkmcnt(0)
    s_or_b32 s{S_OT}, s40, 1
    """)
    late_loads(a)
    a(f"""
    s_cmp_lg_u32 s56, 0
    s_cbranch_scc1 {lt}
    v_mov_b32 v5, s{S_OT}
    ds_write_b32 v{VCN}, v5 offset:256
    s_lshl_b32 s40, s2, 2
    s_mov_b64 exec, 1
    buffer_store_dword v5, v15, {sr(S_DBG)}, s40 offen sc1
    s_mov_b64 exec, -1
    """)
    cnt_init(a)
    a(f"{lt}:\ns_waitcnt lgkmcnt(0)\ns_barrier\nds_read_b32 v{GR+1}, v{VCN} offset:256")
    vm = VM(a); vm.ops = ["par"]*4
    WR = list(range(128, 256, 4)); SEL = KW+64; CS = KW+68
    for i in range(32):
        vm.issue(f"buffer_load_dwordx4 {vr(WR[i])}, v8, {sr(S_WG)}, s45 offen", ("w", i))
        if i < 31: a(f"s_add_u32 s45, s45, {4*3584}")
    a(f"""
    v_and_b32 v3, 1, v1
    v_lshlrev_b32 v3, 4, v3
    v_mov_b32 v4, 0x3f80
    v_lshlrev_b32 v3, v3, v4
    v_bfe_u32 v4, v1, 1, 3
    """)
    for k in range(4): a(f"v_cmp_eq_u32 s[{78+2*k}:{79+2*k}], {k}, v4")
    for k in range(4): a(f"v_cndmask_b32 v{SEL+k}, 0, v3, s[{78+2*k}:{79+2*k}]")
    a(f"""
    v_and_b32 v4, 15, v1
    v_lshlrev_b32 v4, 5, v4
    v_bfe_u32 v5, v1, 4, 1
    v_lshl_add_u32 v4, v5, 4, v4
    s_lshl_b32 s46, s56, 9
    s_add_u32 s46, s46, {LU}
    v_add_u32 v10, s46, v4
    """)
    for i in range(32):
        vm.wait(("w", i))
        a(f"v_mfma_f32_16x16x32_bf16 {vr(CS)}, {vr(SEL)}, {vr(WR[i])}, {vr(CS) if i else 0}")
    a(f"s_mov_b32 exec_hi, 0\ns_nop 6\nds_write_b128 v10, {vr(CS)}\ns_mov_b64 exec, -1")
    lds_signal(a, VCN, C_ST, VONE)
    l4 = a.label("nocs")
    a(f"s_cmp_ge_u32 s2, 28\ns_cbranch_scc1 {l4}\ns_cmp_ge_u32 s56, 2\ns_cbranch_scc1 {l4}")
    lds_wait(a, VCN, C_ST, 4, 2)
    a(f"""
    v_and_b32 v3, 127, v0
    v_lshlrev_b32 v5, 2, v3
    v_add_u32 v5, {LU}, v5
    ds_read2st64_b32 v[192:193], v5 offset0:0 offset1:2
    ds_read2st64_b32 v[194:195], v5 offset0:4 offset1:6
    v_lshlrev_b32 v3, 3, v3
    s_mul_i32 s47, s6, 14
    s_add_u32 s47, s47, s7
    s_lshl_b32 s47, s47, 10
    s_add_u32 s47, s47, {CS_G}
    s_waitcnt lgkmcnt(0)
    v_pk_add_f32 v[192:193], v[192:193], v[194:195]
    v_add_f32 v{GR}, v192, v193
    buffer_store_dwordx2 {pr(GR)}, v3, {sr(S_WS)}, s47 offen sc1
    {l4}:
    """)
    stamp(a, "a_cs")
    kaddr_setup(a, LC)
    prod_setup(a)
    a(f"buffer_load_dword v{VT}, v14, {sr(S_DBG)}, 0 offen sc1\ns_waitcnt lgkmcnt(0)")
    kgen_valu(a, scalar=False, stream=True)
    stamp(a, "a_kg")
    kgen_exchange(a, kacc=AKACC, ef=AEF)
    lds_signal(a, VCN, C_KX, VONE)
    lds_wait(a, VCN, C_KX, 4, 2)
    expand_gather(a)
    tails_prep(a)
    a.lines += expand_writes()
    lds_signal(a, VCN, C_KX, VONE)
    a("s_waitcnt vmcnt(0)")
    tags_check(a)
    stamp(a, "a_ex")
    lds_wait(a, VCN, C_KX, 8, 2)
    xf_addr(a, 41)
    poll(a, XFL, 14, S_WS, "s41", -1, f"v{VT}")
    u_loads(a, None)
    conv_setup(a)
    a("s_waitcnt vmcnt(0)\ns_mov_b32 s55, 2\ns_branch F_pp")

def k_fused():
    a = Asm("F")
    a(f"""
    s_cmp_ge_u32 s2, 256
    s_cbranch_scc1 F_end
    s_load_dwordx2 s[{S_X}:{S_X+1}], s[0:1], 0
    s_load_dwordx2 s[{S_WG}:{S_WG+1}], s[0:1], 64
    s_load_dwordx2 s[{S_WU}:{S_WU+1}], s[0:1], 72
    s_load_dwordx8 s[64:71], s[0:1], 8
    s_load_dwordx4 s[72:75], s[0:1], 40
    """)
    if O.stamps: a(f"{O.stamps} s[92:93]")
    a(f"v_lshrrev_b32 v2, 6, v0\nv_and_b32 v1, 63, v0\nv_readfirstlane_b32 s{S_WAVE}, v2")
    srd_tail(a, S_X, 2048*512*2); srd_tail(a, S_WG, 512*1792*2); srd_tail(a, S_WU, 512*1792*2+1024)
    if O.k8: a(f"s_and_b32 s56, s{S_WAVE}, 3\ns_waitcnt lgkmcnt(0)")
    else: a(f"s_and_b32 s56, s{S_WAVE}, 3\ns_lshr_b32 s40, s{S_WAVE}, 2\ns_cmp_lt_u32 s2, 32\ns_cselect_b32 s41, 1, 0\ns_cmp_lg_u32 s40, s41\ns_cbranch_scc1 F_nopar\ns_waitcnt lgkmcnt(0)")
    a(f"s_lshl_b32 s40, s2, 2\ns_load_dword s{S_LDT}, s[72:73], s40")
    kgen_param_loads(a, VM(a))
    a(f"""
    F_nopar:
    s_cmp_lt_u32 s2, 32
    s_cbranch_scc1 F_aux
    s_bfe_u32 s60, s2, 0x20001
    s_and_b32 s40, s2, 1
    s_lshl_b32 s40, s40, 1
    s_add_u32 s60, s60, s40
    s_cmp_ge_u32 s60, {8-O.hyb}
    s_cselect_b32 s40, {8-O.hyb}, 0
    s_sub_u32 s60, s60, s40
    s_bfe_u32 s6, s2, 0x20001
    s_lshl_b32 s6, s6, 2
    s_bfe_u32 s40, s2, 0x20003
    s_add_u32 s6, s6, s40
    s_and_b32 s7, s2, 1
    s_mul_i32 s7, s7, 7
    s_lshr_b32 s40, s2, 5
    s_add_u32 s7, s7, s40
    s_sub_u32 s7, s7, 1
    s_cmp_lt_u32 s{S_WAVE}, 4
    s_cbranch_scc1 F_cons
    """)
    g1_producer(a)
    a("F_cons:")
    g1_consumer(a)
    gemm2(a)
    stamp_flush(a)
    a("F_end:\ns_endpgm\nF_aux:")
    aux_role(a)
    a("F_last:\ns_endpgm")
    return dict(name=NAME, body=a.text(), grid=256, block=512, lds=163840, vgpr=256, sgpr=102)

def single_file(k):
    return make_file([k]).replace("; @launch kernel=%s " % k["name"], "; @launch ")
SETS = {"T": dict(hs12=1, hs13=2, g2_end=3, t_pre=4, t_bar=5, end=6, a_st0=1, hflag=7),
        "G": dict(c_par=1, c_k1=2, c_kv=3, c_kg=4, c_b0=5, pb1=1, pb7=2, pb10=3, pb12=4, pb14=5, pb15=6, pb16=7),
        "E": dict(pb16=1, ps2=2, cv_m=3, cv_x=4, conv_end=5, a_st0=6, hflag=7, c_end=1, g2a=2, g2r=3, g2d=4, flag=5, g2e=6),
        "Z": dict(c_end=1, flag=2, end=7),
        "A": dict(c_b0=1, c_s15=2, c_end=3, flag=4, g2a=5, hflag=6, end=7,   p_par=1, p_kg=2, p_b16=3, ps2=5,  a_x=1, a_bar=2, a_end=3, a_cs=1, a_kg=2, a_ex=3),
        "B": dict(c_par=3, c_kg=4, p_start=1, h0=2, g2_end=6, end=7, pb3=2, pb10=3, ps1=4, conv_end=5, a_st=3),
        "D": dict(hflag=1, hs0=2, hs3=3, hs4=4, hs7=5, hs10=6, hs13=7),
        "C": dict(pb10=1, pb12=2, pb13=3, pb14=4, pb15=5, pb16=6, p_b16=7)}
if __name__ == "__main__":
    sfx = ""
    for kv in sys.argv[1:]:
        k, v = kv.split("=")
        if k == "sfx": sfx = v
        else: setattr(O, k, eval(v))
    open(f"../f3{sfx}.s","w").write(single_file(k_fused()))
    O.stamps = "s_memrealtime"
    for k, v in SETS.items():
        O.stamp_sel = v
        open(f"../f3{sfx}_{k}.s","w").write(single_file(k_fused()))
```

```python
from common import Asm, vr, sr, make_file
from util import *
import struct, sys
def f2u(x): return struct.unpack("<I", struct.pack("<f", x))[0]
LOG2E = f2u(1.4426950408889634); INV2PI = f2u(0.15915494309189535)
pr = lambda r: f"v[{r}:{r+1}]"
NAME = "parallel_sum__ssm_conv_s4d__glu_gated_bilinear__prompt_kernel"

WS_SIZE = 0x10000000
ST_G = 0x700000; CS_G = 0x704000; HF_OFF = 0x990000; HFS = 3328; XF_OFF = 0x70D000; AF_OFF = 0x720000
XNT_OFF = 0x780000; XP = 8448; XQ = 65536+256; AT_OFF = 0xA00000; ATP = 8192+256; AFS = 1280; TS_OFF = 0xE00000
S_WAVE = 4
S_WS, S_X, S_WG, S_WU, S_WD, S_OUT, S_DBG = 8, 12, 16, 20, 24, 28, 32
S_TAG = 62; S_DD = 63; S_LDT = 59; S_FM = 76; S_FO = 57
VFL = 15
SLOT = 16384; NW = 6
XR = 6*SLOT; HS = 8192
LC = XR + 2*HS; LU = LC + 8*4160; PXB = XR + 7*HS; KT = PXB; KTP = 3072; AUXL = PXB + 6144; CNT = AUXL + 1536
SCR = 5*SLOT
UP = 4608; PC = 4160; PP = 272
assert LU + 2*UP <= AUXL and CNT + 512 == 163840
C_PS, C_A, C_TAG, C_ST, C_KF, C_LN, C_KX, C_PAIR = 0, 4, 8, 12, 16, 24, 28, 32
WSLOT = [4*SLOT, 5*SLOT, 0, SLOT, 2*SLOT, 3*SLOT, XR]
WAVAIL = [11, 12, 13, 14, 15, 16, 16]
NRG = 4
POLL_MAX = 1 << 16

class Opt: pass
O = Opt()
O.stamps = None; O.stamp_sel = {}
O.upfront = 20; O.quota = [8,8,8,8,8,8,8,8,8,8,8,8,8,8,8,8]
O.rate = [0,16,28,28,28,28,28,28,28,28,28,28,28,28,10,0]
O.psleep = 3; O.up2 = 6; O.kpre = 40; O.xfc = 16; O.asleep = 8; O.a0sleep = 16; O.wreg = 6; O.g2prio = 0; O.auxw0 = 2; O.pre0 = 85; O.hlead = 5; O.cprio = 3; O.shadow = 9

def stamp(a, name):
    if O.stamps and name in O.stamp_sel:
        i = O.stamp_sel[name]; a(f"{O.stamps} s[100:101]\ns_waitcnt lgkmcnt(0)\ns_mov_b32 s{92+i}, s100")
def stamp_flush(a):
    if not O.stamps: return
    for i in range(8): a(f"v_mov_b32 v{2+i}, s{92+i}")
    a(f"""
    v_mov_b32 v10, 0
    s_lshl_b32 s92, s2, 3
    s_add_u32 s92, s92, s{S_WAVE}
    s_lshl_b32 s92, s92, 5
    s_add_u32 s92, s92, {TS_OFF}
    s_mov_b64 exec, 1
    buffer_store_dwordx4 v[2:5], v10, {sr(S_WS)}, s92 offen
    buffer_store_dwordx4 v[6:9], v10, {sr(S_WS)}, s92 offen offset:16
    s_mov_b64 exec, -1
    """)
def srd_tail(a, s, size): a(f"s_mov_b32 s{s+2}, {hex(size)}\ns_mov_b32 s{s+3}, 0x20000")
MAPA = """    s_bfe_u32 s53, s2, 0x20001
    s_lshl_b32 s53, s53, 3
    s_lshr_b32 s40, s2, 5
    s_add_u32 s53, s53, s40                 ; R64
    s_and_b32 s54, s2, 1
    s_lshl_b32 s54, s54, 2
    s_bfe_u32 s40, s2, 0x20003
    s_add_u32 s54, s54, s40                 ; C64"""
MAPB = """    s_and_b32 s53, s2, 7
    s_lshl_b32 s53, s53, 2
    s_lshr_b32 s40, s2, 6
    s_add_u32 s53, s53, s40
    s_bfe_u32 s54, s2, 0x30003"""
def rotc(r):
    if O.map2: return f"s_mul_i32 s{r}, s54, {O.rotm}\ns_lshr_b32 s{r}, s{r}, 2"
    return f"s_and_b32 s{r}, s54, 3\ns_mul_i32 s{r}, s{r}, {O.rotm}\ns_add_u32 s{r}, s{r}, 1\ns_lshr_b32 s{r}, s{r}, 1"
def late_loads(a):
    a(f"""
    s_load_dwordx2 s[{S_WS}:{S_WS+1}], s[0:1], 104
    s_load_dwordx2 s[{S_DBG}:{S_DBG+1}], s[0:1], 96
    s_load_dwordx2 s[{S_WD}:{S_WD+1}], s[0:1], 80
    s_load_dwordx2 s[{S_OUT}:{S_OUT+1}], s[0:1], 88
    """)
    srd_tail(a, S_WS, WS_SIZE); srd_tail(a, S_DBG, 256); srd_tail(a, S_WD, 512*1792*2); srd_tail(a, S_OUT, 2048*512*2)
    a(f"""
    {MAPB if O.map2 else MAPA}
    s_lshl_b32 s40, s2, 2
    s_waitcnt lgkmcnt(0)
    s_load_dword s{S_DD}, s[74:75], s40
    """)
def poll(a, vdst, vaddr, srdreg, soff, mask, cmp_src, op="ne", sleep=None):
    l = a.label("poll"); d = a.label("polld")
    a(f"s_mov_b64 exec, {mask}\ns_mov_b32 s58, {POLL_MAX}\n{l}:")
    a(f"""
    buffer_load_dword v{vdst}, v{vaddr}, {sr(srdreg)}, {soff} offen sc1
    s_waitcnt vmcnt(0)
    v_cmp_{op}_u32 vcc, {cmp_src}, v{vdst}
    s_cbranch_vccz {d}
    s_sleep {sleep or O.psleep}
    s_sub_u32 s58, s58, 1
    s_cmp_lg_u32 s58, 0
    s_cbranch_scc1 {l}
    {d}:
    s_mov_b64 exec, -1
    """)
def lds_signal(a, vaddr, off, vone):
    a(f"s_mov_b64 exec, 1\nds_add_u32 v{vaddr}, v{vone} offset:{off}\ns_mov_b64 exec, -1")
def lds_wait(a, vaddr, off, target, vt, sleep=1):
    l = a.label("lw"); d = a.label("lwd")
    a(f"""
    s_mov_b32 s58, {POLL_MAX}
    {l}:
    ds_read_b32 v{vt}, v{vaddr} offset:{off}
    s_waitcnt lgkmcnt(0)
    v_readfirstlane_b32 s40, v{vt}
    s_cmp_ge_u32 s40, {target}
    s_cbranch_scc1 {d}
    s_sleep {sleep}
    s_sub_u32 s58, s58, 1
    s_cmp_lg_u32 s58, 0
    s_cbranch_scc1 {l}
    {d}:
    """)

VWD = 11; VCN = 6; VONE = 7
PV = 16; AD = 20; RA = 28; KA0, KA1a, KA1b, KA2 = 32, 33, 34, 35
VT = 36; XFL = 37; GA = 38; CA, CB, CU, CS_ = 49, 50, 51, 52; UA = 53; UV = 54; UG = 55
KW = 56; PKR = 128; UF = 188; GF = 196; EF = 200; KACC = 212

def kgen_param_loads(a, vm):
    a(f"v_lshlrev_b32 v{KW}, 1, v1\ns_lshl_b32 s40, s2, 9\ns_lshl_b32 s41, s56, 7\ns_add_u32 s40, s40, s41")
    a(f"s_mov_b32 s38, {512*128*2}\ns_mov_b32 s39, 0x20000")
    for i in range(4):
        a(f"s_mov_b32 s36, s{64+2*i}\ns_mov_b32 s37, s{65+2*i}")
        vm.issue(f"buffer_load_ushort v{PV+i}, v{KW}, s[36:39], s40 offen", "par")

def rot_calc(a, sd):
    a(f"s_and_b32 s{sd}, s54, 3\ns_mul_i32 s{sd}, s{sd}, 7\ns_add_u32 s{sd}, s{sd}, 1\ns_lshr_b32 s{sd}, s{sd}, 1")
def wd_voff(a):
    a(f"""
    v_lshrrev_b32 v2, 4, v1
    v_bfe_u32 v3, v1, 1, 2
    v_xor_b32 v3, v3, v2
    v_and_b32 v4, 1, v1
    v_lshl_or_b32 v3, v3, 1, v4
    v_lshrrev_b32 v4, 3, v1
    v_lshlrev_b32 v4, 10, v4
    v_lshl_add_u32 v{VWD}, v3, 4, v4
    """)
def kaddr_setup(a, SCR=SCR):
    T = KW+2
    a(f"""
    v_mov_b32 v{VCN}, {CNT}
    v_mov_b32 v{VONE}, 1
    s_lshl_b32 s40, s56, 12
    s_add_u32 s40, s40, {SCR}
    v_lshl_add_u32 v{AD}, v1, 2, s40
    """)
    for r in range(1, 8): a(f"v_xor_b32 v{AD+r}, {r<<4}, v{AD}")
    a(f"""
    v_and_b32 v{T}, 15, v1                  ; m / b / n
    v_lshrrev_b32 v{T+1}, 4, v1             ; g
    v_lshrrev_b32 v{T+2}, 1, v{T}
    v_xor_b32 v{T+2}, v{T+2}, v{T+1}
    v_lshlrev_b32 v{T+2}, 4, v{T+2}
    v_lshl_add_u32 v{T+2}, v{T}, 8, v{T+2}
    v_add_u32 v{RA}, s40, v{T+2}
    v_xor_b32 v{RA+1}, 64, v{RA}
    v_xor_b32 v{RA+2}, 128, v{RA}
    v_xor_b32 v{RA+3}, 192, v{RA}
    s_lshr_b32 s5, s56, 1                   ; ch
    s_mul_i32 s41, s5, {KTP}
    s_add_u32 s41, s41, {KT}
    v_lshrrev_b32 v{T+2}, 1, v{T+1}
    v_lshlrev_b32 v{T+2}, 8, v{T+2}
    v_and_b32 v{T+3}, 1, v{T+1}
    v_lshl_add_u32 v{T+2}, v{T+3}, 3, v{T+2}
    v_lshl_add_u32 v{T+2}, v{T}, 4, v{T+2}
    v_add_u32 v{KA0}, s41, v{T+2}
    v_cmp_gt_u32 vcc, 2, v{T+1}
    v_lshlrev_b32 v{T+2}, 7, v{T+1}
    v_lshlrev_b32 v{T+3}, 2, v{T}
    v_lshlrev_b32 v{T+4}, 3, v{T}
    v_cndmask_b32 v{T+3}, v{T+3}, v{T+4}, vcc
    v_add3_u32 v{KA1a}, v{T+2}, v{T+3}, s41
    v_mov_b32 v{T+3}, 64
    v_cndmask_b32 v{T+3}, v{T+3}, 4, vcc
    v_add_u32 v{KA1b}, v{KA1a}, v{T+3}
    v_lshl_add_u32 v{T+2}, v{T}, 1, v{T+2}
    v_add_u32 v{KA2}, s41, v{T+2}
    """)

def prod_setup(a):
    T = KW+2
    wd_voff(a)
    a(f"""
    s_mul_i32 s86, s56, {14*32*1024}
    s_lshl_b32 s40, s54, 7
    s_add_u32 s86, s86, s40
    s_add_u32 s87, s86, {14*32768}
    {rotc(51)}
    s_lshl_b32 s51, s51, 15
    s_add_u32 s51, s51, s86
    s_lshl_b32 s52, s56, 12
    v_mov_b32 v{VCN}, {CNT}
    v_mov_b32 v{VONE}, 1
    v_and_b32 v14, 31, v1
    v_lshlrev_b32 v14, 2, v14
    s_lshr_b32 s5, s56, 1                   ; ch
    v_and_b32 v{T}, 15, v1
    v_lshrrev_b32 v{T+1}, 4, v1
    v_and_b32 v{T+2}, 3, v1
    v_mul_u32_u24 v{CA}, {PC}, v{T+2}
    v_lshl_add_u32 v{CA}, v{T+1}, 4, v{CA}
    v_and_b32 v{T+2}, 12, v1
    v_lshlrev_b32 v{T+2}, 1, v{T+2}
    v_sub_u32 v{CA}, v{CA}, v{T+2}
    s_mul_i32 s40, s5, {4*PC}
    s_and_b32 s39, s56, 1
    s_lshl_b32 s39, s39, 8
    s_sub_u32 s40, s40, s39
    s_add_u32 s40, s40, {LC + 2*(2048-16-1792) - 192}
    v_add_u32 v{CA}, s40, v{CA}
    v_lshlrev_b32 v{CU}, 5, v{T}
    v_lshl_add_u32 v{CB}, v{T+1}, 4, v{CU}
    v_lshl_add_u32 v{CS_}, v{T+1}, 3, v{CU}
    s_mul_i32 s40, s5, {UP}
    s_add_u32 s41, s40, {LU + 480}
    v_add_u32 v{CU}, s41, v{CS_}
    v_mul_u32_u24 v{CS_}, {8*ATP}, v{T+1}
    v_lshl_add_u32 v{CS_}, v{T}, 3, v{CS_}
    s_sub_u32 s40, s40, s39
    s_add_u32 s40, s40, {LU + 480 - 32 - 192}
    v_add_u32 v{CB}, s40, v{CB}
    v_and_b32 v{UV}, 255, v0
    v_lshlrev_b32 v{T}, 3, v{UV}
    v_lshlrev_b32 v{UV}, 4, v{UV}
    v_bfe_u32 v{T+1}, v0, 4, 4
    v_and_b32 v{UG}, 0xf0, v{UV}
    v_mul_u32_u24 v{UA}, {XQ}, v{T+1}
    v_add_u32 v{UG}, v{UG}, v{UA}
    v_and_b32 v{UA}, 0x70, v{UV}
    v_lshl_add_u32 v{UA}, v{T+1}, 7, v{UA}
    v_bfe_u32 v{T+1}, v0, 3, 1
    v_mul_u32_u24 v{T+1}, {UP}, v{T+1}
    v_add_u32 v{UA}, v{UA}, v{T+1}
    v_add_u32 v{UA}, {LU+480}, v{UA}
    v_sub_u32 v{T}, 2051, v{T}
    s_movk_i32 s41, 128
    s_mov_b32 s40, {KT}
    """)
    for e in range(11):
        a(f"""
        v_subrev_u32 v{T+1}, {e}, v{T}
        v_cvt_f32_u32 v{T+2}, v{T+1}
        v_cvt_pk_bf16_f32 v{T+2}, v{T+2}, v{T+2}
        v_lshrrev_b32 v{T+2}, 16, v{T+2}
        v_subrev_u32 v{T+2}, 0x4280, v{T+2}
        v_med3_i32 v{T+2}, v{T+2}, v{T+1}, s41
        v_lshl_add_u32 v{GA+e}, v{T+2}, 1, s40
        """)

SFR = 192
def kgen_valu(a, scalar=True, stream=False):
    W = KW
    AR, PH, T, DT = W, W+1, W+2, W+5
    C2, W8, Y = W+6, W+8, W+10
    Fk = lambda k: W+20+2*k
    Ca = lambda k: W+34+2*k
    V = PV
    a(f"""
    s_lshl_b32 s3, s5, 4
    s_lshr_b32 s3, s{S_LDT}, s3
    s_lshl_b32 s3, s3, 16
    v_mov_b32 v{DT}, {hex(LOG2E)}
    v_mul_f32 v{DT}, s3, v{DT}
    v_lshlrev_b32 v{V}, 16, v{V}
    v_lshlrev_b32 v{V+1}, 16, v{V+1}
    v_lshlrev_b32 v{V+2}, 16, v{V+2}
    v_lshlrev_b32 v{V+3}, 16, v{V+3}
    v_mul_f32 v{V}, {hex(LOG2E)}, v{V}
    v_exp_f32 v{V}, v{V}
    v_exp_f32 v{DT}, v{DT}
    s_nop 0
    v_cvt_pk_bf16_f32 v{T}, v{DT}, v{V}
    v_lshlrev_b32 v{DT}, 16, v{T}
    v_and_b32 v{V}, 0xffff0000, v{T}
    v_mul_f32 v{AR}, v{V}, v{DT}
    v_mul_f32 v{PH}, v{V+1}, v{DT}
    v_mul_f32 v{AR}, {hex(LOG2E ^ 0x80000000)}, v{AR}
    v_mul_f32 v{PH}, {hex(INV2PI)}, v{PH}
    v_mul_f32 v{C2}, v{V+2}, v{DT}
    v_mul_f32 v{C2+1}, v{V+3}, v{DT}
    v_add_f32 v{C2}, v{C2}, v{C2}
    v_add_f32 v{C2+1}, v{C2+1}, v{C2+1}
    """)
    have = set(); wr = [0, 0]
    NR = (16, 16, 16, 9)
    def drain():
        while wr[0] < 4:
            t, r = wr
            if r >= NR[t]:
                for ks in range(4): a(f"ds_read_b128 {vr(SFR+16*t+4*ks)}, v{RA+ks}")
                wr[0] += 1; wr[1] = 0; continue
            if (t, r) in have and (r+1 >= NR[t] or (t, r+1) in have):
                if r+1 < NR[t]: a(f"ds_write2st64_b32 v{AD+r//2}, v{PKR+16*t+r}, v{PKR+16*t+r+1} offset0:{r} offset1:{r+1}")
                else: a(f"ds_write_b32 v{AD+r//2}, v{PKR+16*t+r} offset:{r*256}")
                wr[1] += 2
            return
    def put(tile, row, x, neg=False):
        r = PKR + 16*tile + row
        if stream: drain()
        if x is None: a(f"v_mov_b32 v{r}, 0x3f80")
        else: a(f"v_cvt_pk_bf16_f32 v{r}, v{x}, {'-' if neg else ''}v{x+1}")
        have.add((tile, row))
    def cm_multi(ops):
        if scalar:
            for (o,x,w,t) in ops: a(f"v_mul_f32 v{t}, v{x}, v{w}\nv_mul_f32 v{t+1}, v{x}, v{w+1}")
            for (o,x,w,t) in ops: a(f"v_fma_f32 v{o}, -v{x+1}, v{w+1}, v{t}\nv_fma_f32 v{o+1}, v{x+1}, v{w}, v{t+1}")
        else:
            for (o,x,w,t) in ops: a(f"v_pk_mul_f32 {pr(t)}, {pr(x)}, {pr(w)} op_sel_hi:[1,0]")
            for (o,x,w,t) in ops: a(f"v_pk_fma_f32 {pr(o)}, {pr(x)}, {pr(w)}, {pr(t)} op_sel:[1,1,0] op_sel_hi:[0,1,1] neg_lo:[1,0,0]")
    W16 = W+50; C3 = W+52; TT = W+54
    anc = [(W8, 8), (W16, 16), (Fk(1), 1), (Ca(1), 128), (Y, 1024)]
    for i, (o, p) in enumerate(anc): a(f"v_mul_f32 v{TT+2*i}, {hex(f2u(float(p)))}, v{AR}\nv_mul_f32 v{TT+2*i+1}, {hex(f2u(float(p)))}, v{PH}")
    for i, (o, p) in enumerate(anc): a(f"v_fract_f32 v{TT+2*i+1}, v{TT+2*i+1}\nv_exp_f32 v{TT+2*i}, v{TT+2*i}")
    for i, (o, p) in enumerate(anc): a(f"v_cos_f32 v{o}, v{TT+2*i+1}\nv_sin_f32 v{o+1}, v{TT+2*i+1}")
    for i, (o, p) in enumerate(anc): a(f"v_mul_f32 v{o}, v{o}, v{TT+2*i}\nv_mul_f32 v{o+1}, v{o+1}, v{TT+2*i}")
    cm_multi([(C3, C2, W8, TT)])
    for b in range(0, 16, 2):
        put(0, b, C2, True); put(0, b+1, C3, True)
        k = b//2 + 2
        ops = []
        if b < 14: ops += [(C2, C2, W16, TT), (C3, C3, W16, TT+2)]
        if k <= 7: ops += [(Fk(k), Fk(k-1), Fk(1), TT+4), (Ca(k), Ca(k-1), Ca(1), TT+6)]
        cm_multi(ops)
    O4 = [W+64+2*i for i in range(4)]
    put(1, 0, None)
    for k in range(1, 8): put(1, k, Fk(k))
    put(1, 8, Ca(1)); put(2, 0, Ca(2)); put(2, 4, Ca(3)); put(3, 0, Y)
    for c in (4,5,6,7): put(2, 8+2*(c-4), Ca(c))
    prods = [(1, 8+k, Ca(1), Fk(k)) for k in range(1,8)] + [(2, i, Ca(2), Fk(2*i)) for i in (1,2,3)] + [(2, 4+i, Ca(3), Fk(2*i)) for i in (1,2,3)] \
          + [(2, 9+2*(c-4), Ca(c), Fk(4)) for c in (4,5,6,7)] + [(3, c, Y, Ca(c)) for c in range(1,8)] + [(3, 8, Y, Y)]
    for i in range(0, len(prods), 4):
        grp = prods[i:i+4]
        cm_multi([(O4[k], x, w, TT+2*k) for k, (t, r, x, w) in enumerate(grp)])
        for k, (t, r, x, w) in enumerate(grp): put(t, r, O4[k])
    if stream:
        stamp(a, "c_k1")
        while wr[0] < 4: drain()
        a("s_waitcnt lgkmcnt(0)")
        for ks in range(4):
            for t in range(3):
                a(f"v_mfma_f32_16x16x32_bf16 {vr(AKACC+4*t)}, {vr(SFR+16*(t+1)+4*ks)}, {vr(SFR+4*ks)}, {vr(AKACC+4*t) if ks else 0}")

AKACC = 128; AEF = 140
def kgen_ds(a, kacc=None):
    KACC = kacc or globals()['KACC']
    FRG = KW
    for t in range(4):
        n = 16 if t < 3 else 9
        for r in range(0, n, 2):
            if r+1 < n: a(f"ds_write2st64_b32 v{AD+r//2}, v{PKR+16*t+r}, v{PKR+16*t+r+1} offset0:{r} offset1:{r+1}")
            else: a(f"ds_write_b32 v{AD+r//2}, v{PKR+16*t+r} offset:{r*256}")
        for ks in range(4): a(f"ds_read_b128 {vr(FRG+16*t+4*ks)}, v{RA+ks}")
    a("s_waitcnt lgkmcnt(0)")
    for ks in range(4):
        for t in range(3):
            a(f"v_mfma_f32_16x16x32_bf16 {vr(KACC+4*t)}, {vr(FRG+16*(t+1)+4*ks)}, {vr(FRG+4*ks)}, {vr(KACC+4*t) if ks else 0}")

def cnt_init(a):
    a(f"v_lshl_add_u32 v2, v1, 2, v{VCN}\nv_mov_b32 v3, 0\nds_write_b32 v2, v3")

def kgen_exchange(a, kacc=None, ef=None, bar=False):
    KACC = kacc or globals()['KACC']; EF = ef or globals()['EF']
    l = a.label("kr"); d = a.label("kd")
    a(f"""
    s_mul_i32 s40, s5, {KTP}
    s_add_u32 s40, s40, {PXB}
    v_lshl_add_u32 v2, v1, 4, s40
    s_lshl_b32 s41, s5, 2
    v_add_u32 v3, s41, v{VCN}
    s_bitcmp1_b32 s56, 0
    s_cbranch_scc0 {l}
    s_nop 1
    """)
    for t in range(3): a(f"ds_write_b128 v2, {vr(KACC+4*t)} offset:{1024*t}")
    if bar: a("s_waitcnt lgkmcnt(0)\ns_barrier")
    a(f"ds_write_b32 v3, v{VONE} offset:{C_KF}\ns_branch {d}\n{l}:")
    if bar: a("s_barrier")
    else: lds_wait(a, 3, C_KF, 1, 4)
    for t in range(3): a(f"ds_read_b128 {vr(EF+4*t)}, v2 offset:{1024*t}")
    a("s_waitcnt lgkmcnt(0)")
    for k in range(12): a(f"v_add_f32 v{KACC+k}, v{KACC+k}, v{EF+k}")
    for k in range(6): a(f"v_cvt_pk_bf16_f32 v{EF+k}, v{KACC+2*k}, v{KACC+2*k+1}")
    a(f"""
    ds_write_b64 v{KA0}, v[{EF}:{EF+1}]
    ds_write_b32 v{KA1a}, v{EF+2} offset:512
    ds_write_b32 v{KA1b}, v{EF+3} offset:512
    ds_write_b16 v{KA2}, v{EF+4} offset:1024
    ds_write_b16_d16_hi v{KA2}, v{EF+4} offset:1056
    ds_write_b16 v{KA2}, v{EF+5} offset:1088
    ds_write_b16_d16_hi v{KA2}, v{EF+5} offset:1120
    {d}:
    """)

EXO = 128
TLV, TLA = 160, 161
def expand_gather(a, step=None):
    P = KW
    for ch in range(2):
        for e in range(11): a(f"ds_read_u16 v{P+11*ch+e}, v{GA+e} offset:{KTP*ch}")
    a("s_waitcnt lgkmcnt(0)")
    for ch in range(2):
        for s_ in range(4):
            for k in range(4):
                e = 11*ch + 3 - s_ + 2*k
                a(f"v_lshl_or_b32 v{EXO+16*ch+4*s_+k}, v{P+e+1}, 16, v{P+e}")
    a(f"v_add_u32 v{KW+22}, {LC}, v{UV}")
def expand_writes():
    return [f"    ds_write_b128 v{KW+22}, {vr(EXO+16*ch+4*s_)} offset:{4*PC*ch + s_*PC}" for ch in range(2) for s_ in range(4)]

def tails_prep(a):
    T = KW+24
    a(f"""
    v_lshrrev_b32 v{T}, 3, v1
    v_and_b32 v{T+1}, 3, v{T}
    v_and_b32 v{T+2}, 7, v1
    v_lshlrev_b32 v{T+2}, 1, v{T+2}
    v_sub_u32 v{T+3}, v{T+1}, v{T+2}
    v_lshrrev_b32 v{T+4}, 5, v1
    v_mul_u32_u24 v{T+4}, {KTP}, v{T+4}
    v_max_i32 v{T+5}, 1, v{T+3}
    v_lshl_add_u32 v{T+4}, v{T+5}, 1, v{T+4}
    v_add_u32 v{T+4}, {KT-2}, v{T+4}
    ds_read_u16 v{T+6}, v{T+4} offset:2
    ds_read_u16 v{T+7}, v{T+4}
    v_mul_u32_u24 v{T}, {PC}, v{T}
    v_lshl_add_u32 v{T}, v{T+2}, 1, v{T}
    v_add_u32 v{TLA}, {LC+4096}, v{T}
    v_cmp_eq_u32 vcc, 0, v{T+3}
    v_cmp_lt_i32 s[40:41], 0, v{T+3}
    s_waitcnt lgkmcnt(0)
    v_lshl_or_b32 v{T+6}, v{T+7}, 16, v{T+6}
    v_cndmask_b32 v{T+7}, 0, v{T+7}, vcc
    v_cndmask_b32 v{TLV}, v{T+7}, v{T+6}, s[40:41]
    v_mov_b64 v[164:165], 0
    v_mov_b64 v[166:167], 0
    v_lshrrev_b32 v{T+4}, 5, v1
    v_mul_u32_u24 v{T+4}, {UP}, v{T+4}
    v_and_b32 v{T+5}, 31, v1
    v_min_u32 v{T+5}, 29, v{T+5}
    v_lshl_add_u32 v{T+4}, v{T+5}, 4, v{T+4}
    v_add_u32 v162, {LU}, v{T+4}
    """)
def tails(a):
    l = a.label("t1")
    a(f"s_cmp_lg_u32 s56, 0\ns_cbranch_scc1 {l}\nds_write_b32 v{TLA}, v{TLV}\nds_write_b128 v162, v[164:167]\n{l}:")

def xf_addr(a, s):
    a(f"s_lshr_b32 s{s}, s2, 6\ns_lshl_b32 s{s}, s{s}, 7\ns_add_u32 s{s}, s{s}, {XF_OFF}")
def u_loads(a, vm):
    a(f"s_lshl_b32 s36, s2, 8\ns_add_u32 s36, s36, {XNT_OFF}\ns_add_u32 s37, s36, {16*XQ}")
    for k in range(2):
        t = f"buffer_load_dwordx4 {vr(UF+4*k)}, v{UG}, {sr(S_WS)}, s{36+k} offen sc1"
        if vm: vm.issue(t, "u")
        else: a(t)

def tags_check(a):
    lt = a.label("tagok")
    a(f"v_cmp_eq_u32 vcc, 0, v{VT}\ns_cbranch_vccz {lt}")
    poll(a, VT, 14, S_DBG, "0", -1, "0", "eq")
    a(f"{lt}:\nv_readfirstlane_b32 s{S_TAG}, v{VT}\ns_nop 1\nv_mov_b32 v2, s{S_TAG}\nds_write_b32 v{VCN}, v2 offset:{C_TAG}")

def granule_issue(a, vm):
    a(f"""
    v_lshlrev_b32 v13, 4, v1
    s_lshl_b32 s36, s7, 10
    s_mul_i32 s37, s56, {1792*8}
    s_add_u32 s36, s36, s37
    s_add_u32 s36, s36, {CS_G}
    s_lshl_b32 s37, s6, 10
    s_add_u32 s37, s37, {ST_G}
    s_cmp_lt_u32 s56, 2
    s_cselect_b32 s61, s36, s37
    """)
    vm.issue(f"buffer_load_dwordx4 {vr(GF)}, v13, {sr(S_WS)}, s61 offen sc1", "gr")
def csq(a, sd, smat, sj):
    a(f"""
    s_cmp_ge_u32 s{sj}, 7
    s_cselect_b32 s37, 13, 0
    s_mul_i32 s{sd}, s{smat}, 7
    s_add_u32 s{sd}, s{sd}, s{sj}
    s_lshl_b32 s{sd}, s{sd}, 1
    s_sub_u32 s{sd}, s{sd}, s37
    """)
def granule_check(a, vm):
    lr = a.label("grre"); lo = a.label("grok"); l2 = a.label("gst"); l3 = a.label("gdn")
    csq(a, 36, 56, 7)
    a(f"""
    s_lshl_b32 s37, s6, 1
    s_cmp_lt_u32 s56, 2
    s_cselect_b32 s36, s36, s37
    s_cselect_b32 s37, 0, 1
    s_add_u32 s37, s37, s36
    v_readlane_b32 s36, v{VT}, s36
    v_readlane_b32 s37, v{VT}, s37
    v_cmp_gt_u32 vcc, 32, v1
    v_mov_b32 v5, s36
    v_mov_b32 v4, s37
    v_cndmask_b32 v4, v4, v5, vcc
    s_mov_b32 s58, {POLL_MAX}
    """)
    vm.wait("gr")
    a(f"""
    {lr}:
    v_cmp_ne_u32 vcc, v4, v{GF+1}
    v_cmp_ne_u32 s[36:37], v4, v{GF+3}
    s_or_b64 vcc, vcc, s[36:37]
    s_cbranch_scc0 {lo}
    buffer_load_dwordx4 {vr(GF)}, v13, {sr(S_WS)}, s61 offen sc1
    s_waitcnt vmcnt(0)
    s_sub_u32 s58, s58, 1
    s_cmp_lg_u32 s58, 0
    s_cbranch_scc1 {lr}
    {lo}:
    s_cmp_lt_u32 s56, 2
    s_cbranch_scc0 {l2}
    s_lshl_b32 s36, s56, 9
    s_add_u32 s36, s36, {AUXL}
    v_lshl_add_u32 v4, v1, 3, s36
    ds_write2_b32 v4, v{GF}, v{GF+2} offset0:0 offset1:1
    s_branch {l3}
    {l2}:
    v_lshlrev_b32 v{GF}, 16, v{GF}
    v_lshlrev_b32 v{GF+2}, 16, v{GF+2}
    v_xor_b32 v{GF}, 0x80000000, v{GF}
    v_xor_b32 v{GF+2}, 0x80000000, v{GF+2}
    v_and_b32 v4, 7, v1
    v_lshlrev_b32 v4, 5, v4
    v_bfe_u32 v5, v1, 3, 2
    v_lshl_add_u32 v4, v5, 2, v4
    v_lshrrev_b32 v5, 5, v1
    v_lshl_add_u32 v4, v5, 8, v4
    v_add_u32 v4, {AUXL+1024}, v4
    ds_write2_b32 v4, v{GF}, v{GF+2} offset0:0 offset1:4
    {l3}:
    """)

WADV = "s_add_u32 s51, s51, 0x8000\ns_cmp_eq_u32 s51, s87\ns_cselect_b32 s51, s86, s51\n"
def wdA_units(k):
    return [((WADV if (k and e == 0) else "") + f"s_add_u32 m0, s52, {WSLOT[k] + e*1024}\ns_add_u32 s49, s51, {e*8192}", f"buffer_load_dwordx4 v{VWD}, {sr(S_WD)}, s49 offen lds", "wd") for e in range(4)]

DF = 16
GROUPS = ((7,4,3,0),(6,5,2,1))
def conv_setup(a):
    a(f"""
    s_lshr_b32 s91, s2, 5
    s_mul_i32 s91, s91, {ATP}
    s_and_b32 s41, s2, 31
    s_lshl_b32 s41, s41, 1
    s_add_u32 s41, s41, s5
    s_lshl_b32 s41, s41, 7
    s_add_u32 s91, s91, s41
    s_add_u32 s91, s91, {AT_OFF}
    s_lshl_b32 s41, s5, 4
    s_lshr_b32 s38, s{S_DD}, s41
    s_and_b32 s38, s38, 0xffff
    s_and_b32 s41, s56, 1
    s_sub_u32 s41, s41, 1
    s_and_b32 s38, s38, s41
    v_and_b32 v2, 15, v1
    v_lshrrev_b32 v3, 4, v1
    v_lshlrev_b32 v3, 3, v3
    v_sub_u32 v2, v2, v3
    v_add_u32 v2, 16, v2                        ; i = m+16-8g
    v_ashrrev_i32 v2, 1, v2
    v_and_b32 v3, 1, v1
    v_lshlrev_b32 v3, 4, v3
    v_lshlrev_b32 v3, v3, s38
    v_cmp_eq_i32 s[78:79], 0, v2
    v_cmp_eq_i32 s[80:81], 1, v2
    v_cmp_eq_i32 s[82:83], 2, v2
    v_cmp_eq_i32 s[84:85], 3, v2
    v_cndmask_b32 v{DF}, 0, v3, s[78:79]
    v_cndmask_b32 v{DF+1}, 0, v3, s[80:81]
    v_cndmask_b32 v{DF+2}, 0, v3, s[82:83]
    v_cndmask_b32 v{DF+3}, 0, v3, s[84:85]
    s_and_b32 s41, s56, 1
    s_lshl_b32 s41, s41, 5
    s_lshr_b32 s{S_FO}, s2, 3
    s_add_u32 s{S_FO}, s{S_FO}, s41
    s_mul_i32 s{S_FO}, s{S_FO}, {AFS}
    s_and_b32 s41, s2, 7
    s_lshl_b32 s41, s41, 1
    s_add_u32 s41, s41, s5
    s_lshl_b32 s41, s41, 2
    s_add_u32 s{S_FO}, s{S_FO}, s41
    s_add_u32 s{S_FO}, s{S_FO}, {AF_OFF}
    """)

def post_b16(a):
    lu = a.label("uok")
    a("F_pp:")
    tails(a)
    l2 = a.label("uj")
    a(f"s_waitcnt vmcnt(28)\ns_cmp_eq_u32 s55, 2\ns_cbranch_scc1 {l2}\ns_cmp_eq_u32 s55, 1\ns_cbranch_scc1 {lu}")
    xf_addr(a, 41)
    poll(a, XFL, 14, S_WS, "s41", -1, f"v{VT}")
    u_loads(a, None)
    a(f"{lu}:\ns_waitcnt vmcnt(0)\n{l2}:")
    stamp(a, "ps1")
    a(f"""
    ds_write_b128 v{UA}, {vr(UF)}
    ds_write_b128 v{UA}, {vr(UF+4)} offset:2048
    s_mov_b64 exec, 1
    ds_add_u32 v{VCN}, v{VONE} offset:{C_PS}
    s_mov_b64 exec, -1
    """)
    lds_wait(a, VCN, C_PS, 4, 2)
    stamp(a, "ps2")
    a(f"s_setprio {O.cvprio}")
    CAC = KW; POOL = list(range(KW+32, 256, 4))
    mf = []; loads = {}
    for cls in range(4):
        for k in range(8):
            loads[("A",cls,k)] = (lambda r, cls=cls, k=k: [f"ds_read_b64 v[{r}:{r+1}], v{CA} offset:{512*(7-k)+192-64*cls}", f"ds_read_b64 v[{r+2}:{r+3}], v{CA} offset:{512*(7-k)+192-64*cls+8}"])
            loads[("B",cls,k)] = (lambda r, cls=cls, k=k: [f"ds_read_b128 {vr(r)}, v{CB} offset:{512*k+192-64*cls}"])
        for k in range(8):
            for tau in range(k, 8):
                first = (cls == 0 and k == 0)
                mf.append((f"v_mfma_f32_16x16x32_bf16 {vr(CAC+4*tau)}, {{1}}, {{0}}, {0 if first else vr(CAC+4*tau)}", [("A",cls,k), ("B",cls,tau-k)]))
        if cls == 0:
            for tau in range(8):
                mf.insert(8+tau, (f"v_mfma_f32_16x16x32_bf16 {vr(CAC+4*tau)}, {{0}}, {vr(DF)}, {vr(CAC+4*tau)}", [("B",0,tau)]))
    pipeline(a, mf, loads, POOL[:O.cpool], per_gap=O.cgap, lead=14)
    stamp(a, 'cv_m')
    FR = KW+32
    a(f"""
    s_lshl_b32 s41, s5, 2
    v_add_u32 v3, s41, v{VCN}
    s_mov_b64 exec, 1
    ds_add_u32 v3, v{VONE} offset:{C_KF}
    s_mov_b64 exec, -1
    s_mul_i32 s41, s5, {4*PC}
    s_and_b32 s40, s56, 1
    s_lshl_b32 s44, s40, 12
    s_add_u32 s41, s41, {LC}
    s_add_u32 s45, s41, s44
    v_lshl_add_u32 v4, v1, 4, s45
    s_xor_b32 s44, s44, 0x1000
    s_add_u32 s45, s41, s44
    v_lshl_add_u32 v13, v1, 4, s45
    s_mul_i32 s44, s40, {128*ATP}
    s_add_u32 s42, s91, s44
    """)
    lds_wait(a, 3, C_KF, 3, 2)
    h1 = a.label("h1"); hj = a.label("hj")
    a(f"s_bitcmp1_b32 s56, 0\ns_cbranch_scc1 {h1}")
    for k in range(4): a(f"ds_write_b128 v13, {vr(CAC+16+4*k)} offset:{1024*k}")
    a(f"s_branch {hj}\n{h1}:")
    for k in range(4): a(f"ds_write_b128 v13, {vr(CAC+4*k)} offset:{1024*k}")
    for k in range(8): a(f"v_mov_b64 {pr(CAC+2*k)}, {pr(CAC+16+2*k)}")
    a(f"{hj}:\ns_mov_b64 exec, 1\nds_add_u32 v3, v{VONE} offset:{C_KF}\ns_mov_b64 exec, -1")
    lds_wait(a, 3, C_KF, 5, 2)
    stamp(a, 'cv_x')
    for k in range(4): a(f"ds_read_b128 {vr(FR+4*k)}, v4 offset:{1024*k}")
    for k in range(4):
        U = FR+16+4*k
        a(f"s_waitcnt lgkmcnt({3-k})")
        for r in range(4): a(f"v_add_f32 v{CAC+4*k+r}, v{CAC+4*k+r}, v{FR+4*k+r}")
        a(f"v_cvt_pk_bf16_f32 v{U}, v{CAC+4*k}, v{CAC+4*k+1}\nv_cvt_pk_bf16_f32 v{U+1}, v{CAC+4*k+2}, v{CAC+4*k+3}")
        a(f"s_add_u32 s44, s42, {k*32*ATP}\nbuffer_store_dwordx2 {pr(U)}, v{CS_}, {sr(S_WS)}, s44 offen sc1")
    stamp(a, "conv_end")
    prod_tail(a)
O.cpool = 32; O.aord = 160; O.mergex = 1; O.wb2 = 3; O.hb0 = 24; O.wbias = 1.5; O.l2g0 = 6; O.apf = 0; O.cop = []; O.up3 = 12; O.tl2 = 1; O.epg = 6; O.l2pf = 1; O.kstream = 1; O.wpn = 1; O.hyb = 3; O.k8 = 0; O.phi = 's_mov_b32 s60, 0'; O.opol = ''; O.cpf = 1; O.tch = 0; O.wb1 = 4; O.map2 = 1; O.go_at = 8; O.epk = 0; O.lalign = None; O.cvprio = 1; O.noa = 0; O.nob = 0; O.noconv = 0; O.hpol = 'sc1'; O.rotm = 7; O.hgap = 3; O.wpf = 9; O.pprio = 0; O.dsn = 5; O.pair_at = 36; O.cgap = 2


E1B = 3*SLOT; E2B = XR + 4*HS
def k8_pre(a):
    a(f"""
    s_lshr_b32 s5, s56, 1
    s_and_b32 s40, s56, 1
    s_lshl_b32 s40, s40, 8
    s_mul_i32 s41, s5, {48*512}
    s_add_u32 s41, s41, s40
    s_add_u32 s41, s41, {E1B}
    v_lshl_add_u32 v200, v1, 2, s41
    """)
    for r in range(1, 8): a(f"v_xor_b32 v{200+r}, {r<<4}, v200")
def k8_head(a, W):
    AR, PH, T, DT, C2 = W, W+1, W+2, W+5, W+6
    V = PV
    a(f"""
    s_lshl_b32 s3, s5, 4
    s_lshr_b32 s3, s{S_LDT}, s3
    s_lshl_b32 s3, s3, 16
    v_mov_b32 v{DT}, {hex(LOG2E)}
    v_mul_f32 v{DT}, s3, v{DT}
    v_lshlrev_b32 v{V}, 16, v{V}
    v_lshlrev_b32 v{V+1}, 16, v{V+1}
    v_mul_f32 v{V}, {hex(LOG2E)}, v{V}
    v_exp_f32 v{V}, v{V}
    v_exp_f32 v{DT}, v{DT}
    v_lshlrev_b32 v{V+2}, 16, v{V+2}
    v_cvt_pk_bf16_f32 v{T}, v{DT}, v{V}
    v_lshlrev_b32 v{DT}, 16, v{T}
    v_and_b32 v{V}, 0xffff0000, v{T}
    v_mul_f32 v{AR}, v{V}, v{DT}
    v_mul_f32 v{PH}, v{V+1}, v{DT}
    v_mul_f32 v{AR}, {hex(LOG2E ^ 0x80000000)}, v{AR}
    v_mul_f32 v{PH}, {hex(INV2PI)}, v{PH}
    """)
def k8_cm(a, ops):
    for (o,x,w,t) in ops: a(f"v_pk_mul_f32 {pr(t)}, {pr(x)}, {pr(w)} op_sel_hi:[1,0]")
    for (o,x,w,t) in ops: a(f"v_pk_fma_f32 {pr(o)}, {pr(x)}, {pr(w)}, {pr(t)} op_sel:[1,1,0] op_sel_hi:[0,1,1] neg_lo:[1,0,0]")
def k8_anchors(a, anc, AR, PH, TT):
    for i, (o, p) in enumerate(anc): a(f"v_mul_f32 v{TT+2*i}, {hex(f2u(float(p)))}, v{AR}\nv_mul_f32 v{TT+2*i+1}, {hex(f2u(float(p)))}, v{PH}")
    for i, (o, p) in enumerate(anc): a(f"v_fract_f32 v{TT+2*i+1}, v{TT+2*i+1}\nv_exp_f32 v{TT+2*i}, v{TT+2*i}")
    for i, (o, p) in enumerate(anc): a(f"v_cos_f32 v{o}, v{TT+2*i+1}\nv_sin_f32 v{o+1}, v{TT+2*i+1}")
    a("s_nop 0")
    for i, (o, p) in enumerate(anc): a(f"v_pk_mul_f32 {pr(o)}, {pr(o)}, {pr(TT+2*i)} op_sel_hi:[1,0]")
def k8_part0(a):
    W = KW; AR, PH, DT, C2 = W, W+1, W+5, W+6
    W8, W16, C3, Y, Y2, W128, W256, TT, PK = W+8, W+10, W+12, W+14, W+16, W+18, W+20, W+24, W+40
    k8_head(a, W)
    a(f"""
    v_lshlrev_b32 v{PV+3}, 16, v{PV+3}
    v_add_f32 v{DT}, v{DT}, v{DT}
    v_mul_f32 v{C2}, v{PV+2}, v{DT}
    v_mul_f32 v{C2+1}, v{PV+3}, v{DT}
    """)
    k8_anchors(a, [(W8, 8), (W16, 16), (Y, 1024), (Y2, 1152), (W256, 256)], AR, PH, TT)
    k8_cm(a, [(C3, C2, W8, TT)])
    for i in range(8):
        pk = PK + 4*(i % 2)
        a(f"v_cvt_pk_bf16_f32 v{pk}, v{C2}, -v{C2+1}\nv_cvt_pk_bf16_f32 v{pk+1}, v{C3}, -v{C3+1}")
        if i < 5: a(f"v_cvt_pk_bf16_f32 v{pk+2}, v{Y}, v{Y+1}")
        if i < 4: a(f"v_cvt_pk_bf16_f32 v{pk+3}, v{Y2}, v{Y2+1}")
        ops = []
        if i < 7: ops += [(C2, C2, W16, TT), (C3, C3, W16, TT+2)]
        if i < 4: ops += [(Y, Y, W256, TT+4)]
        if i < 3: ops += [(Y2, Y2, W256, TT+6)]
        k8_cm(a, ops)
        a(f"ds_write2st64_b32 v{208+i}, v{pk}, v{pk+1} offset0:{4*i} offset1:{4*i+2}")
        if i < 4: a(f"ds_write2st64_b32 v{200+i}, v{pk+2}, v{pk+3} offset0:{64+4*i} offset1:{64+4*i+2}")
        if i == 4: a(f"ds_write_b32 v{204}, v{pk+2} offset:{40*512}")
def k8_part1(a):
    W = KW; AR, PH = W, W+1
    Fk = lambda k: W+6+2*k; Ca = lambda k: W+20+2*k
    TT = W+36; O4 = [W+48+2*i for i in range(4)]; PK = 128
    k8_head(a, W)
    k8_anchors(a, [(Fk(1), 1), (Fk(2), 2), (Ca(1), 128), (Ca(2), 256)], AR, PH, TT)
    have = set()
    def put(row, x):
        if x is None: a(f"v_mov_b32 v{PK+row}, 0x3f80")
        else: a(f"v_cvt_pk_bf16_f32 v{PK+row}, v{x}, v{x+1}")
        have.add(row)
    done = set()
    def flush():
        for r in range(0, 32, 2):
            if r not in done and r in have and r+1 in have:
                a(f"ds_write2st64_b32 v{200+(r//2)%8}, v{PK+r}, v{PK+r+1} offset0:{2*r} offset1:{2*r+2}"); done.add(r)
    crow = {1:8, 2:16, 3:20, 4:24, 5:26, 6:28, 7:30}
    put(0, None); put(1, Fk(1)); put(2, Fk(2)); put(8, Ca(1)); put(16, Ca(2))
    for k in (3, 5, 7):
        ops = [(Fk(k), Fk(k-2), Fk(2), TT), (Ca(k), Ca(k-2), Ca(2), TT+2)]
        if k < 7: ops += [(Fk(k+1), Fk(k-1), Fk(2), TT+4), (Ca(k+1), Ca(k-1), Ca(2), TT+6)]
        k8_cm(a, ops); flush()
        put(k, Fk(k)); put(crow[k], Ca(k))
        if k < 7: put(k+1, Fk(k+1)); put(crow[k+1], Ca(k+1))
    prods = [(8+k, Ca(1), Fk(k)) for k in range(1,8)] + [(16+i, Ca(2), Fk(2*i)) for i in (1,2,3)] + [(20+i, Ca(3), Fk(2*i)) for i in (1,2,3)] + [(crow[c]+1, Ca(c), Fk(4)) for c in (4,5,6,7)]
    for i in range(0, len(prods), 4):
        grp = prods[i:i+4]
        k8_cm(a, [(O4[k], x, w, TT+2*k) for k, (r, x, w) in enumerate(grp)]); flush()
        for k, (r, x, w) in enumerate(grp): put(r, O4[k])
    flush(); assert len(done) == 16
def k8_mfma_pre(a, tile_s, ch_s):
    a(f"""
    v_and_b32 v2, 15, v1
    v_lshrrev_b32 v3, 4, v1
    v_lshrrev_b32 v4, 1, v2
    v_xor_b32 v4, v4, v3
    v_lshlrev_b32 v4, 4, v4
    v_lshl_add_u32 v4, v2, 9, v4
    s_mul_i32 s40, s{ch_s}, 3
    s_add_u32 s40, s40, s{tile_s}
    s_lshl_b32 s40, s40, 13
    s_add_u32 s40, s40, {E1B}
    v_add_u32 v214, s40, v4
    v_xor_b32 v215, 64, v214
    s_lshl_b32 s40, s{ch_s}, 13
    s_add_u32 s40, s40, {E2B}
    v_add_u32 v216, s40, v4
    v_xor_b32 v217, 64, v216
    """)
def k8_mfma(a):
    FR = 128; AK = 220
    for ks in range(8):
        a(f"ds_read_b128 {vr(FR+8*ks)}, v{214+(ks&1)} offset:{(ks>>1)*128}")
        a(f"ds_read_b128 {vr(FR+8*ks+4)}, v{216+(ks&1)} offset:{(ks>>1)*128}")
    for ks in range(8):
        a(f"s_waitcnt lgkmcnt({14-2*ks})")
        a(f"v_mfma_f32_16x16x32_bf16 {vr(AK+4*(ks&1))}, {vr(FR+8*ks)}, {vr(FR+8*ks+4)}, {vr(AK+4*(ks&1)) if ks > 1 else 0}")
    a("s_nop 7")
    a(f"v_pk_add_f32 {pr(AK)}, {pr(AK)}, {pr(AK+4)}\nv_pk_add_f32 {pr(AK+2)}, {pr(AK+2)}, {pr(AK+6)}")
    a(f"v_cvt_pk_bf16_f32 v{AK}, v{AK}, v{AK+1}\nv_cvt_pk_bf16_f32 v{AK+1}, v{AK+2}, v{AK+3}")

def dma_setup(a, sp):
    a(f"""
    v_lshrrev_b32 v2, 4, v1
    v_bfe_u32 v3, v1, 1, 3
    s_and_b32 s41, s{sp}, 1
    s_lshl_b32 s41, s41, 2
    v_xor_b32 v3, v3, v2
    v_xor_b32 v3, s41, v3
    v_and_b32 v4, 1, v1
    v_lshl_or_b32 v3, v3, 1, v4
    v_mul_u32_u24 v4, 3584, v2
    v_lshl_add_u32 v8, v3, 4, v4
    v_and_b32 v3, 7, v1
    v_xor_b32 v3, v3, v2
    v_lshrrev_b32 v4, 3, v1
    v_lshlrev_b32 v4, 10, v4
    v_lshl_add_u32 v9, v3, 4, v4
    v_xor_b32 v10, 64, v9
    v_add_u32 v10, 0x1c00, v10
    v_add_u32 v12, {4*3584-2048}, v8
    s_mul_i32 s42, s{sp}, {8*3584}
    s_lshl_b32 s43, s7, 8
    s_add_u32 s42, s42, s43
    s_add_u32 s50, s42, {512*3584}
    s_mov_b32 s47, s42
    s_lshl_b32 s43, s6, 17
    s_lshl_b32 s44, s{sp}, 14
    s_add_u32 s43, s43, s44
    s_mov_b32 s46, 0
    s_lshl_b32 s44, s{sp}, 12
    s_lshl_b32 s45, s{sp}, 11
    s_add_u32 s45, s45, {XR}
    """)
def wu_fix(a): a(f"s_sub_u32 s{S_WU}, s{S_WU}, 1024\ns_subb_u32 s{S_WU+1}, s{S_WU+1}, 0")
def xhalf(h, tag):
    sig, hh = h >> 1, h & 1
    pre = f"s_add_u32 m0, s45, {(h % 7)*HS}\n"
    if hh == 0: pre += "s_add_u32 s48, s46, s43"
    else:
        pre += "s_add_u32 s48, s48, 0x10000\ns_add_u32 s46, s46, 128"
        if O.hyb and sig == O.hyb-1: pre += "\ns_lshl_b32 s3, s60, 7\ns_add_u32 s46, s46, s3"
        elif O.hyb and sig >= O.hyb: pre += f"\ns_cmp_eq_u32 s46, 0x400\ns_cselect_b32 s46, {O.hyb*128}, s46"
    return [(pre, f"buffer_load_dwordx4 v9, {sr(S_X)}, s48 offen lds", tag), ("", f"buffer_load_dwordx4 v10, {sr(S_X)}, s48 offen offset:1024 lds", tag)]
ADV = f"s_add_u32 s47, s47, {32*3584}\ns_cmp_eq_u32 s47, s50\ns_cselect_b32 s47, s42, s47"
def group(g):
    b = (g % NW)*SLOT
    adv = f"s_add_u32 s47, s47, {32*3584}" if g else "s_nop 0"
    if O.hyb and g == 2*O.hyb: adv += f"\ns_mov_b32 s42, s47\ns_mul_i32 s3, s60, {64*3584}\ns_add_u32 s47, s47, s3"
    elif O.hyb and g > 2*O.hyb and g % 2 == 0: adv += "\ns_cmp_eq_u32 s47, s50\ns_cselect_b32 s47, s42, s47"
    o = [(f"s_add_u32 m0, s44, {b}\n{adv}", f"buffer_load_dwordx4 v8, {sr(S_WG)}, s47 offen lds", g),
         ("", f"buffer_load_dwordx4 v8, {sr(S_WU)}, s47 offen offset:1024 lds", g),
         ("", f"buffer_load_dwordx4 v12, {sr(S_WG)}, s47 offen offset:2048 lds", g),
         ("", f"buffer_load_dwordx4 v12, {sr(S_WU)}, s47 offen offset:3072 lds", g)]
    if g < 15: o += xhalf(g+1, g)
    return o
NCG = 0

def prefetches(a):
    if O.cpf: a(f"""
    s_getpc_b64 s[36:37]
    F_pc:
    s_sub_u32 s36, s36, F_pc-{NAME}
    s_subb_u32 s37, s37, 0
    s_bfe_u32 s38, s2, 0x30003
    s_lshl_b32 s38, s38, 2
    s_add_u32 s38, s38, s56
    s_lshl_b32 s38, s38, 10
    s_min_u32 s38, s38, F_last-{NAME}-1024
    v_lshlrev_b32 v2, 4, v1
    v_add_u32 v2, s38, v2
    global_load_dwordx4 v[240:243], v2, s[36:37]
    """)
    if O.tch: a(f"""
    v_lshlrev_b32 v2, 21, v1
    s_mov_b64 exec, 0x7f
    buffer_load_dword v244, v2, {sr(S_WS)}, 0 offen
    s_mov_b64 exec, 1
    buffer_load_dword v245, v2, {sr(S_OUT)}, 0 offen
    buffer_load_dword v246, v2, {sr(S_WD)}, 0 offen
    s_mov_b64 exec, -1
    """)

def g1_producer(a):
    vm = VM(a)
    dma_setup(a, 56); a('s_waitcnt lgkmcnt(0)'); wu_fix(a)
    stamp(a, "p_start")
    units = [(u, -1) for u in xhalf(0, 0)]
    for g in range(NCG, 16):
        for k, u in enumerate(group(g)):
            h = g+1
            if k < 4: mb = g-5 if g > 5 else -1
            else: mb = -1 if h < 7 else 2*((h-7) >> 1) + 2
            units.append((u, mb))
    for k in range(NRG): units += [(u, WAVAIL[k]) for u in wdA_units(k)]
    def take(s, n):
        o = []
        while units and len(o) < n and units[0][1] <= s: o.append(units.pop(0)[0])
        return o
    def emit(dmas, lines):
        n = len(dmas); cuts = [i*len(lines)//n for i in range(n)] if n else []
        k = 0
        for i in range(len(lines)+1):
            while k < n and cuts[k] == i:
                a(dmas[k][0]); vm.issue(dmas[k][1], dmas[k][2]); k += 1
            if i < len(lines): a.lines.append(lines[i])
    def L(fn, *args, **kw):
        b = Asm("B"); fn(b, *args, **kw); return b.lines
    if O.k8:
        vm.ops = ["par"]*4
        k8_pre(a); kaddr_setup(a)
        a("s_and_b32 s38, s56, 1"); k8_mfma_pre(a, 38, 5)
        emit(take(-1, 20), [])
        vm.wait("par", "lgkmcnt(0)")
        stamp(a, "p_par")
        k8_part1(a)
        a("s_waitcnt lgkmcnt(0)\ns_barrier")
        k8_mfma(a)
        l1 = a.label("kt1"); l2 = a.label("ktd")
        a(f"""
        s_lshl_b32 s41, s5, 2
        v_add_u32 v3, s41, v{VCN}
        ds_write_b32 v3, v{VONE} offset:{C_KF}
        s_bitcmp1_b32 s56, 0
        s_cbranch_scc1 {l1}
        ds_write_b64 v{KA0}, v[220:221]
        s_branch {l2}
        {l1}:
        ds_write_b32 v{KA1a}, v220 offset:512
        ds_write_b32 v{KA1b}, v221 offset:512
        {l2}:
        s_waitcnt lgkmcnt(0)
        """)
        stamp(a, "p_kg")
        rest = L(late_loads) + L(prod_setup) + ["    s_waitcnt lgkmcnt(0)"] + L(conv_setup)
        per = (len(rest) + 9)//10
        bg = {1+i: rest[i*per:(i+1)*per] for i in range(10)}
    else:
        emit(take(-1, 20), [])
        late_loads(a)
        prefetches(a); vm.ops += ["pf"]*(O.cpf + 3*O.tch)
        emit(take(-1, O.up3), L(prod_setup))
        stamp(a, "p_kg")
        a("s_waitcnt lgkmcnt(0)")
        conv_setup(a)
        if O.l2pf:
            a("s_bfe_u32 s88, s2, 0x20003")
            for m in range(O.l2pf):
                a(f"""
                s_add_u32 s3, s88, {4*m + O.l2g0}
                s_min_u32 s3, s3, 15
                s_lshl_b32 s90, s60, 1
                s_add_u32 s89, s3, s90
                s_cmp_ge_u32 s89, 16
                s_cselect_b32 s90, {16-2*O.hyb}, 0
                s_sub_u32 s89, s89, s90
                s_cmp_lt_u32 s3, {2*O.hyb}
                s_cselect_b32 s89, s3, s89
                s_mul_i32 s89, s89, {32*3584}
                s_add_u32 s89, s89, s42
                """)
                for k_, (v_, srd_, off_) in enumerate(((8, S_WG, 0), (8, S_WU, 1024), (12, S_WG, 2048), (12, S_WU, 3072))):
                    vm.issue(f"buffer_load_dwordx4 {vr(224+4*k_)}, v{v_}, {sr(srd_)}, s89 offen offset:{off_}", "l2pf")
        if not O.mergex: a("s_barrier")
        bg = {}
    for s in range(17):
        if s <= 15:
            assert any(t == s for t in vm.ops) and not any(u[0][2] == s for u in units), s
            vm.wait(s)
        if s == 16: a("s_waitcnt lgkmcnt(0)")
        a("s_barrier")
        stamp(a, f"pb{s}")
        if s == 11:
            vm.wait("tag")
            tags_check(a)
        if s == O.xfc:
            vm.wait("xf")
            lu_ = a.label("nou")
            a(f"v_cmp_ne_u32 vcc, v{VT}, v{XFL}\ns_cmp_eq_u64 vcc, 0\ns_cselect_b32 s55, 2, 0\ns_cbranch_scc0 {lu_}")
            u_loads(a, None)
            a(f"{lu_}:")
        if s == 16:
            if O.xfc > 16: a("s_mov_b32 s55, 0")
            lu_ = a.label("nox2")
            a(f"s_cmp_eq_u32 s55, 2\ns_cbranch_scc1 {lu_}")
            xf_addr(a, 36)
            a(f"buffer_load_dword v{XFL}, v14, {sr(S_WS)}, s36 offen sc1\n{lu_}:")
        emit(take(s, O.quota[s] if s < 16 else 99), bg.get(s, []))
        if O.wpf and s == O.wpf-1:
            a(f"""
            s_lshr_b32 s88, s2, 3
            s_sub_u32 s88, s88, 4
            s_lshl_b32 s88, s88, 2
            s_add_u32 s88, s88, s56
            s_lshl_b32 s88, s88, 14
            s_and_b32 s89, s2, 1
            s_lshl_b32 s89, s89, 9
            s_add_u32 s88, s88, s89
            s_and_b32 s89, s2, 6
            s_lshl_b32 s89, s89, 11
            v_lshrrev_b32 v229, 5, v1
            v_lshlrev_b32 v229, 10, v229
            v_and_b32 v228, 31, v1
            v_lshl_add_u32 v228, v228, 4, v229
            """)
        for _ in range(O.wpn if (O.wpf and O.wpf <= s < O.wpf + 8//O.wpn) else 0):
            a("s_add_u32 s90, s88, s89")
            vm.issue(f"buffer_load_dwordx4 v[224:227], v228, {sr(S_WD)}, s90 offen", "wpf")
            if O.map2 == 2:
                a("s_xor_b32 s90, s90, 0x2200")
                vm.issue(f"buffer_load_dwordx4 v[232:235], v228, {sr(S_WD)}, s90 offen", "wpf")
            a("s_add_u32 s89, s89, 0x800\ns_and_b32 s89, s89, 0x3fff")
        if s == 4: vm.issue(f"buffer_load_dword v{VT}, v14, {sr(S_DBG)}, 0 offen sc1", "tag")
        if s == O.xfc-2:
            xf_addr(a, 36)
            vm.issue(f"buffer_load_dword v{XFL}, v14, {sr(S_WS)}, s36 offen sc1", "xf")
        if s == 12: granule_issue(a, vm)
        if s == 15: granule_check(a, vm)
    assert not units
    stamp(a, "p_b16")
    expand_gather(a)
    a(f"s_lshl_b32 s41, s56, 2\nv_add_u32 v3, s41, v{VCN}")
    vm.wait("wd")
    a(f"s_mov_b64 exec, 1\nds_write_b32 v3, v{VONE} offset:{C_PAIR}\ns_mov_b64 exec, -1")
    lu_ = a.label("nou2")
    a(f"s_cmp_eq_u32 s55, 2\ns_cbranch_scc1 {lu_}\ns_waitcnt vmcnt(0)")
    a(f"v_cmp_ne_u32 vcc, v{VT}, v{XFL}\ns_cmp_eq_u64 vcc, 0\ns_cselect_b32 s55, 2, 0\ns_cbranch_scc0 {lu_}")
    u_loads(a, None)
    a(f"{lu_}:")
    tails_prep(a)
    lds_signal(a, VCN, C_KX, VONE)
    a.lines += expand_writes()
    lds_wait(a, VCN, C_KX, 4, 2)
    a("s_waitcnt vmcnt(0)")
    post_b16(a)

ACC = 128
def acc(t, mat, nt): return ACC + ((nt*4+t)*2+mat)*4
def FA(b, t, mat): return 32 + 48*b + (t*2+mat)*4
def FB(b, nt): return 32 + 48*b + 32 + 4*nt
def g1_consumer(a):
    VA, VB = 8, 12
    a(f"""
    s_setprio {O.cprio}
    v_mov_b32 v{VCN}, {CNT}
    v_lshl_add_u32 v2, v1, 2, v{VCN}
    v_mov_b32 v3, 0
    ds_write_b32 v2, v3
    """)
    late_loads(a)
    if O.cop:
        a(f"s_sub_u32 s40, s2, 32\ns_lshl_b32 s40, s40, 2\ns_add_u32 s40, s40, s{S_WAVE}\ns_lshl_b32 s40, s40, 11\nv_lshlrev_b32 v2, 4, v1")
        for srd_ in O.cop:
            for k_ in range(2): a(f"buffer_load_dwordx4 {vr(36+4*k_)}, v2, {sr(srd_)}, s40 offen offset:{1024*k_}")
    a(f"""
    s_and_b32 s40, s{S_WAVE}, 1
    s_lshr_b32 s41, s{S_WAVE}, 1
    v_lshrrev_b32 v2, 4, v1
    v_bfe_u32 v3, v1, 2, 2
    v_and_b32 v4, 3, v1
    v_and_b32 v5, 1, v2
    v_lshl_or_b32 v5, v5, 2, v3
    s_lshl_b32 s42, s40, 2
    v_xor_b32 v5, s42, v5
    v_lshlrev_b32 v5, 5, v5
    v_lshl_add_u32 v5, v4, 3, v5
    v_lshl_add_u32 v5, v3, 8, v5
    v_lshl_add_u32 v{VA}, v2, 12, v5
    v_xor_b32 v{VA+1}, 32, v{VA}
    v_xor_b32 v{VA+2}, 64, v{VA}
    v_xor_b32 v{VA+3}, 96, v{VA}
    v_and_b32 v6, 15, v1
    v_lshrrev_b32 v7, 1, v6
    v_xor_b32 v7, v7, v2
    v_lshlrev_b32 v7, 4, v7
    v_lshl_add_u32 v7, v6, 7, v7
    s_lshl_b32 s42, s41, 13
    s_add_u32 s42, s42, {XR}
    v_add_u32 v{VB}, s42, v7
    v_xor_b32 v{VB+1}, 64, v{VB}
    s_lshl_b32 s42, s40, 8
    s_add_u32 s42, s42, {AUXL}
    v_lshl_add_u32 v14, v2, 4, s42
    s_lshl_b32 s42, s41, 8
    s_add_u32 s42, s42, {AUXL+1024}
    v_lshl_add_u32 v44, v6, 4, s42
    v_mov_b32 v{VFL}, 0
    s_lshl_b32 s42, s6, 1
    s_add_u32 s42, s42, s41
    s_lshl_b32 s{S_FO}, s42, 2
    s_mul_i32 s42, s42, 28
    s_lshl_b32 s43, s7, 1
    s_add_u32 s43, s43, s40
    s_add_u32 s42, s42, s43
    s_lshl_b32 s50, s42, 13
    s_add_u32 s51, s50, 4096
    s_mul_i32 s42, s43, 37
    s_lshr_b32 s42, s42, 8
    s_add_u32 s{S_FO}, s{S_FO}, s42
    s_mul_i32 s{S_FO}, s{S_FO}, {HFS}
    s_mul_i32 s42, s42, 7
    s_sub_u32 s43, s43, s42
    s_lshl_b32 s43, s43, 2
    s_add_u32 s{S_FO}, s{S_FO}, s43
    s_add_u32 s{S_FO}, s{S_FO}, {HF_OFF}
    s_mov_b64 s[{S_FM}:{S_FM+1}], 1
    s_mov_b32 s44, 0
    s_mov_b32 s45, s41
    s_mov_b32 s52, {SLOT}
    """)
    if O.k8:
        k8_pre(a)
        a(f"s_mul_i32 s40, s5, {8192 - 48*512}\ns_add_u32 s40, s40, {E2B - E1B}")
        for r in range(8): a(f"v_add_u32 v{208+r}, s40, v{200+r}")
        a(f"""
        v_and_b32 v2, 15, v1
        v_lshrrev_b32 v3, 4, v1
        v_lshlrev_b32 v3, 7, v3
        v_lshl_add_u32 v3, v2, 1, v3
        s_mul_i32 s40, s5, {KTP}
        s_add_u32 s40, s40, {KT+1024}
        v_add_u32 v218, s40, v3
        s_waitcnt vmcnt(0) lgkmcnt(0)
        """)
        stamp(a, "c_par")
        k8_part0(a)
        a("s_mov_b32 s38, 2")
        k8_mfma_pre(a, 38, 5)
        stamp(a, "c_kv")
        lk = a.label("nok")
        a(f"s_waitcnt lgkmcnt(0)\ns_barrier\ns_bitcmp1_b32 s56, 0\ns_cbranch_scc1 {lk}")
        k8_mfma(a)
        a(f"""
        ds_write_b16 v218, v220
        ds_write_b16_d16_hi v218, v220 offset:32
        ds_write_b16 v218, v221 offset:64
        ds_write_b16_d16_hi v218, v221 offset:96
        {lk}:
        """)
        stamp(a, "c_kg")
    else:
        kaddr_setup(a)
        a(f"s_waitcnt vmcnt({2*len(O.cop)}) lgkmcnt(0)")
        stamp(a, "c_par")
        if O.kstream == 2: pass
        elif O.kstream: kgen_valu(a, scalar=False, stream=True)
        else:
            kgen_valu(a, scalar=False); stamp(a, "c_k1"); kgen_ds(a, kacc=AKACC)
        stamp(a, "c_kv")
        kgen_exchange(a, kacc=AKACC, ef=AEF, bar=True)
        stamp(a, "c_kg")
    a("v_lshlrev_b32 v16, 4, v1\nv_mov_b32 v17, v44")
    def reads(b, sp):
        out = [f"ds_read_b128 {vr(FB(b,nt))}, v{VB+sp} offset:{nt*2048}" for nt in range(4)]
        for t in range(4):
            for mat in range(2):
                for rho in range(2):
                    d = FA(b,t,mat)+2*rho
                    out.append(f"ds_read_b64_tr_b16 v[{d}:{d+1}], v{VA+t} offset:{rho*2048+mat*1024}")
        return out
    def advW():
        return [f"s_add_u32 s44, s44, 1", f"s_cmp_eq_u32 s44, {NW}", f"s_cselect_b32 s46, {-(NW-1)*SLOT & 0xffffffff}, s52", f"s_cselect_b32 s44, 0, s44"] + \
               [f"v_add_u32 v{VA+t}, s46, v{VA+t}" for t in range(4)]
    def advX():
        return [f"s_add_u32 s45, s45, 2", f"s_cmp_ge_u32 s45, 7", f"s_cselect_b32 s47, {-5*HS & 0xffffffff}, s52", f"s_cselect_b32 s49, 7, 0", "s_sub_u32 s45, s45, s49"] + \
               [f"v_add_u32 v{VB+k}, s47, v{VB+k}" for k in range(2)]
    def mfma(b, t, mat, nt, first=False):
        c = acc(t,mat,nt)
        return f"v_mfma_f32_16x16x32_bf16 {vr(c)}, {vr(FA(b,t,mat))}, {vr(FB(b,nt))}, {0 if first else vr(c)}"
    def stage(b, rd, late, post=(), first=False):
        ms = [mfma(b,t,mat,nt,first) for t in range(4) for mat in range(2) for nt in range(4)]
        late = list(late); post = list(post)
        for i, m in enumerate(ms):
            a(m)
            if i < len(rd): a(rd[i])
            elif i < 27 and late:
                for _ in range(3 if len(late) > 2*(27-i) else 2):
                    if late: a(late.pop(0))
            if i == 27: a("s_waitcnt lgkmcnt(0)\ns_barrier")
            if i >= 27:
                for _ in range(2):
                    if post: a(post.pop(0))
        assert not late and not post
    if not O.mergex: a("s_waitcnt vmcnt(0) lgkmcnt(0)\ns_barrier")
    stamp(a, "c_b0")
    for r in reads(0, 0): a(r)
    for x in advW(): a(x)
    a("s_waitcnt lgkmcnt(0)\ns_barrier")
    a("s_mov_b32 s48, 7")
    lp = a.label("g1loop"); lm = a.label("g1mid")
    stage(0, reads(1, 1), advW() + advX(), first=True)
    a(f"s_branch {lm}\n{lp}:")
    stage(0, reads(1, 1), advW() + advX())
    a(f"{lm}:")
    stage(1, reads(0, 0), advW())
    a(f"s_sub_u32 s48, s48, 1\ns_cmp_lg_u32 s48, 0\ns_cbranch_scc1 {lp}")
    NM = 20
    csr = lambda t, mat: f"ds_read_b128 {vr(FA(0,t,mat))}, v14 offset:{mat*512+t*64}"
    post = [f"ds_read_b128 {vr(NM)}, v17"] + [csr(t, mat) for t in range(3) for mat in range(2)]
    stage(0, reads(1, 1), [], post)
    stamp(a, "c_s15")
    a(csr(3,0)); a(csr(3,1))
    def corr_s(ksl, nt):
        return [f"v_fmac_f32 v{acc(t,mat,nt)+r}, v{FA(0,t,mat)+r}, v{NM+nt}" for t in (2*ksl, 2*ksl+1) for mat in range(2) for r in range(4)]
    def corr(ksl, nt):
        if not O.epk: return corr_s(ksl, nt)
        o = []
        for t in (2*ksl, 2*ksl+1):
            for mat in range(2):
                for hf in range(2):
                    c = acc(t,mat,nt)+2*hf; cs = FA(0,t,mat)+2*hf; nm = NM + (nt & ~1); sel = nt & 1
                    o.append(f"v_pk_fma_f32 {pr(c)}, {pr(cs)}, {pr(nm)}, {pr(c)} op_sel:[0,{sel},0] op_sel_hi:[1,{sel},1]")
        return o
    def fin(ksl, nt):
        o = []
        for t in (2*ksl, 2*ksl+1):
            for hf in range(2):
                g = acc(t,0,nt)+2*hf; u = acc(t,1,nt)+2*hf
                if O.epk: o.append(f"v_pk_mul_f32 {pr(g)}, {pr(g)}, {pr(u)}")
                else: o += [f"v_mul_f32 v{g}, v{g}, v{u}", f"v_mul_f32 v{g+1}, v{g+1}, v{u+1}"]
        d = acc(2*ksl,1,nt); k = 0
        for t in (2*ksl, 2*ksl+1):
            for hf in range(2):
                g = acc(t,0,nt)+2*hf
                o.append(f"v_cvt_pk_bf16_f32 v{d+k}, v{g}, v{g+1}"); k += 1
        o.append(f"buffer_store_dwordx4 {vr(d)}, v16, {sr(S_WS)}, s{50+ksl} offen offset:{nt*1024} sc1")
        return o
    groups = [(ksl, nt) for ksl in range(2) for nt in range(4)]
    if O.shadow == 9:
        q = []
        for gi, (ksl, nt) in enumerate(groups):
            if gi == 1: a("s_waitcnt lgkmcnt(0)"); q += corr_s(*groups[2])
            if gi >= 2: q += ([] if gi-2 == 2 else corr_s(*groups[gi-2])) + fin(*groups[gi-2])
            for m in [mfma(1, t, mat, nt) for t in (2*ksl, 2*ksl+1) for mat in range(2)]:
                a(m)
                for _ in range(O.epg):
                    if q: a(q.pop(0))
        for gi in (6, 7): q += corr_s(*groups[gi]) + fin(*groups[gi])
        for x in q: a(x)
    else:
        pre = set()
        for gi, (ksl, nt) in enumerate(groups):
            fill = []
            if gi == 1: a("s_waitcnt lgkmcnt(0)")
            if O.shadow == 4:
                if 1 <= gi <= 6: fill = corr_s(*groups[gi+1]); pre.add(gi+1)
                if gi == 7: fill = corr_s(*groups[0]); pre.add(0)
            elif O.shadow == 2:
                tgt = {1:3, 2:3, 3:5, 4:5, 5:7, 6:7}
                if gi in tgt:
                    c = corr_s(*groups[tgt[gi]]); fill = c[:8] if gi % 2 else c[8:]; pre.add(tgt[gi])
            n = len(fill)//4
            for k, m in enumerate([mfma(1, t, mat, nt) for t in (2*ksl, 2*ksl+1) for mat in range(2)]):
                a(m)
                for x in fill[n*k:n*k+n]: a(x)
        for gi in range(8):
            if gi not in pre:
                for x in corr(*groups[gi]): a(x)
            for x in fin(*groups[gi]): a(x)
    stamp(a, "c_end")

LA = LC
VX, VO = 9, 10
XF = 24; RS = 28
def tail_setup(a, vm):
    a(f"""
    v_lshrrev_b32 v2, 3, v0
    v_lshlrev_b32 v{VX}, 10, v2
    v_and_b32 v3, 7, v0
    v_lshl_add_u32 v{VX}, v3, 4, v{VX}
    s_lshl_b32 s55, s53, 16
    s_lshl_b32 s50, s54, 7
    s_add_u32 s55, s55, s50
    v_mul_u32_u24 v{VO}, {PP}, v2
    v_lshl_add_u32 v{VO}, v3, 5, v{VO}
    v_add_u32 v{VO}, {LA}, v{VO}
    v_and_b32 v4, 15, v2
    v_lshlrev_b32 v3, 1, v3
    v_xor_b32 v3, v3, v4
    v_lshlrev_b32 v3, 4, v3
    v_lshl_add_u32 v3, v4, 8, v3
    v_lshrrev_b32 v4, 4, v2
    v_lshl_add_u32 v14, v4, 14, v3
    v_xor_b32 v15, 16, v14
    v_lshlrev_b32 v2, 3, v2
    s_lshl_b32 s50, s53, 9
    s_add_u32 s50, s50, {ST_G}
    """)
    for t, tag in ((f"buffer_load_dwordx4 {vr(XF)}, v{VX}, {sr(S_X)}, s55 offen", "x"), (f"buffer_load_dwordx2 {pr(RS)}, v2, {sr(S_WS)}, s50 offen sc1", "rs")):
        if vm: vm.issue(t, tag)
        else: a(t)

def prod_tail(a):
    a(f"""
    F_ptail:
    s_mov_b64 exec, 1
    ds_add_u32 v{VCN}, v{VONE} offset:{C_PS}
    s_mov_b64 exec, -1
    v_lshlrev_b32 v12, 4, v1
    v_lshlrev_b32 v13, 2, v1
    s_lshl_b32 s42, s53, 3
    s_add_u32 s42, s42, s54
    s_mul_i32 s42, s42, {ATP}
    s_lshl_b32 s41, s56, 11
    s_add_u32 s42, s42, s41
    s_add_u32 s42, s42, {AT_OFF}
    s_lshr_b32 s46, s53, 4
    s_lshl_b32 s46, s46, 3
    s_add_u32 s46, s46, s54
    s_lshl_b32 s46, s46, 2
    s_add_u32 s46, s46, s56
    s_mul_i32 s46, s46, {AFS}
    s_add_u32 s46, s46, {AF_OFF}
    v_and_b32 v16, 7, v1
    v_mul_u32_u24 v18, {2*PP}, v16
    v_lshrrev_b32 v16, 3, v1
    v_lshl_add_u32 v18, v16, 2, v18
    s_lshl_b32 s49, s56, 6
    s_add_u32 s49, s49, {LA}
    v_add_u32 v18, s49, v18
    v_mov_b32 v5, s{S_TAG}
    v_mov_b32 v4, 0
    s_waitcnt vmcnt(0)
    s_mov_b64 exec, 1
    buffer_store_dword v5, v4, {sr(S_WS)}, s{S_FO} offen sc1
    s_mov_b64 exec, -1
    """)
    stamp(a, 'a_st0')
    AG = 96; AU = 112
    lds_wait(a, VCN, C_PS, 8, 3)
    lds_wait(a, VCN, 52, 4, 3, sleep=4)
    tail_setup(a, None)
    poll(a, 5, 13, S_WS, "s46", 0xffff, f"s{S_TAG}", sleep=O.asleep)
    stamp(a, "hflag")
    for k in range(2): a(f"buffer_load_dwordx4 {vr(AG+4*k)}, v12, {sr(S_WS)}, s42 offen offset:{1024*k} sc1")
    for k in range(2):
        a(f"s_waitcnt vmcnt({1-k})")
        for j in range(4):
            a(f"v_lshlrev_b32 v{AU+8*k+2*j}, 16, v{AG+4*k+j}\nv_and_b32 v{AU+8*k+2*j+1}, 0xffff0000, v{AG+4*k+j}")
        for e in range(8): a(f"ds_write_b32 v18, v{AU+8*k+e} offset:{(16*(e&3) + (e>>2))*PP + 32*k}")
    lr = a.label("rsr"); lo = a.label("rso")
    a(f"""
    v_readlane_b32 s41, v{VT}, s53
    s_mov_b32 s58, {POLL_MAX}
    {lr}:
    s_waitcnt vmcnt(0)
    v_cmp_ne_u32 vcc, s41, v{RS+1}
    s_cbranch_vccz {lo}
    buffer_load_dwordx2 {pr(RS)}, v2, {sr(S_WS)}, s50 offen sc1
    s_sub_u32 s58, s58, 1
    s_cmp_lg_u32 s58, 0
    s_cbranch_scc1 {lr}
    {lo}:
    """)
    stamp(a, "g2_end")
    a("s_branch F_fin")

def gemm2(a):
    VA, VP, V3 = 16, 20, 12
    V3 = 28
    VH, VQ, VW2 = 8, 13, 12
    AC = 144
    R = NRG
    a(f"""
    F_g2:
    s_setprio 3
    v_mov_b32 v{VCN}, {CNT}
    v_lshrrev_b32 v4, 4, v1                     ; g
    v_bfe_u32 v2, v1, 3, 1
    v_and_b32 v3, 1, v4
    v_lshl_or_b32 v3, v3, 1, v2
    v_lshlrev_b32 v3, 5, v3
    v_and_b32 v4, 3, v1
    v_lshl_add_u32 v3, v4, 3, v3
    v_lshrrev_b32 v4, 2, v1
    v_lshl_add_u32 v3, v4, 7, v3
    s_lshl_b32 s52, s{S_WAVE}, 12
    v_add_u32 v{VA}, s52, v3
    v_xor_b32 v{VA+1}, 32, v{VA}
    v_xor_b32 v{VA+2}, 64, v{VA}
    v_xor_b32 v{VA+3}, 96, v{VA}
    """)
    for t in range(4): a(f"v_add_u32 v{VP+t}, 0x18000, v{VA+t}\nv_add_u32 v{V3+t}, 0x8000, v{VA+t}")
    wd_voff(a)
    lf = a.label("nofl")
    a(f"""
    s_lshl_b32 s41, s{S_WAVE}, 2
    v_add_u32 v7, s41, v{VCN}
    s_mul_i32 s86, s{S_WAVE}, {14*32*1024}
    s_lshl_b32 s41, s54, 7
    s_add_u32 s86, s86, s41
    s_add_u32 s87, s86, {14*32768}
    {rotc(44)}
    s_add_u32 s51, s44, {R-1}
    s_cmp_ge_u32 s51, 14
    s_cselect_b32 s41, 14, 0
    s_sub_u32 s51, s51, s41
    s_lshl_b32 s51, s51, 15
    s_add_u32 s51, s51, s86
    v_add_u32 v{VW2}, {8192-1024}, v{VWD}
    v_lshlrev_b32 v{VH}, 4, v1
    v_lshlrev_b32 v{VQ}, 2, v1
    s_lshl_b32 s47, s53, 2
    s_add_u32 s47, s47, s{S_WAVE}
    s_mul_i32 s47, s47, {HFS}
    s_add_u32 s47, s47, {HF_OFF}
    s_mul_i32 s45, s53, 56
    s_mul_i32 s48, s{S_WAVE}, 14
    s_add_u32 s45, s45, s48
    s_lshl_b32 s88, s45, 12
    s_add_u32 s89, s88, {14*4096}
    s_lshl_b32 s45, s44, 12
    s_add_u32 s45, s45, s88
    """)
    lds_wait(a, 7, C_PAIR, 1, 2)
    stamp(a, "g2a")
    def wread(reg, slot):
        base = WSLOT[slot]; o = []
        for t in range(4):
            for rho in range(2):
                off = base + rho*2048
                if off >= XR: v, off = VP+t, off - 0x18000
                elif off >= 65536 - 4096: v, off = V3+t, off - 0x8000
                else: v = VA+t
                o.append(f"ds_read_b64_tr_b16 v[{reg+4*t+2*rho}:{reg+4*t+2*rho+1}], v{v} offset:{off}")
        return o
    vm = VM(a)
    def wdma(step):
        k = step % 7
        if O.nob: return
        for hh in range(2):
            a((WADV if hh == 0 else "") + f"s_add_u32 m0, s52, {WSLOT[k] + hh*2048}\ns_add_u32 s49, s51, {hh*16384}")
            vm.issue(f"buffer_load_dwordx4 v{VWD}, {sr(S_WD)}, s49 offen lds", ("w", step))
            vm.issue(f"buffer_load_dwordx4 v{VW2}, {sr(S_WD)}, s49 offen offset:1024 lds", ("w", step))
    blocks = [32+16*i for i in range(7)] + [208, 224, 240]
    wreg = {s: blocks[s] for s in range(R)}
    free = blocks[R:]
    a(f"ds_read_b32 v5, v{VCN} offset:{C_TAG}")
    for s in range(R):
        for x in wread(wreg[s], s): a(x)
    a(f"s_waitcnt lgkmcnt(0)\nv_readfirstlane_b32 s{S_TAG}, v5")
    lf2 = a.label("nofl2")
    stamp(a, 'g2r')
    a(f"""
    s_cmp_eq_u64 s[{S_FM}:{S_FM+1}], 0
    s_cbranch_scc1 {lf2}
    s_waitcnt vmcnt({len(vm.ops)})
    s_mov_b64 exec, 1
    buffer_store_dword v5, v{VFL}, {sr(S_WS)}, s{S_FO} offen sc1
    s_mov_b64 exec, -1
    {lf2}:
    """)
    stamp(a, "flag")
    for s in range(R, R+O.wb1): wdma(s)
    a("s_mov_b64 exec, 0x7f")
    vm.issue(f"buffer_load_dword v2, v{VQ}, {sr(S_WS)}, s47 offen sc1", "hp")
    a("s_mov_b64 exec, -1")
    for s in range(R+O.wb1, R+O.wb1+O.wb2): wdma(s)
    stamp(a, 'g2e')
    vm.wait("hp")
    lo = a.label("hok")
    a(f"s_mov_b64 exec, 0x7f\nv_cmp_ne_u32 vcc, s{S_TAG}, v2\ns_mov_b64 exec, -1\ns_cbranch_vccz {lo}")
    poll(a, 2, VQ, S_WS, "s47", 0x7f, f"s{S_TAG}")
    a(f"{lo}:")
    stamp(a, "hflag")
    hreg = {}; hn = [0]; pend = []
    def hqueue(keep=0):
        while hn[0] < 14 and len(free) > keep:
            step = hn[0]; hreg[step] = free.pop(0); hn[0] += 1
            for j in range(4):
                pre = "s_add_u32 s45, s45, 4096\ns_cmp_eq_u32 s45, s89\ns_cselect_b32 s45, s88, s45" if (step and j == 0) else ""
                pend.append((pre, f"buffer_load_dwordx4 {vr(hreg[step]+4*j)}, v{VH}, {sr(S_WS)}, s45 offen offset:{j*1024} {O.hpol}", ("h", step)))
    def pop():
        if pend:
            p = pend.pop(0); a(p[0]); vm.issue(p[1], p[2])
    def wq(step):
        k_ = step % 7
        for hh in range(2):
            pend.append(((WADV if hh == 0 else "") + f"s_add_u32 m0, s52, {WSLOT[k_] + hh*2048}\ns_add_u32 s49, s51, {hh*16384}", f"buffer_load_dwordx4 v{VWD}, {sr(S_WD)}, s49 offen lds", ("w", step)))
            pend.append(("", f"buffer_load_dwordx4 v{VW2}, {sr(S_WD)}, s49 offen offset:1024 lds", ("w", step)))
    def resort(): pend.sort(key=lambda p: p[2][1] - (O.wbias if p[2][0] == "w" else 0))
    hqueue()
    for s in range(R+O.wb1+O.wb2, 7+R): wq(s)
    resort()
    for _ in range(O.hb0): pop()
    a(f"s_setprio {O.g2prio}")
    for s in range(14):
        nxt = []
        if R <= s+1 <= 13:
            wreg[s+1] = free.pop(0)
            while any(p[2] == ("w", s+1) for p in pend): pop()
            if ("w", s+1) in vm.ops: vm.wait(("w", s+1))
            nxt = wread(wreg[s+1], (s+1) % 7)
        while any(p[2] == ("h", s) for p in pend): pop()
        vm.wait(("h", s), "lgkmcnt(0)" if s >= R else "")
        if s == 0: stamp(a, "h0")
        stamp(a, f"hs{s}")
        if R <= s and s+7 <= 13: wq(s+7)
        if s == 12:
            nxt += [f"v_and_b32 v2, 15, v1\nv_lshrrev_b32 v3, 4, v1", f"v_xor_b32 v3, v3, v2\nv_lshlrev_b32 v3, 4, v3", f"v_lshl_add_u32 v3, v2, 8, v3\nv_add_u32 v{VA}, s52, v3",
                    f"v_xor_b32 v{VA+1}, 64, v{VA}\nv_xor_b32 v{VA+2}, 128, v{VA}", f"v_xor_b32 v{VA+3}, 192, v{VA}"]
        if s == 13:
            wr_ = [f"ds_write_b128 v{VA+t}, {vr(AC+16*t+4*j)} offset:{j*SLOT}" for t in range(4) for j in range(4)]
            nxt = ["s_nop 0"]*5 + wr_[:11]
        k = 0
        if O.tl2 and s == 12: order = [(12, t, j) for t in (0, 1) for j in range(4)]
        elif O.tl2 and s == 13:
            order = [(13, t, j) for t in (0, 1) for j in range(4)] + [(12, t, j) for t in (2, 3) for j in range(4)] + [(13, t, j) for t in (2, 3) for j in range(4)]
            nxt = ["s_nop 0"]*5 + wr_[:8] + ["s_nop 0"]*8 + wr_[8:11]
        else: order = [(s, t, j) for t in range(4) for j in range(4)]
        for (s_, t, j) in order:
            c = AC + 16*t + 4*j
            a(f"v_mfma_f32_16x16x32_bf16 {vr(c)}, {vr(wreg[s_]+4*t)}, {vr(hreg[s_]+4*j)}, {0 if s == 0 else vr(c)}")
            if nxt:
                x_ = nxt.pop(0)
                if x_ != "s_nop 0" or not (O.tl2 and 13 <= k < 18): a(x_)
            if O.tl2 and s == 12 and nxt: a(nxt.pop(0))
            if k % O.hgap == 0: pop()
            k += 1
        assert not nxt
        free.append(wreg[s]); free.append(hreg[s])
        hqueue(1 if R <= s+2 <= 13 else 0)
        resort()
        if s == 10: tail_setup(a, vm)
        if s == O.go_at: a(f"v_mov_b32 v7, 1"); lds_signal(a, VCN, 52, 7)
    stamp(a, "g2_end")
    a(wr_[11]); a("s_nop 0"); a(wr_[12]); a("s_nop 0"); a(wr_[13]); a("s_nop 0"); a(wr_[14]); a("s_nop 0"); a(wr_[15])
    HF = 32
    a(f"""
    F_fin:
    s_waitcnt vmcnt(0)
    v_and_b32 v{RS}, 0xffff0000, v{RS}
    v_rcp_f32 v{RS+1}, v{RS}
    s_nop 0
    v_fma_f32 v{RS+2}, -v{RS}, v{RS+1}, 1.0
    v_fma_f32 v{RS+1}, v{RS+2}, v{RS+1}, v{RS+1}
    v_mul_f32 v{RS}, v{RS+1}, v{RS+1}
    """)
    for k in range(4): a(f"v_lshlrev_b32 v{HF+40+2*k}, 16, v{XF+k}\nv_and_b32 v{HF+40+2*k+1}, 0xffff0000, v{XF+k}")
    a("s_waitcnt lgkmcnt(0)")
    stamp(a, "t_pre")
    a("s_barrier")
    stamp(a, "t_bar")
    for q in range(4):
        for hf in range(2): a(f"ds_read_b128 {vr(HF+8*q+4*hf)}, v{14+hf} offset:{q*4096}")
    for hf in range(2): a(f"ds_read_b128 {vr(HF+32+4*hf)}, v{VO} offset:{16*hf}")
    for q in range(1, 4):
        a(f"s_waitcnt lgkmcnt({8-2*q})")
        for k in range(4): a(f"v_pk_add_f32 {pr(HF+2*k)}, {pr(HF+2*k)}, {pr(HF+8*q+2*k)}")
    for k in range(4): a(f"v_pk_fma_f32 {pr(HF+2*k)}, {pr(HF+2*k)}, {pr(RS)}, {pr(HF+40+2*k)} op_sel_hi:[1,0,1]")
    a("s_waitcnt lgkmcnt(0)")
    for k in range(4): a(f"v_pk_add_f32 {pr(HF+2*k)}, {pr(HF+2*k)}, {pr(HF+32+2*k)}")
    for k in range(4): a(f"v_cvt_pk_bf16_f32 v{XF+k}, v{HF+2*k}, v{HF+2*k+1}")
    a(f"buffer_store_dwordx4 {vr(XF)}, v{VX}, {sr(S_OUT)}, s55 offen {O.opol}")
    stamp(a, "end")

def treduce16(a, R, T):
    for i in range(8): a(f"v_permlane32_swap_b32 v{R[i]}, v{R[i+8]}")
    for i in range(8): a(f"v_add_f32 v{R[i]}, v{R[i]}, v{R[i+8]}")
    for i in range(4): a(f"v_permlane16_swap_b32 v{R[i]}, v{R[i+4]}")
    for i in range(4): a(f"v_add_f32 v{R[i]}, v{R[i]}, v{R[i+4]}")
    a("s_nop 0")
    for i in range(2): a(f"v_add_f32_dpp v{T+i}, v{R[i]}, v{R[i]} row_ror:8 row_mask:0xf bank_mask:0x3")
    a("s_nop 0")
    for i in range(2): a(f"v_add_f32_dpp v{T+i}, v{R[i+2]}, v{R[i+2]} row_ror:8 row_mask:0xf bank_mask:0xc")
    a("s_nop 0")
    a(f"v_add_f32_dpp v{R[0]}, v{T}, v{T} row_half_mirror row_mask:0xf bank_mask:0x5")
    a("s_nop 1")
    a(f"v_add_f32_dpp v{R[0]}, v{T+1}, v{T+1} row_half_mirror row_mask:0xf bank_mask:0xa")
    a("s_nop 1")
    a(f"v_add_f32_dpp v{R[0]}, v{R[0]}, v{R[0]} quad_perm:[1,0,3,2] row_mask:0xf bank_mask:0xf")
    a("s_nop 1")
    a(f"v_add_f32_dpp v{R[0]}, v{R[0]}, v{R[0]} quad_perm:[2,3,0,1] row_mask:0xf bank_mask:0xf")
    return lambda row: 4*row

def treduce8(a, R, T):
    for i in range(4): a(f"v_permlane32_swap_b32 v{R[i]}, v{R[i+4]}")
    for i in range(4): a(f"v_add_f32 v{R[i]}, v{R[i]}, v{R[i+4]}")
    a("s_nop 0")
    for i in range(2): a(f"v_permlane16_swap_b32 v{R[i]}, v{R[i+2]}")
    for i in range(2): a(f"v_add_f32 v{R[i]}, v{R[i]}, v{R[i+2]}")
    a("s_nop 0")
    a(f"v_add_f32_dpp v{T}, v{R[0]}, v{R[0]} row_ror:8 row_mask:0xf bank_mask:0x3")
    a(f"v_add_f32_dpp v{T}, v{R[1]}, v{R[1]} row_ror:8 row_mask:0xf bank_mask:0xc")
    a("s_nop 1")
    a(f"v_add_f32_dpp v{R[0]}, v{T}, v{T} row_half_mirror row_mask:0xf bank_mask:0xf")
    a("s_nop 1")
    a(f"v_add_f32_dpp v{R[0]}, v{R[0]}, v{R[0]} quad_perm:[1,0,3,2] row_mask:0xf bank_mask:0xf")
    a("s_nop 1")
    a(f"v_add_f32_dpp v{R[0]}, v{R[0]}, v{R[0]} quad_perm:[2,3,0,1] row_mask:0xf bank_mask:0xf")
    return lambda row: 8*row

def aux_role(a):
    S_OT = 61; GR = 12
    a(f"""
    s_memrealtime s[40:41]
    v_mov_b32 v{VCN}, {CNT}
    v_mov_b32 v{VONE}, 1
    v_mov_b32 v15, 0
    s_setprio 0
    s_cmp_ge_u32 s{S_WAVE}, 4
    s_cbranch_scc1 F_aux2
    s_setprio 2
    """)
    X = 16; F = 80; SUM = 208; T = 224
    a(f"""
    v_lshlrev_b32 v2, 4, v1
    s_lshl_b32 s44, s2, 6
    s_lshl_b32 s45, s{S_WAVE}, 4
    s_add_u32 s44, s44, s45
    s_lshl_b32 s42, s44, 10
    s_waitcnt lgkmcnt(0)
    """)
    for i in range(16):
        a(f"buffer_load_dwordx4 {vr(X+4*i)}, v2, {sr(S_X)}, s42 offen offset:{(i%4)*1024}")
        if i % 4 == 3 and i < 15: a("s_add_u32 s42, s42, 4096")
    late_loads(a)
    a(f"""
    s_lshl_b32 s46, s{S_WAVE}, 1
    v_and_b32 v9, 7, v1
    v_xor_b32 v9, s46, v9
    v_lshlrev_b32 v9, 4, v9
    v_lshl_add_u32 v9, v1, 10, v9
    v_xor_b32 v10, 16, v9
    s_barrier
    ds_read_b32 v{GR+1}, v{VCN} offset:256
    """)
    for i in range(16):
        a(f"s_waitcnt vmcnt({15-i})")
        if i == 0: stamp(a, "a_x")
        for j in range(4):
            a(f"v_lshlrev_b32 v{F+8*i+2*j}, 16, v{X+4*i+j}\nv_and_b32 v{F+8*i+2*j+1}, 0xffff0000, v{X+4*i+j}")
        a(f"v_pk_add_f32 {pr(T)}, {pr(F+8*i)}, {pr(F+8*i+2)}")
        a(f"v_pk_add_f32 {pr(T+2)}, {pr(F+8*i+4)}, {pr(F+8*i+6)}")
        a(f"v_pk_add_f32 {pr(T)}, {pr(T)}, {pr(T+2)}")
        a(f"v_add_f32 v{SUM+i}, v{T}, v{T+1}")
    R = [SUM+i for i in range(16)]
    ln = treduce16(a, R, T)
    a(f"""
    v_mul_f32 v{T}, 0x3b000000, v{SUM}
    v_cvt_pk_bf16_f32 v{T+4}, v{T}, v{T}
    v_and_b32 v{T+4}, 0xffff0000, v{T+4}
    v_sub_f32 v{T+5}, v{T}, v{T+4}
    """)
    for i in range(16): a(f"v_readlane_b32 s{76+i}, v{T+4}, {ln(i)}")
    def sb(i): return f"s[{76+(i&~1)}:{77+(i&~1)}] op_sel:[0,{i&1}] op_sel_hi:[1,{i&1}]"
    for i in range(16):
        for j in range(0, 8, 2): a(f"v_pk_add_f32 {pr(F+8*i+j)}, {pr(F+8*i+j)}, {sb(i)} neg_lo:[0,1] neg_hi:[0,1]")
        a(f"v_pk_mul_f32 {pr(T)}, {pr(F+8*i)}, {pr(F+8*i)}")
        for j in (2,4,6): a(f"v_pk_fma_f32 {pr(T)}, {pr(F+8*i+j)}, {pr(F+8*i+j)}, {pr(T)}")
        a(f"v_add_f32 v{SUM+i}, v{T}, v{T+1}")
    treduce16(a, R, T)
    a(f"""
    v_mul_f32 v{T+6}, 0x3b000000, v{SUM}
    v_fma_f32 v{T+6}, -v{T+5}, v{T+5}, v{T+6}
    v_max_f32 v{T+6}, 0, v{T+6}
    v_cvt_pk_bf16_f32 v{T+6}, v{T+6}, v{T+6}
    v_and_b32 v{T+6}, 0xffff0000, v{T+6}
    v_add_f32 v{T+6}, 0x3727c5ac, v{T+6}
    v_cvt_pk_bf16_f32 v{T+6}, v{T+6}, v{T+6}
    v_and_b32 v{T+6}, 0xffff0000, v{T+6}
    v_sqrt_f32 v{T+6}, v{T+6}
    v_lshlrev_b32 v5, 1, v1
    v_cvt_pk_bf16_f32 v{GR}, v{T+4}, v{T+6}
    s_lshl_b32 s46, s44, 3
    s_add_u32 s46, s46, {ST_G}
    s_mov_b32 exec_lo, 0x11111111
    s_mov_b32 exec_hi, 0x11111111
    s_waitcnt lgkmcnt(0)
    buffer_store_dwordx2 {pr(GR)}, v5, {sr(S_WS)}, s46 offen sc1
    s_mov_b64 exec, -1
    v_and_b32 v{T+6}, 0xffff0000, v{GR}
    v_rcp_f32 v{T+7}, v{T+6}
    s_nop 0
    v_fma_f32 v{T+5}, -v{T+6}, v{T+7}, 1.0
    v_fma_f32 v{T+7}, v{T+5}, v{T+7}, v{T+7}
    s_nop 0
    """)
    stamp(a, "a_st")
    for i in range(16): a(f"v_readlane_b32 s{76+i}, v{T+7}, {ln(i)}")
    for oo in range(2):
        for i in range(8*oo, 8*oo+8):
            for j in range(0, 8, 2): a(f"v_pk_mul_f32 {pr(F+8*i+j)}, {pr(F+8*i+j)}, {sb(i)}")
        for c in range(8):
            d = X + 32*oo + 4*c
            for k in range(4): a(f"v_cvt_pk_bf16_f32 v{d+k}, v{F+8*(8*oo+2*k)+c}, v{F+8*(8*oo+2*k+1)+c}")
            a(f"ds_write_b128 v{9+oo}, {vr(d)} offset:{c*128}")
    lds_signal(a, VCN, C_LN, VONE)
    TT = 232; FF = 128
    a(f"""
    s_mov_b64 s[{S_FM}:{S_FM+1}], 0
    v_lshlrev_b32 v4, 4, v1
    s_lshl_b32 s46, s{S_WAVE}, 14
    v_add_u32 v2, s46, v4
    s_mul_i32 s47, s2, {XQ}
    s_add_u32 s46, s46, s47
    s_add_u32 s46, s46, {XNT_OFF}
    """)
    for tt in range(8): a(f"v_xor_b32 v{TT+tt}, {tt<<4}, v2")
    lds_wait(a, VCN, C_LN, 4, 3)
    stamp(a, "a_bar")
    for tt in range(16): a(f"ds_read_b128 {vr(FF+4*tt)}, v{TT+tt%8} offset:{tt*1024}")
    a("s_waitcnt lgkmcnt(0)")
    lds_signal(a, VCN, C_A, VONE)
    for tt in range(16):
        a(f"buffer_store_dwordx4 {vr(FF+4*tt)}, v4, {sr(S_WS)}, s46 offen offset:{(tt%4)*1024} sc1")
        if tt % 4 == 3 and tt < 15: a("s_add_u32 s46, s46, 0x1000")
    a(f"""
    s_lshl_b32 s46, s{S_WAVE}, 7
    s_lshl_b32 s47, s2, 2
    s_add_u32 s46, s46, s47
    s_add_u32 s46, s46, {XF_OFF}
    s_waitcnt vmcnt(0)
    s_mov_b64 exec, 1
    buffer_store_dword v{GR+1}, v15, {sr(S_WS)}, s46 offen sc1
    s_mov_b64 exec, -1
    """)
    stamp(a, "a_end")
    wd_voff(a)
    a(f"""
    s_mul_i32 s86, s56, {14*32*1024}
    s_lshl_b32 s40, s54, 7
    s_add_u32 s86, s86, s40
    s_add_u32 s87, s86, {14*32768}
    {rotc(51)}
    s_lshl_b32 s51, s51, 15
    s_add_u32 s51, s51, s86
    s_lshl_b32 s52, s56, 12
    """)
    lds_wait(a, VCN, C_A, 4, 2)
    for k in range(NRG):
        for u in wdA_units(k): a(u[0]); a(u[1])
    poll(a, 3, 15, S_DBG, "0", -1, "0", "eq")
    a(f"s_lshl_b32 s41, s56, 2\nv_add_u32 v2, s41, v{VCN}\nds_write_b32 v{VCN}, v3 offset:{C_TAG}\nds_write_b32 v2, v{VONE} offset:{C_PAIR}")
    if O.apf:
        lp_ = a.label("apf")
        a(f"""
        v_lshrrev_b32 v2, 5, v1
        v_lshlrev_b32 v2, 10, v2
        v_and_b32 v3, 31, v1
        v_lshl_add_u32 v2, v3, 4, v2
        s_lshr_b32 s46, s2, 3
        s_lshl_b32 s46, s46, 2
        s_add_u32 s46, s46, s{S_WAVE}
        s_mul_i32 s46, s46, {112*1024}
        s_and_b32 s47, s2, 1
        s_xor_b32 s47, s47, 1
        s_lshl_b32 s47, s47, 9
        s_add_u32 s46, s46, s47
        s_mov_b32 s47, 28
        {lp_}:
        buffer_load_dwordx4 v[144:147], v2, {sr(S_WD)}, s46 offen
        buffer_load_dwordx4 v[148:151], v2, {sr(S_WD)}, s46 offen offset:2048
        s_add_u32 s46, s46, 4096
        s_waitcnt vmcnt({O.apf})
        s_sub_u32 s47, s47, 1
        s_cmp_lg_u32 s47, 0
        s_cbranch_scc1 {lp_}
        """)
    a("s_branch F_g2")
    WR = list(range(192, 256, 4)); SEL = 8; CS = 188
    lt = a.label("atag")
    a(f"""
    F_aux2:
    s_lshr_b32 s46, s2, 1
    s_cmp_ge_u32 s46, 7
    s_cselect_b32 s47, 7, 0
    s_cselect_b32 s{S_WG}, s{S_WU}, s{S_WG}
    s_cselect_b32 s{S_WG+1}, s{S_WU+1}, s{S_WG+1}
    s_cselect_b32 s6, 1, 0
    s_sub_u32 s46, s46, s47
    s_and_b32 s48, s2, 1
    s_mul_i32 s48, s48, 7
    s_add_u32 s7, s46, s48
    s_lshl_b32 s45, s7, 8
    s_mul_i32 s46, s56, {(4 if O.aord else 128)*3584}
    s_add_u32 s45, s45, s46
    s_add_u32 s45, s45, {O.aord*3584}
    s_cmp_ge_u32 s2, 28
    s_cselect_b32 s{S_WG+2}, 0, s{S_WG+2}
    v_lshrrev_b32 v3, 4, v1
    v_mul_u32_u24 v3, 3584, v3
    v_and_b32 v4, 15, v1
    v_lshl_add_u32 v8, v4, 4, v3
    s_waitcnt lgkmcnt(0)
    s_or_b32 s{S_OT}, s40, 1
    """)
    late_loads(a)
    a(f"""
    s_cmp_lg_u32 s56, 0
    s_cbranch_scc1 {lt}
    v_mov_b32 v5, s{S_OT}
    ds_write_b32 v{VCN}, v5 offset:256
    s_lshl_b32 s40, s2, 2
    s_mov_b64 exec, 1
    buffer_store_dword v5, v15, {sr(S_DBG)}, s40 offen sc1
    s_mov_b64 exec, -1
    """)
    cnt_init(a)
    a(f"{lt}:\ns_waitcnt lgkmcnt(0)\ns_barrier\nds_read_b32 v{GR+1}, v{VCN} offset:256")
    vm = VM(a); vm.ops = ["par"]*4
    WR = list(range(128, 256, 4)); SEL = KW+64; CS = KW+68
    for i in range(32):
        vm.issue(f"buffer_load_dwordx4 {vr(WR[i])}, v8, {sr(S_WG)}, s45 offen", ("w", i))
        if O.aord and O.aord + 16*(i+1) == 512: a(f"s_sub_u32 s45, s45, {(512-16)*3584}")
        elif i < 31: a(f"s_add_u32 s45, s45, {(16 if O.aord else 4)*3584}")
    a(f"""
    v_and_b32 v3, 1, v1
    v_lshlrev_b32 v3, 4, v3
    v_mov_b32 v4, 0x3f80
    v_lshlrev_b32 v3, v3, v4
    v_bfe_u32 v4, v1, 1, 3
    """)
    for k in range(4): a(f"v_cmp_eq_u32 s[{78+2*k}:{79+2*k}], {k}, v4")
    for k in range(4): a(f"v_cndmask_b32 v{SEL+k}, 0, v3, s[{78+2*k}:{79+2*k}]")
    a(f"""
    v_and_b32 v4, 15, v1
    v_lshlrev_b32 v4, 5, v4
    v_bfe_u32 v5, v1, 4, 1
    v_lshl_add_u32 v4, v5, 4, v4
    s_lshl_b32 s46, s56, 9
    s_add_u32 s46, s46, {LU}
    v_add_u32 v10, s46, v4
    """)
    for i in range(32):
        vm.wait(("w", i))
        a(f"v_mfma_f32_16x16x32_bf16 {vr(CS)}, {vr(SEL)}, {vr(WR[i])}, {vr(CS) if i else 0}")
    a(f"s_mov_b32 exec_hi, 0\ns_nop 6\nds_write_b128 v10, {vr(CS)}\ns_mov_b64 exec, -1")
    lds_signal(a, VCN, C_ST, VONE)
    l4 = a.label("nocs")
    a(f"s_cmp_ge_u32 s2, 28\ns_cbranch_scc1 {l4}\ns_cmp_ge_u32 s56, 2\ns_cbranch_scc1 {l4}")
    lds_wait(a, VCN, C_ST, 4, 2)
    a(f"""
    v_and_b32 v3, 127, v0
    v_lshlrev_b32 v5, 2, v3
    v_add_u32 v5, {LU}, v5
    ds_read2st64_b32 v[192:193], v5 offset0:0 offset1:2
    ds_read2st64_b32 v[194:195], v5 offset0:4 offset1:6
    v_lshlrev_b32 v3, 3, v3
    s_mul_i32 s47, s6, 14
    s_add_u32 s47, s47, s7
    s_lshl_b32 s47, s47, 10
    s_add_u32 s47, s47, {CS_G}
    s_waitcnt lgkmcnt(0)
    v_pk_add_f32 v[192:193], v[192:193], v[194:195]
    v_add_f32 v{GR}, v192, v193
    buffer_store_dwordx2 {pr(GR)}, v3, {sr(S_WS)}, s47 offen sc1
    {l4}:
    """)
    stamp(a, "a_cs")
    kaddr_setup(a, LC)
    prod_setup(a)
    a(f"buffer_load_dword v{VT}, v14, {sr(S_DBG)}, 0 offen sc1\ns_waitcnt lgkmcnt(0)")
    kgen_valu(a, scalar=False, stream=True)
    stamp(a, "a_kg")
    kgen_exchange(a, kacc=AKACC, ef=AEF)
    lds_signal(a, VCN, C_KX, VONE)
    lds_wait(a, VCN, C_KX, 4, 2)
    expand_gather(a)
    tails_prep(a)
    a.lines += expand_writes()
    lds_signal(a, VCN, C_KX, VONE)
    a("s_waitcnt vmcnt(0)")
    tags_check(a)
    stamp(a, "a_ex")
    lds_wait(a, VCN, C_KX, 8, 2)
    xf_addr(a, 41)
    poll(a, XFL, 14, S_WS, "s41", -1, f"v{VT}")
    u_loads(a, None)
    conv_setup(a)
    a("s_waitcnt vmcnt(0)\ns_mov_b32 s55, 2\ns_branch F_pp")

def k_fused():
    a = Asm("F")
    a(f"""
    s_cmp_ge_u32 s2, 256
    s_cbranch_scc1 F_end
    s_load_dwordx2 s[{S_X}:{S_X+1}], s[0:1], 0
    s_load_dwordx2 s[{S_WG}:{S_WG+1}], s[0:1], 64
    s_load_dwordx2 s[{S_WU}:{S_WU+1}], s[0:1], 72
    s_load_dwordx8 s[64:71], s[0:1], 8
    s_load_dwordx4 s[72:75], s[0:1], 40
    """)
    if O.stamps: a(f"{O.stamps} s[92:93]")
    a(f"v_lshrrev_b32 v2, 6, v0\nv_and_b32 v1, 63, v0\nv_readfirstlane_b32 s{S_WAVE}, v2")
    srd_tail(a, S_X, 2048*512*2); srd_tail(a, S_WG, 512*1792*2); srd_tail(a, S_WU, 512*1792*2+1024)
    if O.k8: a(f"s_and_b32 s56, s{S_WAVE}, 3\ns_waitcnt lgkmcnt(0)")
    else: a(f"s_and_b32 s56, s{S_WAVE}, 3\ns_lshr_b32 s40, s{S_WAVE}, 2\ns_cmp_lt_u32 s2, 32\ns_cselect_b32 s41, 1, 0\ns_cmp_lg_u32 s40, s41\ns_cbranch_scc1 F_nopar\ns_waitcnt lgkmcnt(0)")
    a(f"s_lshl_b32 s40, s2, 2\ns_load_dword s{S_LDT}, s[72:73], s40")
    kgen_param_loads(a, VM(a))
    a(f"""
    F_nopar:
    s_cmp_lt_u32 s2, 32
    s_cbranch_scc1 F_aux
    s_bfe_u32 s60, s2, 0x20001
    s_and_b32 s40, s2, 1
    s_lshl_b32 s40, s40, 1
    s_add_u32 s60, s60, s40
    s_cmp_ge_u32 s60, {8-O.hyb}
    s_cselect_b32 s40, {8-O.hyb}, 0
    s_sub_u32 s60, s60, s40
    s_bfe_u32 s6, s2, 0x20001
    s_lshl_b32 s6, s6, 2
    s_bfe_u32 s40, s2, 0x20003
    s_add_u32 s6, s6, s40
    s_and_b32 s7, s2, 1
    s_mul_i32 s7, s7, 7
    s_lshr_b32 s40, s2, 5
    s_add_u32 s7, s7, s40
    s_sub_u32 s7, s7, 1
    s_cmp_lt_u32 s{S_WAVE}, 4
    s_cbranch_scc1 F_cons
    """)
    g1_producer(a)
    a("F_cons:")
    g1_consumer(a)
    gemm2(a)
    stamp_flush(a)
    a("F_end:\ns_endpgm\nF_aux:")
    aux_role(a)
    a("F_last:\ns_endpgm")
    return dict(name=NAME, body=a.text(), grid=256, block=512, lds=163840, vgpr=256, sgpr=102)

HEADER = """; parallel_sum( x + S4D-conv(LN(x)) + bilinear-GLU(LN(x)) ) -- single persistent launch, 256 WGs x 8 waves, 1 WG per CU.
"""
def single_file(k):
    return HEADER + make_file([k]).replace("; @launch kernel=%s " % k["name"], "; @launch ")
SETS = {"T": dict(hs12=1, hs13=2, g2_end=3, t_pre=4, t_bar=5, end=6, a_st0=1, hflag=7),
        "G": dict(c_par=1, c_k1=2, c_kv=3, c_kg=4, c_b0=5, pb1=1, pb7=2, pb10=3, pb12=4, pb14=5, pb15=6, pb16=7),
        "E": dict(pb16=1, ps2=2, cv_m=3, cv_x=4, conv_end=5, a_st0=6, hflag=7, c_end=1, g2a=2, g2r=3, g2d=4, flag=5, g2e=6),
        "Z": dict(c_end=1, flag=2, end=7),
        "A": dict(c_b0=1, c_s15=2, c_end=3, flag=4, g2a=5, hflag=6, end=7,   p_par=1, p_kg=2, p_b16=3, ps2=5,  a_x=1, a_bar=2, a_end=3, a_cs=1, a_kg=2, a_ex=3),
        "B": dict(c_par=3, c_kg=4, p_start=1, h0=2, g2_end=6, end=7, pb3=2, pb10=3, ps1=4, conv_end=5, a_st=3),
        "D": dict(hflag=1, hs0=2, hs3=3, hs4=4, hs7=5, hs10=6, hs13=7),
        "C": dict(pb10=1, pb12=2, pb13=3, pb14=4, pb15=5, pb16=6, p_b16=7)}
if __name__ == "__main__":
    sfx = ""
    for kv in sys.argv[1:]:
        k, v = kv.split("=")
        if k == "sfx": sfx = v
        else: setattr(O, k, eval(v))
    open(f"../f3{sfx}.s","w").write(single_file(k_fused()))
    O.stamps = "s_memrealtime"
    for k, v in SETS.items():
        O.stamp_sel = v
        open(f"../f3{sfx}_{k}.s","w").write(single_file(k_fused()))
```
